```python
import torch

def _softmax(x, axis=-1):
    return torch.softmax(x, dim=axis)
def _gelu(x):
    return torch.nn.functional.gelu(x, approximate="tanh")
def _silu(x):
    return torch.nn.functional.silu(x)
def _sigmoid(x):
    return torch.sigmoid(x)
def _layernorm(x, axis=-1, eps=1e-5):
    m = x.mean(dim=axis, keepdim=True)
    v = x.var(dim=axis, keepdim=True, unbiased=False)
    return (x - m) / torch.sqrt(v + eps)
def _scatter_add(tgt, idx, src, axis=0):
    return tgt.clone().index_add_(axis, idx, src)
def _segment_sum(src, seg, n):
    out = torch.zeros((n,) + src.shape[1:], dtype=src.dtype)
    return out.index_add_(0, seg, src)
def _pad(x, pw):
    flat = tuple(v for pair in reversed(pw) for v in pair)
    return torch.nn.functional.pad(x, flat)

kernel_name = 'parallel_sum__ssm_conv_h3__dense_activation_mish__prompt'

def setup_inputs():

    _w = (lambda a: (lambda t: t.to(torch.bfloat16) if t.is_floating_point() else t)(torch.as_tensor(a)))
    def _A_setup():
        B, S, D = 1, 2048, 576
        ks = 4
        return {
            "q": _w((lambda *s: torch.randn(*s, dtype=torch.bfloat16) * 0.05)(B, S, D)),
            "k": _w((lambda *s: torch.randn(*s, dtype=torch.bfloat16) * 0.2)(B, S, D)),
            "v": _w((lambda *s: torch.randn(*s, dtype=torch.bfloat16) * 0.2)(B, S, D)),
            "shift_k": _w((lambda *s: torch.randn(*s, dtype=torch.bfloat16) * 0.2)(D, ks) * 0.5),
            "ssm_k": _w((lambda *s: torch.randn(*s, dtype=torch.bfloat16) * 0.8)(D, S) * (1.0 / S ** 0.5)),
            "ssm_D": _w((lambda *s: torch.randn(*s, dtype=torch.bfloat16) * 0.2)(D)),
        }
    _A_in = _A_setup()

    def _B_setup():
        B, S, D, F = 1, 2048, 576, 4608
        return {
            "x": _w((lambda *s: torch.randn(*s, dtype=torch.bfloat16) * 0.05)(B, S, D)),
            "w1": _w((lambda *s: torch.randn(*s, dtype=torch.bfloat16) * 0.8)(D, F) * (D ** -0.5)),
            "b1": _w((lambda *s: torch.randn(*s, dtype=torch.bfloat16) * 0.2)(F)),
            "w2": _w((lambda *s: torch.randn(*s, dtype=torch.bfloat16) * 0.1)(F, D) * (F ** -0.5)),
        }
    _B_in = _B_setup()

    return {
        "A_q": _A_in["q"],
        "A_k": _A_in["k"],
        "A_v": _A_in["v"],
        "A_shift_k": _A_in["shift_k"],
        "A_ssm_k": _A_in["ssm_k"],
        "A_ssm_D": _A_in["ssm_D"],
        "B_x": _B_in["x"],
        "B_w1": _B_in["w1"],
        "B_b1": _B_in["b1"],
        "B_w2": _B_in["w2"],
    }

def reference(A_q, A_k, A_v, A_shift_k, A_ssm_k, A_ssm_D, B_x, B_w1, B_b1, B_w2):
    def _A_ref(q, k, v, shift_k, ssm_k, ssm_D):
        B, S, D = q.shape
        ks = shift_k.shape[-1]
        k_pad = _pad(k, ((0, 0), (ks - 1, 0), (0, 0)))
        k_shift = torch.zeros_like(k)
        for t in range(ks):
            k_shift = k_shift + k_pad[:, t:t + S, :] * shift_k[:, ks - 1 - t][None, None, :]
        kv = k_shift * v
        L = 2 * S
        kv_pad = _pad(kv, ((0, 0), (0, S), (0, 0)))
        kf_pad = _pad(ssm_k, ((0, 0), (0, S)))
        kv_f = (lambda x, axes=(-2,-1): torch.fft.rfft2(x.float(), dim=axes))(kv_pad[:, None, :, :], axes=(1, 2))
        kf_f = (lambda x, axes=(-2,-1): torch.fft.rfft2(x.float(), dim=axes))(kf_pad[:, None, :], axes=(1, 2))
        kf_f = (lambda x, *d: x.permute(*d))(kf_f, 1, 2, 0)
        y_f = kv_f * kf_f[None, :, :, :]
        y = (lambda x, s, axes=(-2,-1): torch.fft.irfft2(x, s=s, dim=axes).to(torch.bfloat16))(y_f, (1, L), axes=(1, 2))[:, 0, :S, :]
        y = y + kv * ssm_D[None, None, :]
        return q * y

    def _B_ref(x, w1, b1, w2):
        h = torch.einsum("bsd,df->bsf", x, w1) + b1
        sp = torch.log1p(torch.exp(-torch.abs(h))) + torch.where(h > 0, h, torch.zeros_like(h))
        act = h * torch.tanh(sp)
        return torch.einsum("bsf,fd->bsd", act, w2)

    x = A_q
    xn = _layernorm(x, axis=-1)
    return x + _A_ref(xn, A_k, A_v, A_shift_k, A_ssm_k, A_ssm_D) + _B_ref(xn, B_w1, B_b1, B_w2)
```

```python
class Asm:
    def __init__(self):
        self.lines = []
        self.nlabel = 0
    def __call__(self, s):
        for l in s.split("\n"):
            l = l.strip()
            if l: self.lines.append("    " + l if not l.endswith(":") else l)
    def c(self, s): self.lines.append("    ; " + s)
    def label(self, name): self.lines.append(name + ":")
    def newlabel(self, p="L"):
        self.nlabel += 1
        return f"{p}_{self.nlabel}"
    def text(self): return "\n".join(self.lines) + "\n"

def v(i, n=1):
    return f"v{i}" if n == 1 else f"v[{i}:{i+n-1}]"
def s(i, n=1):
    return f"s{i}" if n == 1 else f"s[{i}:{i+n-1}]"

def srd(a, d, base, nbytes):
    a(f"s_mov_b32 s{d}, s{base}")
    a(f"s_and_b32 s{d+1}, s{base+1}, 0xffff")
    a(f"s_mov_b32 s{d+2}, {nbytes}")
    a(f"s_mov_b32 s{d+3}, 0x00020000")

def kernel_header(name):
    return f""".globl {name}
.p2align 8
.type {name},@function
{name}:
"""
def kernel_desc(name, vgpr, sgpr=102):
    acc = (vgpr + 3) // 4 * 4
    return f""".p2align 6
.amdhsa_kernel {name}
  .amdhsa_next_free_vgpr {vgpr}
  .amdhsa_next_free_sgpr {sgpr}
  .amdhsa_accum_offset {acc}
  .amdhsa_group_segment_fixed_size 0
  .amdhsa_kernarg_size 104
  .amdhsa_user_sgpr_count 2
  .amdhsa_user_sgpr_kernarg_segment_ptr 1
  .amdhsa_system_sgpr_workgroup_id_x 1
.end_amdhsa_kernel
"""
import struct
def f32(x):
    return "0x%08x" % struct.unpack("<I", struct.pack("<f", x))[0]

def interleave(main, side, start=0, end=None):
    if end is None: end = len(main)
    n = end - start
    out = []
    k = 0
    for i, m in enumerate(main):
        out.append(m)
        if start <= i < end:
            want = (i - start + 1) * len(side) // n
            while k < want:
                out.append(side[k]); k += 1
    out.extend(side[k:])
    return out
```

```python
from asmlib import *
import math
LOG2E = math.log2(math.e)
LN2 = math.log(2.0)
S, D, F = 2048, 576, 4608
XBYTES = S * D * 2
WBYTES = D * F * 2
WS_PART = 0
SLICE = XBYTES
WS_STATS = 16 * SLICE
WS_U = WS_STATS + 16384
WS_Z = WS_U + 144 * 256 * 128
WS_END = WS_Z + XBYTES

class Track:
    def __init__(self, a, name, maxv):
        self.a, self.name, self.maxv = a, name, maxv
        self.q = []
    def issue(self, tag=None):
        self.q.append(tag)
    def count_for(self, tags):
        idx = -1
        for i, t in enumerate(self.q):
            if t in tags: idx = i
        if idx < 0: return None
        return len(self.q) - 1 - idx
    def need(self, *tags):
        n = self.count_for(tags)
        if n is None: return None
        n = min(n, self.maxv)
        self.q = self.q[len(self.q) - n:] if n else []
        return f"s_waitcnt {self.name}({n})"
    def drain(self):
        self.q = []
        return f"s_waitcnt {self.name}(0)"
```

```python
from common import *
from k_mlp import Emit, M16

def gen_prep(a):
    E = Emit(a)
    Lend = a.newlabel("Lprep_end")
    a("s_cmp_ge_u32 s2, 256")
    a(f"s_cbranch_scc1 {Lend}")
    a("s_load_dwordx4 s[4:7], s[0:1], 8")
    a("s_load_dwordx2 s[28:29], s[0:1], 24")
    a("s_load_dwordx2 s[30:31], s[0:1], 96")
    a("v_cmp_gt_u32 vcc, 288, v0")
    a("s_and_saveexec_b64 s[40:41], vcc")
    a(f"s_cbranch_execz {Lend}")
    a("s_mul_i32 s3, s2, 9216")
    a("s_sub_u32 s3, s3, 4608")
    a("v_lshlrev_b32 v1, 2, v0")
    a("v_add_u32 v1, s3, v1")
    a("v_lshlrev_b32 v2, 4, v0")
    a("s_waitcnt lgkmcnt(0)")
    srd(a, 8, 4, XBYTES); srd(a, 12, 6, XBYTES); srd(a, 16, 28, 576 * 8); srd(a, 20, 30, WS_END)
    K, V, SK = 10, 22, 32
    a(f"buffer_load_dwordx4 {v(SK,4)}, v2, s[16:19], 0 offen")
    for r in range(12):
        a(f"buffer_load_dword v{K+r}, v1, s[8:11], 0 offen")
        if r >= 3: a(f"buffer_load_dword v{V+r-3}, v1, s[12:15], 0 offen")
        a("v_add_u32 v1, 1152, v1")
    a("s_waitcnt vmcnt(0)")
    W = 40
    for ch in range(2):
        for h in range(2):
            a(f"v_lshlrev_b32 v{W+ch*4+2*h}, 16, v{SK+ch*2+h}")
            a(f"v_and_b32 v{W+ch*4+2*h+1}, 0xffff0000, v{SK+ch*2+h}")
    KF = 48
    for r in range(12):
        a(f"v_lshlrev_b32 v{KF+r}, 16, v{K+r}")
        a(f"v_and_b32 v{KF+12+r}, 0xffff0000, v{K+r}")
    U = 72
    for ch in range(2):
        for r in range(9):
            d = U + ch * 9 + r
            a(f"v_mul_f32 v{d}, v{KF+ch*12+r}, v{W+ch*4+3}")
            for j in range(1, 4):
                a(f"v_fmac_f32 v{d}, v{KF+ch*12+r+j}, v{W+ch*4+3-j}")
            if ch == 0: a(f"v_lshlrev_b32 v3, 16, v{V+r}")
            else: a(f"v_and_b32 v3, 0xffff0000, v{V+r}")
            a(f"v_mul_f32 v{d}, v{d}, v3")
    O = 92
    for ch in range(2):
        for cp in range(2):
            for i in range(4):
                top = 7 + cp - 2 * i
                a(f"v_cvt_pk_bf16_f32 v{O+(ch*2+cp)*4+i}, v{U+ch*9+top}, v{U+ch*9+top-1}")
    a("v_lshrrev_b32 v4, 1, v0")
    a("v_lshlrev_b32 v4, 15, v4")
    a("v_and_b32 v5, 1, v0")
    a("v_lshl_add_u32 v4, v5, 5, v4")
    a("s_sub_u32 s3, 255, s2")
    a("s_lshl_b32 s3, s3, 7")
    a(f"s_add_u32 s3, s3, {WS_U}")
    for ch in range(2):
        for cp in range(2):
            a(f"buffer_store_dwordx4 {v(O+(ch*2+cp)*4,4)}, v4, s[20:23], s3 offen offset:{cp*64+ch*16}")
    a.label(Lend)
    a("s_endpgm")

UB = 0; UCH = 9216; UCP = 4576
KB = 4 * UCH; KCH = 16640; KCP = [0, 4096 + 80, 8192 + 144, 12288 + 208]
LDS_CONV = KB + 4 * KCH
def gen_conv(a):
    E = Emit(a)
    Lend = a.newlabel("Lconv_end")
    a("s_cmp_ge_u32 s2, 144")
    a(f"s_cbranch_scc1 {Lend}")
    a("s_load_dwordx4 s[4:7], s[0:1], 32")
    a("s_load_dwordx2 s[30:31], s[0:1], 96")
    a("v_lshrrev_b32 v1, 6, v0")
    a("v_and_b32 v2, 63, v0")
    a("v_readfirstlane_b32 s32, v1")
    a("v_lshlrev_b32 v3, 4, v2")
    a("s_and_b32 s33, s32, 3")
    a("s_lshr_b32 s34, s32, 2")
    a("s_lshl_b32 s35, s2, 2")
    a("s_add_u32 s35, s35, s33")
    a("s_waitcnt lgkmcnt(0)")
    srd(a, 8, 4, XBYTES); srd(a, 12, 6, 576 * 2); srd(a, 20, 30, WS_END)
    a("v_lshlrev_b32 v4, 4, v0")
    a("s_lshl_b32 s36, s2, 15")
    a(f"s_add_u32 s36, s36, {WS_U}")
    UL = 16
    for it in range(4):
        E.one(dict(i=f"buffer_load_dwordx4 {v(UL+4*it,4)}, v4, s[20:23], s36 offen", vm=("u", it)))
        if it < 3: a("s_add_u32 s36, s36, 8192")
    a("s_lshl_b32 s37, s35, 1")
    a("v_mov_b32 v5, s37")
    E.one(dict(i="buffer_load_ushort v6, v5, s[12:15], 0 offen", vm="D"))
    a("s_lshl_b32 s38, s35, 12")
    a("s_lshl_b32 s39, s34, 3")
    a("s_add_u32 s38, s38, s39")
    a(f"s_mul_i32 s40, s33, {KCH}")
    a(f"s_add_u32 s40, s40, {KB}")
    for c in range(2):
        a(f"s_mul_i32 s41, s34, {KCP[2+c]-KCP[c]}")
        if KCP[c]: a(f"s_add_u32 s41, s41, {KCP[c]}")
        a("s_add_u32 m0, s40, s41")
        a("s_nop 0")
        for pc in range(4):
            E.one(dict(i=f"buffer_load_dwordx4 v3, s[8:11], s38 offen offset:{pc*1024} lds", vm="kf"))
        if c == 0: a("s_add_u32 s38, s38, 4")
    a("v_and_b32 v7, 3, v0")
    a(f"v_mul_u32_u24 v7, {UCH}, v7")
    a("v_bfe_u32 v8, v0, 2, 1")
    a(f"v_mul_u32_u24 v8, {UCP}, v8")
    a("v_add_u32 v7, v7, v8")
    a("v_lshrrev_b32 v8, 3, v0")
    a("v_lshl_add_u32 v7, v8, 4, v7")
    for k in range(4): a(f"v_mov_b32 v{12+k}, 0")
    a("v_cmp_gt_u32 vcc, 224, v0")
    a("s_and_saveexec_b64 s[42:43], vcc")
    E.one(dict(i=f"ds_write_b128 v7, v[12:15] offset:{UB+4096}", lds="z"))
    a("s_mov_b64 exec, s[42:43]")
    for it in range(4):
        E.one(dict(i=f"ds_write_b128 v7, {v(UL+4*it,4)} offset:{UB+it*1024}", lds="uw", needv=[("u", it)]))
    a("v_and_b32 v8, 15, v2")
    a("v_lshrrev_b32 v9, 4, v2")
    a("v_add_u32 v10, 1, v8")
    a("v_and_b32 v11, 3, v10")
    a("v_lshrrev_b32 v10, 2, v10")
    a("v_sub_u32 v10, v10, v9")
    a("v_lshlrev_b32 v10, 4, v10")
    a(f"v_mul_u32_u24 v12, {4096+64}, v11")
    a("v_add_u32 v10, v10, v12")
    a("v_cmp_ne_u32 vcc, 0, v11")
    a("v_add_u32 v12, 16, v10")
    a("s_lshl_b32 s41, s34, 8")
    a("v_cndmask_b32 v10, v10, v12, vcc")
    a("s_add_u32 s41, s41, s40")
    a("s_sub_u32 s41, s41, 16")
    vA, vB = 240, 241
    a(f"v_add_u32 v{vA}, s41, v10")
    a("v_and_b32 v10, 1, v8")
    a(f"v_mul_u32_u24 v10, {UCP}, v10")
    a("v_lshrrev_b32 v11, 1, v8")
    a("v_lshl_add_u32 v12, v11, 2, v9")
    a("v_sub_u32 v12, 31, v12")
    a("v_lshl_add_u32 v10, v12, 4, v10")
    a(f"s_mul_i32 s41, s33, {UCH}")
    a("s_lshl_b32 s44, s34, 8")
    a("s_add_u32 s41, s41, s44")
    a(f"v_add_u32 v{vB}, s41, v10")
    vZ = 242
    a("v_lshlrev_b32 v10, 6, v11")
    a("v_lshl_add_u32 v10, v9, 4, v10")
    a("v_and_b32 v12, 1, v8")
    a(f"v_lshl_add_u32 v{vZ}, v12, 3, v10")
    a("s_lshl_b32 s45, s35, 12")
    a(f"s_add_u32 s45, s45, {WS_Z}")
    vD0 = 243
    a("v_lshlrev_b32 v10, 2, v9")
    a("v_sub_u32 v10, v8, v10")
    a("s_lshl_b32 s41, s34, 6")
    a("s_sub_u32 s41, s41, 3")
    a(f"v_add_u32 v{vD0}, s41, v10")
    AD = 244
    a(E.vm.drain())
    for i in range(4):
        a(f"v_add_u32 v10, {i}, v{vD0}")
        a("v_cmp_eq_u32 vcc, 0, v10")
        a(f"v_max_i32 v11, 0, v10")
        a(f"v_lshl_add_u32 v{248+i}, v11, 2, s40")
        a(f"v_cndmask_b32 v{AD+i}, 0, v6, vcc")
    a(E.lg.drain())
    a("s_barrier")
    ACC = 0
    def FA(buf, i): return 32 + buf * 64 + i * 4
    def FB(buf, i): return 64 + buf * 64 + i * 4
    def reads(bl):
        o = []
        for i in range(8):
            o.append(dict(i=f"ds_read_b128 {v(FB(bl&1,i),4)}, v{vB} offset:{bl*64 + (7-i)*512}", lds=("B", bl, i)))
            if bl == 0 and i == 0:
                for k in range(4):
                    o.append(dict(i=f"ds_read_b32 v{FA(0,0)+k}, v{248+k}", lds=("A", 0, 0)))
            else:
                o.append(dict(i=f"ds_read_b128 {v(FA(bl&1,i),4)}, v{vA} offset:{bl*64 + i*512}", lds=("A", bl, i)))
        return o
    E.run(reads(0))
    for k in range(4):
        a(f"v_add_u32 v{248+k}, {k}, v{vD0}")
        a(f"v_cmp_le_i32 vcc, 0, v{248+k}")
        a("s_nop 1")
        E.one(dict(i=f"v_cndmask_b32 v{FA(0,0)+k}, 0, v{FA(0,0)+k}, vcc", needl=[("A", 0, 0)]))
    for n in range(8):
        E.one(dict(i=f"{M16} {v(ACC+4*n,4)}, {v(AD,4)}, {v(FB(0,n),4)}, 0", needl=[("B", 0, n)]))
    for bl in range(4):
        nxt = reads(bl + 1) if bl < 3 else []
        pairs = sorted([(aa, mu) for aa in range(8) for mu in range(8) if aa + mu <= 7], key=lambda x: (max(x), x[0] + x[1]))
        for idx, (aa, mu) in enumerate(pairs):
            n = aa + mu
            E.one(dict(i=f"{M16} {v(ACC+4*n,4)}, {v(FA(bl&1,aa),4)}, {v(FB(bl&1,mu),4)}, {v(ACC+4*n,4)}", needl=[("A", bl, aa), ("B", bl, mu)]))
            if idx >= 4 and idx % 2 == 0 and nxt:
                E.one(nxt.pop(0))
        E.run(nxt)
    a("s_barrier")
    a(f"s_lshl_b32 s41, s32, 12")
    a(f"s_add_u32 s41, s41, {KB}")
    a("v_and_b32 v250, 63, v0") if False else None
    a(f"v_mbcnt_lo_u32_b32 v250, -1, 0")
    a(f"v_mbcnt_hi_u32_b32 v250, -1, v250")
    a("v_lshlrev_b32 v250, 4, v250")
    a("v_add_u32 v251, s41, v250")
    a("s_xor_b32 s41, s32, 4")
    a("s_lshl_b32 s41, s41, 12")
    a(f"s_add_u32 s41, s41, {KB}")
    a("v_add_u32 v252, s41, v250")
    Lb1, Lj = a.newlabel("Lb1"), a.newlabel("Lj")
    a("s_cmp_lg_u32 s34, 0")
    a(f"s_cbranch_scc1 {Lb1}")
    for bh in range(2):
        if bh: a.label(Lb1)
        keep = range(4 * bh, 4 * bh + 4); send = range(4 - 4 * bh, 8 - 4 * bh)
        for i, n in enumerate(send):
            a(f"ds_write_b128 v251, {v(ACC+4*n,4)} offset:{i*1024}")
        a("s_waitcnt lgkmcnt(0)")
        a("s_barrier")
        for i in range(4):
            a(f"ds_read_b128 {v(32+4*i,4)}, v252 offset:{i*1024}")
        for i, n in enumerate(keep):
            a(f"s_waitcnt lgkmcnt({3-i})")
            for r in range(4): a(f"v_add_f32 v{ACC+4*n+r}, v{ACC+4*n+r}, v{32+4*i+r}")
            a(f"v_cvt_pk_bf16_f32 v{48+2*i}, v{ACC+4*n}, v{ACC+4*n+1}")
            a(f"v_cvt_pk_bf16_f32 v{49+2*i}, v{ACC+4*n+2}, v{ACC+4*n+3}")
            a(f"buffer_store_dwordx2 {v(48+2*i,2)}, v{vZ}, s[20:23], s45 offen offset:{n*512}")
        if bh == 0: a(f"s_branch {Lend}")
    a.label(Lend)
    a("s_endpgm")

LDS_COMB = 8192
def gen_comb(a, nsl=16):
    Lend = a.newlabel("Lcomb_end")
    a("s_cmp_ge_u32 s2, 288")
    a(f"s_cbranch_scc1 {Lend}")
    a("s_load_dwordx2 s[4:5], s[0:1], 0")
    a("s_load_dwordx2 s[6:7], s[0:1], 80")
    a("s_load_dwordx2 s[30:31], s[0:1], 96")
    a("s_and_b32 s32, s2, 31")
    a("s_lshr_b32 s33, s2, 5")
    a("v_lshrrev_b32 v1, 6, v0")
    a("v_and_b32 v2, 7, v0")
    a("v_bfe_u32 v3, v0, 3, 3")
    a("v_lshl_add_u32 v4, v1, 3, v2")
    a("v_lshrrev_b32 v5, 5, v4")
    a("v_mul_u32_u24 v5, 36864, v5")
    a("v_lshl_add_u32 v5, v3, 9, v5")
    a("v_and_b32 v6, 31, v4")
    a("v_lshl_add_u32 v5, v6, 4, v5")
    a("s_mul_i32 s34, s32, 73728")
    a("s_lshl_b32 s35, s33, 12")
    a("s_add_u32 s34, s34, s35")
    a("s_lshl_b32 s35, s32, 6")
    a("v_add_u32 v6, s35, v4")
    a("v_mul_u32_u24 v7, 1152, v6")
    a("v_lshl_add_u32 v7, v3, 4, v7")
    a("s_lshl_b32 s36, s33, 7")
    a("v_lshlrev_b32 v8, 3, v6")
    a("v_lshrrev_b32 v9, 3, v0")
    a("v_lshlrev_b32 v10, 12, v9")
    a("v_lshl_add_u32 v10, v2, 4, v10")
    a("s_lshl_b32 s37, s33, 18")
    a("s_lshl_b32 s38, s32, 7")
    a("s_add_u32 s37, s37, s38")
    a(f"s_add_u32 s37, s37, {WS_Z}")
    a(f"s_mov_b32 s38, {WS_STATS}")
    a("s_waitcnt lgkmcnt(0)")
    srd(a, 8, 4, XBYTES); srd(a, 12, 6, XBYTES); srd(a, 20, 30, WS_END)
    a("buffer_load_dwordx4 v[12:15], v10, s[20:23], s37 offen")
    a("buffer_load_dwordx4 v[16:19], v7, s[8:11], s36 offen")
    a("buffer_load_dwordx2 v[20:21], v8, s[20:23], s38 offen")
    P = 48
    for sl in range(nsl):
        a(f"buffer_load_dwordx4 {v(P+4*sl,4)}, v5, s[20:23], s34 offen")
        if sl < nsl - 1: a(f"s_add_u32 s34, s34, {SLICE}")
    a("v_xor_b32 v11, v2, v1")
    a("v_lshlrev_b32 v11, 4, v11")
    a("v_lshl_add_u32 v11, v9, 7, v11")
    a("v_xor_b32 v22, v1, v3")
    a("v_lshlrev_b32 v22, 4, v22")
    a("v_lshl_add_u32 v22, v3, 10, v22")
    a("v_and_b32 v23, 1, v2")
    a("v_lshl_add_u32 v22, v23, 3, v22")
    a("v_and_b32 v23, 6, v2")
    a("v_add_u32 v22, v22, v23")
    Z, AC = 24, 32
    for j in range(8):
        a(f"v_mov_b32 v{Z+j}, 0"); a(f"v_mov_b32 v{AC+j}, 0")
    a("s_mov_b32 s40, 0x00003f80")
    a("s_mov_b32 s41, 0x3f800000")
    a(f"s_waitcnt vmcnt({nsl+2})")
    a("ds_write_b128 v11, v[12:15]")
    a("s_waitcnt lgkmcnt(0)")
    a("s_barrier")
    for j in range(8):
        a(f"ds_read_u16_d16_hi v{Z+j}, v22 offset:{j*128}")
    a(f"s_waitcnt vmcnt({nsl})")
    X = 40
    for k in range(4):
        a(f"v_lshlrev_b32 v{X+2*k}, 16, v{16+k}")
        a(f"v_and_b32 v{X+2*k+1}, 0xffff0000, v{16+k}")
    a("s_waitcnt lgkmcnt(0)")
    for j in range(8):
        a(f"v_sub_f32 v12, v{X+j}, v20")
        a(f"v_mul_f32 v12, v12, v21")
        a(f"v_fmac_f32 v{X+j}, v12, v{Z+j}")
    for sl in range(nsl):
        a(f"s_waitcnt vmcnt({nsl-1-sl})")
        for k in range(4):
            a(f"v_dot2c_f32_bf16 v{AC+2*k}, s40, v{P+4*sl+k}")
            a(f"v_dot2c_f32_bf16 v{AC+2*k+1}, s41, v{P+4*sl+k}")
    a(f"s_mov_b32 s42, {f32(LN2)}")
    a("s_nop 1")
    for j in range(8): a(f"v_fmac_f32 v{X+j}, s42, v{AC+j}")
    for k in range(4): a(f"v_cvt_pk_bf16_f32 v{12+k}, v{X+2*k}, v{X+2*k+1}")
    a("buffer_store_dwordx4 v[12:15], v7, s[12:15], s36 offen")
    a.label(Lend)
    a("s_endpgm")
```

```python
from common import *

RING = 0
ACT = 73728
BIAS = 147456
LDS_MLP = 147456 + 1280

def XF(mt16, ks): return mt16 * 72 + ks * 4
def AFR(mu, kap): return mu * 36 + kap * 4
ACC = 144; PEND = 160; FR = 176; BI = 200; AO = 208; TM = 216
RA = [228, 229, 230, 231]
vW1, vW2, vW2x, vACTW, vBIAS, vST, vRB, vL16 = 232, 233, 234, 235, 236, 237, 238, 239
T0 = 240
sX, sW1, sW2, sWS, sB1 = 8, 12, 16, 20, 24
sMT, sSL, sW, sMG, sPH, sFB, sFS, sHL, sODD = 28, 29, 30, 31, 32, 33, 34, 35, 36
sT = 46
sM0W = 60
sOFF = 61
sONES = 62
sW2A, sW2B = 63, 64
sST = 65
sOFF2 = 66

M16 = "v_mfma_f32_16x16x32_bf16"

class Emit:
    def __init__(self, a):
        self.a = a
        self.lg = Track(a, "lgkmcnt", 15)
        self.vm = Track(a, "vmcnt", 63)
    def run(self, items):
        for it in items:
            self.one(it)
    def one(self, it):
        if isinstance(it, str):
            self.a(it); return
        ws = []
        if it.get("needl"):
            w = self.lg.need(*it["needl"])
            if w: ws.append(w)
        if it.get("needv"):
            w = self.vm.need(*it["needv"])
            if w: ws.append(w)
        if len(ws) == 2:
            self.a("s_waitcnt " + ws[1].split()[1] + " " + ws[0].split()[1])
        elif ws: self.a(ws[0])
        if it.get("i"):
            if "lds" in it and len(self.lg.q) >= 15:
                n = 14
                self.lg.q = self.lg.q[-n:]
                self.a(f"s_waitcnt lgkmcnt({n})")
            self.a(it["i"])
        if "lds" in it: self.lg.issue(it["lds"])
        if "vm" in it: self.vm.issue(it["vm"])

def mish_group(src, dst, tm):
    e = [tm + k for k in range(4)]; q = [tm + 4 + k for k in range(4)]
    o = []
    for k in range(4): o.append(f"v_exp_f32 v{e[k]}, v{src+k}")
    for k in range(4): o.append(f"v_fma_f32 v{q[k]}, v{e[k]}, 0.5, 1.0")
    for k in range(4): o.append(f"v_fma_f32 v{q[k]}, v{e[k]}, v{q[k]}, 1.0")
    for k in range(4): o.append(f"v_rcp_f32 v{q[k]}, v{q[k]}")
    for k in range(4): o.append(f"v_fma_f32 v{e[k]}, -v{src+k}, v{q[k]}, v{src+k}")
    o.append(f"v_cvt_pk_bf16_f32 v{dst}, v{e[0]}, v{e[1]}")
    o.append(f"v_cvt_pk_bf16_f32 v{dst+1}, v{e[2]}, v{e[3]}")
    return o

def gen_mlp(a, opt=None):
    opt = opt or {}
    E = Emit(a)
    Lend = a.newlabel("Lmlp_end")
    a(f"s_cmp_ge_u32 s2, 256")
    a(f"s_cbranch_scc1 {Lend}")
    a("s_load_dwordx2 s[4:5], s[0:1], 0")
    a("s_load_dwordx4 s[40:43], s[0:1], 56")
    a("s_load_dwordx2 s[44:45], s[0:1], 72")
    a("s_load_dwordx2 s[6:7], s[0:1], 96")
    a(f"s_and_b32 s{sT}, s2, 3")
    a(f"s_lshl_b32 s{sT}, s{sT}, 2")
    a(f"s_bfe_u32 s{sT+1}, s2, 0x20003")
    a(f"s_add_u32 s{sSL}, s{sT}, s{sT+1}")
    a(f"s_bfe_u32 s{sT}, s2, 0x10002")
    a(f"s_lshl_b32 s{sT}, s{sT}, 3")
    a(f"s_lshr_b32 s{sT+1}, s2, 5")
    a(f"s_add_u32 s{sMT}, s{sT}, s{sT+1}")
    a(f"v_lshrrev_b32 v{T0}, 6, v0")
    a(f"v_and_b32 v{T0+1}, 63, v0")
    a(f"v_readfirstlane_b32 s{sW}, v{T0}")
    a(f"s_and_b32 s{sODD}, s{sSL}, 1")
    a(f"s_mul_i32 s{sT}, s{sSL}, 288")
    a(f"s_lshl_b32 s{sT+1}, s{sODD}, 5")
    a(f"s_add_u32 s{sFB}, s{sT}, s{sT+1}")
    a(f"s_xor_b32 s{sT+2}, s{sODD}, 1")
    a(f"s_lshl_b32 s{sT+2}, s{sT+2}, 8")
    a(f"s_add_u32 s{sFS}, s{sT}, s{sT+2}")
    a(f"s_sub_u32 s{sHL}, s{sFS}, s{sT+1}")
    a(f"s_and_b32 s{sMG}, s{sW}, 3")
    a(f"s_lshr_b32 s{sPH}, s{sW}, 2")
    a(f"s_lshl_b32 s{sM0W}, s{sW}, 10")
    a(f"s_mov_b32 s{sONES}, 0x3f803f80")
    lane = T0 + 1
    r8, u8 = T0 + 2, T0 + 3
    a(f"v_lshrrev_b32 v{r8}, 3, v{lane}")
    a(f"v_and_b32 v{u8}, 7, v{lane}")
    a(f"v_lshlrev_b32 v{vL16}, 4, v{lane}")
    a(f"s_lshl_b32 s{sT}, s{sMT}, 7")
    a(f"s_lshl_b32 s{sT+1}, s{sMG}, 5")
    a(f"s_add_u32 s{sT}, s{sT}, s{sT+1}")
    a(f"s_lshl_b32 s{sT+1}, s{sPH}, 3")
    a(f"s_add_u32 s{sT}, s{sT}, s{sT+1}")
    vROW, vXO = T0 + 4, T0 + 5
    a(f"v_add_u32 v{vROW}, s{sT}, v{r8}")
    a(f"v_mul_u32_u24 v{vXO}, 1152, v{vROW}")
    a(f"v_lshl_add_u32 v{vXO}, v{u8}, 4, v{vXO}")
    a(f"s_movk_i32 s{sT+2}, 18432")
    a("s_waitcnt lgkmcnt(0)")
    srd(a, sX, 4, XBYTES)
    RAW = [144, 180]
    for rho in range(2):
        for j in range(9):
            so = "0" if rho == 0 else f"s{sT+2}"
            E.one(dict(i=f"buffer_load_dwordx4 {v(RAW[rho]+4*j,4)}, v{vXO}, {s(sX,4)}, {so} offen offset:{128*j}", vm=("x", rho, j)))
    srd(a, sW1, 40, WBYTES)
    srd(a, sB1, 42, F * 2)
    srd(a, sW2, 44, WBYTES)
    srd(a, sWS, 6, WS_END)
    vBE, vBV = T0 + 6, T0 + 7
    a(f"v_subrev_u32 v{vBE}, 256, v0")
    a(f"v_lshrrev_b32 v{vBV}, 5, v{vBE}")
    a(f"v_and_b32 v{vBE}, 15, v{vBE}")
    a(f"v_lshl_add_u32 v{vBE}, v{vBV}, 4, v{vBE}")
    a(f"v_add_u32 v{vBE}, s{sFS}, v{vBE}")
    a(f"v_add_u32 v{vBV}, s{sFB}, v0")
    a(f"v_cmp_gt_u32 vcc, 256, v0")
    a(f"s_nop 1")
    a(f"v_cndmask_b32 v{vBE}, v{vBE}, v{vBV}, vcc")
    a(f"v_lshlrev_b32 v{vBE}, 1, v{vBE}")
    E.one(dict(i=f"buffer_load_ushort v{vBV}, v{vBE}, {s(sB1,4)}, 0 offen", vm="bias"))
    t1, t2 = T0 + 8, T0 + 9
    a(f"s_lshl_b32 s{sT}, s{sW}, 3")
    a(f"v_add_u32 v{t1}, s{sT}, v{r8}")
    a(f"v_mul_u32_u24 v{vW1}, 9216, v{t1}")
    a(f"v_bfe_u32 v{t1}, v{r8}, 1, 1")
    a(f"s_and_b32 s{sT}, s{sW}, 1")
    a(f"s_lshl_b32 s{sT}, s{sT}, 1")
    a(f"v_or_b32 v{t1}, s{sT}, v{t1}")
    a(f"v_lshlrev_b32 v{t1}, 1, v{t1}")
    a(f"v_xor_b32 v{t1}, v{t1}, v{u8}")
    a(f"v_lshl_add_u32 v{vW1}, v{t1}, 4, v{vW1}")
    def w1_dma(pair, t):
        o = []
        for i in range(3):
            gam = 3 * t + i
            base = sHL if pair == 4 else sFB
            add = gam * 64 * 9216 + (0 if pair == 4 else pair * 128)
            o.append(f"s_lshl_b32 s{sOFF}, s{base}, 1")
            o.append(f"s_add_u32 s{sOFF}, s{sOFF}, {add}")
            o.append(f"s_add_u32 m0, s{sM0W}, {RING + gam * 8192}")
            o.append("s_nop 0")
            o.append(dict(i=f"buffer_load_dwordx4 v{vW1}, {s(sW1,4)}, s{sOFF} offen lds", vm=("w1", pair, t)))
        return o
    for t in range(3): E.run(w1_dma(0, t))
    a(f"s_lshl_b32 s{sT}, s{sW}, 3")
    a(f"v_add_u32 v{t1}, s{sT}, v{r8}")
    a(f"v_mul_u32_u24 v{vW2}, 1152, v{t1}")
    a(f"v_and_b32 v{t1}, 6, v{r8}")
    a(f"v_xor_b32 v{t1}, v{t1}, v{u8}")
    a(f"v_lshl_add_u32 v{vW2}, v{t1}, 4, v{vW2}")
    a(f"s_lshl_b32 s{sT}, s{sW}, 2")
    a(f"v_add_u32 v{t1}, s{sT}, v{r8}")
    a(f"v_mul_u32_u24 v{vW2x}, 1152, v{t1}")
    a(f"v_and_b32 v{t1}, 6, v{t1}")
    a(f"v_xor_b32 v{t1}, v{t1}, v{u8}")
    a(f"v_lshl_add_u32 v{vW2x}, v{t1}, 4, v{vW2x}")
    a(f"s_mul_i32 s{sW2A}, s{sFB}, 1152")
    a(f"s_mul_i32 s{sW2B}, s{sFS}, 1152")
    g4, rp, c4 = T0 + 10, T0 + 11, T0 + 12
    a(f"v_lshrrev_b32 v{g4}, 4, v{lane}")
    a(f"v_bfe_u32 v{rp}, v{lane}, 2, 2")
    a(f"v_and_b32 v{c4}, 3, v{lane}")
    a(f"v_lshrrev_b32 v{t1}, 1, v{rp}")
    a(f"v_and_b32 v{t2}, 1, v{g4}")
    a(f"v_lshl_or_b32 v{t1}, v{t2}, 1, v{t1}")
    fsw = T0 + 13
    a(f"v_mov_b32 v{fsw}, v{t1}")
    a(f"s_lshl_b32 s{sT}, s{sPH}, 1")
    a(f"v_xor_b32 v{t1}, s{sT}, v{t1}")
    a(f"v_lshlrev_b32 v{t1}, 5, v{t1}")
    a(f"v_lshl_add_u32 v{t1}, v{g4}, 10, v{t1}")
    a(f"v_lshl_add_u32 v{t1}, v{rp}, 7, v{t1}")
    a(f"v_lshl_add_u32 v{RA[0]}, v{c4}, 3, v{t1}")
    if RING: a(f"v_add_u32 v{RA[0]}, {RING}, v{RA[0]}")
    a(f"v_xor_b32 v{RA[1]}, 32, v{RA[0]}")
    a(f"v_add_u32 v{RA[2]}, 0x8000, v{RA[0]}")
    a(f"v_add_u32 v{RA[3]}, 0x8000, v{RA[1]}")
    a(f"s_lshr_b32 s{sT}, s{sW}, 1")
    a(f"v_xor_b32 v{t1}, s{sT}, v{fsw}")
    a(f"v_lshlrev_b32 v{t1}, 5, v{t1}")
    a(f"v_lshl_add_u32 v{t1}, v{g4}, 9, v{t1}")
    a(f"v_lshl_add_u32 v{t1}, v{rp}, 7, v{t1}")
    a(f"v_lshl_add_u32 v{vRB}, v{c4}, 3, v{t1}")
    a(f"s_lshl_b32 s{sT}, s{sPH}, 7")
    a(f"s_add_u32 s{sT}, s{sT}, {BIAS}")
    a(f"v_lshl_add_u32 v{vBIAS}, v{g4}, 4, s{sT}")
    a(f"s_mul_i32 s{sT}, s{sMG}, 18432")
    a(f"s_lshl_b32 s{sT+1}, s{sPH}, 10")
    a(f"s_add_u32 s{sT}, s{sT}, s{sT+1}")
    a(f"s_add_u32 s{sT}, s{sT}, {ACT}")
    a(f"v_add_u32 v{vACTW}, s{sT}, v{vL16}")
    vXW = T0 + 14
    a(f"s_lshl_b32 s{sT}, s{sPH}, 3")
    a(f"v_add_u32 v{t1}, s{sT}, v{r8}")
    a(f"v_xor_b32 v{t1}, v{t1}, v{u8}")
    a(f"v_lshlrev_b32 v{t1}, 4, v{t1}")
    a(f"v_lshl_add_u32 v{t1}, v{u8}, 8, v{t1}")
    a(f"s_mul_i32 s{sT}, s{sMG}, 18432")
    a(f"s_add_u32 s{sT}, s{sT}, {ACT}")
    a(f"v_add_u32 v{vXW}, s{sT}, v{t1}")
    vXR0, vXR1 = T0 + 15, T0 + 8
    a(f"v_and_b32 v{t2}, 15, v{lane}")
    a(f"v_xor_b32 v{t2}, v{t2}, v{g4}")
    a(f"v_lshlrev_b32 v{t2}, 4, v{t2}")
    a(f"v_lshl_add_u32 v{t2}, v{g4}, 8, v{t2}")
    a(f"v_add_u32 v{vXR0}, s{sT}, v{t2}")
    a(f"v_xor_b32 v{vXR1}, 64, v{vXR0}")
    a(f"s_mul_i32 s{sST}, s{sSL}, {SLICE}")
    a(f"s_lshl_b32 s{sT}, s{sMT}, 2")
    a(f"s_and_b32 s{sT+1}, s{sW}, 1")
    a(f"s_lshl_b32 s{sT+1}, s{sT+1}, 1")
    a(f"s_add_u32 s{sT}, s{sT}, s{sT+1}")
    a(f"s_mul_i32 s{sT}, s{sT}, 36864")
    a(f"s_add_u32 s{sST}, s{sST}, s{sT}")
    a(f"s_lshr_b32 s{sT}, s{sW}, 1")
    a(f"s_lshl_b32 s{sT}, s{sT}, 10")
    a(f"s_add_u32 s{sST}, s{sST}, s{sT}")
    a(f"v_add_u32 v{vST}, s{sST}, v{vL16}")

    def ln_round(rho):
        o = []
        R = RAW[rho]
        s0, s1, q0, q1 = TM, TM + 1, TM + 2, TM + 3
        o += [f"v_mov_b32 v{s0}, 0", f"v_mov_b32 v{s1}, 0", f"v_mov_b32 v{q0}, 0", f"v_mov_b32 v{q1}, 0"]
        for j in range(9):
            for k in range(4):
                r = R + 4 * j + k
                o.append(dict(i=f"v_dot2c_f32_bf16 v{(s0, s1)[k & 1]}, s{sONES}, v{r}", needv=[("x", rho, j)]))
                o.append(f"v_dot2c_f32_bf16 v{(q0, q1)[k & 1]}, v{r}, v{r}")
        o += ["s_nop 2", f"v_add_f32 v{s0}, v{s0}, v{s1}", f"v_add_f32 v{q0}, v{q0}, v{q1}", "s_nop 0"]
        for dpp in ("quad_perm:[1,0,3,2]", "quad_perm:[2,3,0,1]", "row_half_mirror"):
            o += [f"v_add_f32_dpp v{s1}, v{s0}, v{s0} {dpp} row_mask:0xf bank_mask:0xf",
                  f"v_add_f32_dpp v{q1}, v{q0}, v{q0} {dpp} row_mask:0xf bank_mask:0xf", "s_nop 0"]
            s0, s1, q0, q1 = s1, s0, q1, q0
        mean, var, mb, rs = TM + 4, TM + 5, TM + 6, TM + 7
        o += [f"v_mul_f32 v{mean}, {f32(1.0/576)}, v{s0}",
              f"v_mul_f32 v{var}, {f32(1.0/576)}, v{q0}",
              f"v_fma_f32 v{var}, -v{mean}, v{mean}, v{var}",
              f"v_max_f32 v{var}, 0, v{var}",
              f"v_cvt_pk_bf16_f32 v{mb}, v{mean}, v{var}",
              f"v_and_b32 v{var}, 0xffff0000, v{mb}",
              f"v_lshlrev_b32 v{mb}, 16, v{mb}",
              f"v_add_f32 v{var}, {f32(1e-5)}, v{var}",
              f"v_cvt_pk_bf16_f32 v{var}, v{var}, v{var}",
              f"v_lshlrev_b32 v{var}, 16, v{var}",
              f"v_sqrt_f32 v{var}, v{var}",
              "s_nop 0",
              f"v_cvt_pk_bf16_f32 v{var}, v{var}, v{var}",
              f"v_lshlrev_b32 v{var}, 16, v{var}",
              f"v_rcp_f32 v{rs}, v{var}",
              "s_nop 0"]
        A, C = TM + 8, TM + 10
        o += [f"v_mul_f32 v{A}, {f32(LOG2E)}, v{rs}",
              f"v_mul_f32 v{C}, v{mb}, v{A}"]
        Ls = a.newlabel("Lst")
        o += [f"s_cmp_lg_u32 s{sSL}, 0", f"s_cbranch_scc1 {Ls}",
              f"v_cmp_eq_u32 vcc, 0, v{u8}",
              f"v_lshlrev_b32 v{mean}, 3, v{vROW}",
              f"v_add_u32 v{mean}, {WS_STATS + rho * 128}, v{mean}",
              f"s_and_saveexec_b64 s[{sT+4}:{sT+5}], vcc",
              f"buffer_store_dwordx2 {v(mb,2)}, v{mean}, {s(sWS,4)}, 0 offen",
              f"s_mov_b64 exec, s[{sT+4}:{sT+5}]",
              f"{Ls}:"]
        tp = [T0 + 10, T0 + 12]
        for n in range(36):
            r = R + n; t = tp[n & 1]
            o += [f"v_lshlrev_b32 v{t}, 16, v{r}", f"v_and_b32 v{t+1}, 0xffff0000, v{r}",
                  f"v_pk_fma_f32 {v(t,2)}, {v(t,2)}, {v(A,2)}, {v(C,2)} op_sel_hi:[1,0,0] neg_lo:[0,0,1] neg_hi:[0,0,1]",
                  f"v_cvt_pk_bf16_f32 v{r}, v{t}, v{t+1}"]
        return o
    def xn_write(rho):
        return [dict(i=f"ds_write_b128 v{vXW}, {v(RAW[rho]+4*j,4)} offset:{j*2048}", lds="xw") for j in range(9)]
    def xn_read(rho):
        return [dict(i=f"ds_read_b128 {v(XF(rho,ks),4)}, v{(vXR0, vXR1)[ks & 1]} offset:{ks*1024}", lds=("xf", rho)) for ks in range(18)]
    E.run(ln_round(0))
    E.run(xn_write(0))
    a(f"v_lshlrev_b32 v{vBE}, 2, v0")
    E.one(dict(i=f"v_lshlrev_b32 v{vBV}, 16, v{vBV}", needv=["bias"]))
    a(f"v_mul_f32 v{vBV}, {f32(LOG2E)}, v{vBV}")
    a(f"v_cmp_gt_u32 vcc, 320, v0")
    a(f"s_and_saveexec_b64 s[{sT+4}:{sT+5}], vcc")
    E.one(dict(i=f"ds_write_b32 v{vBE}, v{vBV} offset:0", lds="bw") if False else f"v_add_u32 v{vBE}, {BIAS}, v{vBE}")
    E.one(dict(i=f"ds_write_b32 v{vBE}, v{vBV}", lds="bw"))
    a(f"s_mov_b64 exec, s[{sT+4}:{sT+5}]")
    a(E.lg.drain()); a("s_barrier")
    E.run(xn_read(0))
    E.run(ln_round(1))
    a(E.lg.drain()); a("s_barrier")
    E.run(xn_write(1))
    a(E.lg.drain())
    w = E.vm.need(("w1", 0, 0))
    if w: a(w)
    a("s_barrier")
    E.run(xn_read(1))

    def frag(ks_global, aa): return FR + ((ks_global % 3) * 2 + aa) * 4
    def a_reads(pair, ks):
        o = []
        for aa in range(2 if pair < 4 else 1):
            f = frag(ks, aa)
            hi = ks >= 8
            off = ks * 4096 - (0x8000 if hi else 0)
            for nu in range(2):
                o.append(dict(i=f"ds_read_b64_tr_b16 {v(f+2*nu,2)}, v{RA[aa + 2*hi]} offset:{off + nu*512}", lds=("A", pair, ks, aa)))
        return o
    def bias_reads(pair):
        return [dict(i=f"ds_read_b128 {v(BI+4*aa,4)}, v{vBIAS} offset:{pair*256 + aa*64}", lds=("B", pair)) for aa in range(2 if pair < 4 else 1)]
    def mish_pair(pair):
        o = []
        for mt16 in range(2):
            for aa in range(2):
                o += mish_group(PEND + (aa * 2 + mt16) * 4, AO + mt16 * 4 + aa * 2, TM)
            o.append(dict(i=f"ds_write_b128 v{vACTW}, {v(AO+mt16*4,4)} offset:{mt16*9216 + pair*2048}", lds="aw"))
        return o
    def w2_dma(st):
        slot = (st % 4) * 36864
        o = []
        for n in range(4):
            o.append(f"s_add_u32 s{sOFF}, s{sW2A}, {n * 64 * 1152 + st * 128}")
            o.append(f"s_add_u32 m0, s{sM0W}, {slot + n * 8192}")
            o.append("s_nop 0")
            o.append(dict(i=f"buffer_load_dwordx4 v{vW2}, {s(sW2,4)}, s{sOFF} offen lds", vm=("w2", st)))
        o.append(f"s_add_u32 s{sOFF}, s{sW2B}, {st * 128}")
        o.append(f"s_lshr_b32 s{sT}, s{sM0W}, 1")
        o.append(f"s_add_u32 m0, s{sT}, {slot + 32768}")
        o.append("s_mov_b32 exec_hi, 0")
        o.append(dict(i=f"buffer_load_dwordx4 v{vW2x}, {s(sW2,4)}, s{sOFF} offen lds", vm=("w2", st)))
        o.append("s_mov_b32 exec_hi, -1")
        return o

    E.run(bias_reads(0))
    E.run(a_reads(0, 0)); E.run(a_reads(0, 1))
    for pair in range(5):
        na = 2 if pair < 4 else 1
        side = mish_pair(pair - 1) if pair > 0 else []
        nslots = 16 * 2 * na
        sidx = 0; slot = 0
        pend_dma = []
        for ks in range(18):
            if ks + 2 < 18: nxt = a_reads(pair, ks + 2)
            elif pair < 4: nxt = a_reads(pair + 1, ks + 2 - 18)
            else: nxt = []
            boundary = (ks % 6 == 4)
            t = ks // 6
            mf = []
            for aa in range(na):
                for mt16 in range(2):
                    acc = ACC + (aa * 2 + mt16) * 4
                    src = v(BI + 4 * aa, 4) if ks == 0 else v(acc, 4)
                    dst = PEND + (aa * 2 + mt16) * 4 if (ks == 17 and pair < 4) else acc
                    nl = [("A", pair, ks, aa)]
                    if ks == 0: nl.append(("B", pair))
                    if pair == 0: nl.append(("xf", mt16))
                    mf.append(dict(i=f"{M16} {v(dst,4)}, {v(frag(ks,aa),4)}, {v(XF(mt16,ks),4)}, {src}", needl=nl))
            if pair == 3 and ks == 15:
                E.run([f"s_lshl_b32 s{sT}, s{sODD}, 1", f"s_add_u32 s{sT}, s{sT}, s{sPH}", f"s_lshl_b32 s{sT+1}, s{sPH}, 1",
                       f"s_xor_b32 s{sT}, s{sT}, s{sT+1}", f"s_lshl_b32 s{sT+3}, s{sT}, 5",
                       f"v_xor_b32 v{RA[0]}, s{sT+3}, v{RA[0]}"])
            if pair == 4 and ks == 0:
                E.run([f"v_xor_b32 v{RA[2]}, s{sT+3}, v{RA[2]}"])
            nm = len(mf)
            for mi, m in enumerate(mf):
                E.one(m)
                if boundary and mi == nm // 2 - 1:
                    last = [("A", pair, 6 * t + 5, aa) for aa in range(na)]
                    nst = ("w1", pair, t + 1) if t < 2 else ("w1", pair + 1, 0)
                    if not (pair == 4 and t == 2):
                        E.one(dict(needl=last, needv=[nst]))
                        a("s_barrier")
                        if pair < 4: pend_dma = w1_dma(pair + 1, t)
                        elif t == 1: pend_dma = w2_dma(0)
                if boundary:
                    if mi >= nm // 2 - 1:
                        k = mi - (nm // 2 - 1)
                        per = (len(nxt) + (nm - nm // 2)) // (nm - nm // 2 + 1) if nxt else 0
                        E.run(nxt[k * per:(k + 1) * per] if mi < nm - 1 else nxt[k * per:])
                else:
                    per = (len(nxt) + nm - 1) // nm
                    E.run(nxt[mi * per:(mi + 1) * per])
                if 1 <= ks <= 16:
                    slot += 1
                    want = slot * len(side) // nslots
                    E.run(side[sidx:want]); sidx = want
                if pend_dma:
                    n = 0
                    while n < len(pend_dma) and isinstance(pend_dma[n], str): n += 1
                    n += 1
                    if n < len(pend_dma) and isinstance(pend_dma[n], str) and "exec_hi, -1" in pend_dma[n]: n += 1
                    E.run(pend_dma[:n]); pend_dma = pend_dma[n:]
            if ks == 8 and pair < 4: E.run(bias_reads(pair + 1))
        E.run(pend_dma)
        assert sidx == len(side)
    a("s_nop 7")
    a(f"s_mul_i32 s{sT}, s{sPH}, {1024 - 8}")
    a(f"v_subrev_u32 v{vACTW}, s{sT}, v{vACTW}")
    for mt16 in range(2):
        E.run(mish_group(ACC + mt16 * 4, AO + mt16 * 2, TM))
        E.one(dict(i=f"ds_write_b64 v{vACTW}, {v(AO+mt16*2,2)} offset:{mt16*9216 + 8*1024}", lds="aw"))
    a(E.lg.drain())
    w = E.vm.need(("w2", 0))
    if w: a(w)
    a("s_barrier")
    E.run(w2_dma(1))
    vAR = T0
    a(f"s_and_b32 s{sT}, s{sW}, 1")
    a(f"s_mul_i32 s{sT}, s{sT}, 36864")
    a(f"s_add_u32 s{sT}, s{sT}, {ACT}")
    a(f"v_add_u32 v{vAR}, s{sT}, v{vL16}")
    vRBs = [vRB, T0 + 1, T0 + 2, T0 + 3]
    for k in range(1, 4): a(f"v_add_u32 v{vRBs[k]}, {k*36864}, v{vRB}")
    def frag2(kap): return FR + (kap % 3) * 4
    def b_reads(st, kap):
        f = frag2(kap)
        return [dict(i=f"ds_read_b64_tr_b16 {v(f+2*nu,2)}, v{vRBs[st % 4]} offset:{kap*4096 + nu*2048}", lds=("W", st, kap)) for nu in range(2)]
    def act_reads(kap):
        return [dict(i=f"ds_read_b128 {v(AFR(mu,kap),4)}, v{vAR} offset:{mu*9216 + kap*1024}", lds=("act", kap)) for mu in range(4)]
    def epilogue(st):
        o = []
        for pr in range(2):
            p = AO + pr * 4
            for mu in range(2):
                src = PEND + (pr * 2 + mu) * 4
                o.append(f"v_cvt_pk_bf16_f32 v{p+2*mu}, v{src}, v{src+1}")
                o.append(f"v_cvt_pk_bf16_f32 v{p+2*mu+1}, v{src+2}, v{src+3}")
        o2 = []
        for pr in range(2):
            p = AO + pr * 4
            o2.append(f"v_permlane16_swap_b32 v{p}, v{p+2}")
            o2.append(f"v_permlane16_swap_b32 v{p+1}, v{p+3}")
        o3 = []
        for pr in range(2):
            p = AO + pr * 4
            o3.append(f"s_mov_b32 s{sOFF2}, {pr * 36864 + st * 4096}")
            o3.append(dict(i=f"buffer_store_dwordx4 {v(p,4)}, v{vST}, {s(sWS,4)}, s{sOFF2} offen {opt.get('stmod','sc1')}", vm=("st", st)))
        return o + ["s_nop 1"] + o2 + o3
    E.run(b_reads(0, 0)); E.run(act_reads(0)); E.run(b_reads(0, 1)); E.run(act_reads(1))
    for st in range(9):
        side = epilogue(st - 1) if st > 0 else []
        sidx = 0; slot = 0; nslots = 20
        pend_dma = []
        for kap in range(9):
            if kap + 2 < 9: nxt = b_reads(st, kap + 2) + (act_reads(kap + 2) if st == 0 else [])
            elif st < 8: nxt = b_reads(st + 1, kap + 2 - 9)
            else: nxt = []
            boundary = (kap == 7 and st < 8)
            for mu in range(4):
                acc = ACC + mu * 4
                src = "0" if kap == 0 else v(acc, 4)
                dst = PEND + mu * 4 if kap == 8 else acc
                nl = [("W", st, kap)] + ([("act", kap)] if st == 0 else [])
                E.one(dict(i=f"{M16} {v(dst,4)}, {v(frag2(kap),4)}, {v(AFR(mu,kap),4)}, {src}", needl=nl))
                if boundary:
                    if mu == 1:
                        E.one(dict(needl=[("W", st, 8), ("act", 8)], needv=[("w2", st + 1)]))
                        a("s_barrier")
                        if st == 0: pend_dma = w2_dma(2) + w2_dma(3) + w2_dma(4)
                        elif st + 4 <= 8: pend_dma = w2_dma(st + 4)
                        E.run(nxt)
                else:
                    per = (len(nxt) + 3) // 4
                    E.run(nxt[mu * per:(mu + 1) * per])
                if 2 <= kap <= 6:
                    slot += 1
                    want = slot * len(side) // nslots
                    E.run(side[sidx:want]); sidx = want
                if pend_dma:
                    n = 0
                    while n < len(pend_dma) and isinstance(pend_dma[n], str): n += 1
                    n += 1
                    if n < len(pend_dma) and isinstance(pend_dma[n], str) and "exec_hi, -1" in pend_dma[n]: n += 1
                    E.run(pend_dma[:n]); pend_dma = pend_dma[n:]
        E.run(pend_dma)
        assert sidx == len(side)
    a("s_nop 7")
    E.run(epilogue(8))
    a.label(Lend)
    a("s_endpgm")
```

```python
import sys
from common import *
import k_mlp, k_misc
REF = "parallel_sum__ssm_conv_h3__dense_activation_mish__prompt.s.ref"
def build(kernels, out):
    head = [l for l in open(REF).read().split("\n") if l.startswith(";") and "@launch" not in l and "Override launch" not in l and "grid=ceil" not in l]
    txt = "\n".join(head) + "\n"
    for name, fn, grid, block, lds, vg in kernels:
        txt += f"; @launch kernel={name} grid=({grid},1,1) block=({block},1,1) lds={lds}\n"
    txt += '.amdgcn_target "amdgcn-amd-amdhsa--gfx950"\n.text\n'
    a = Asm()
    seen = []
    for name, fn, grid, block, lds, vg in kernels:
        if name in seen: continue
        seen.append(name)
        a.lines.append(kernel_header(name).rstrip())
        fn(a)
    txt += a.text()
    txt += '.section .rodata,"a"\n'
    seen = []
    for name, fn, grid, block, lds, vg in kernels:
        if name in seen: continue
        seen.append(name)
        txt += kernel_desc(name, vg)
    open(out, "w").write(txt)
if __name__ == "__main__":
    out = sys.argv[1] if len(sys.argv) > 1 else "v1.s"
    build([("prep_kernel", k_misc.gen_prep, 256, 320, 0, 128),
           ("conv_kernel", k_misc.gen_conv, 144, 512, k_misc.LDS_CONV, 256),
           ("mlp_kernel", k_mlp.gen_mlp, 256, 512, k_mlp.LDS_MLP, 256),
           ("comb_kernel", k_misc.gen_comb, 288, 512, k_misc.LDS_COMB, 128)], out)
```

```python
from gen import *
def empty(a): a("s_endpgm")
base = [("prep_kernel", k_misc.gen_prep, 256, 320, 0, 128),
           ("conv_kernel", k_misc.gen_conv, 144, 512, k_misc.LDS_CONV, 256),
           ("mlp_kernel", k_mlp.gen_mlp, 256, 512, k_mlp.LDS_MLP, 256),
           ("comb_kernel", k_misc.gen_comb, 288, 512, k_misc.LDS_COMB, 128)]
e = ("empty_kernel", empty, 256, 64, 0, 8)
build(base + [e] * 4, "x_e4.s")
build([e] * 4 + base, "x_e4b.s")
build(base[:3] + [base[2]] + base[3:], "x_mlp2.s")
build(base + [base[3]], "x_comb2.s")
build(base[:2] + base[:2] + base[2:], "x_pc2.s")
```

```python
from asmlib import *
import math
LOG2E = math.log2(math.e)
LN2 = math.log(2.0)
S, D, F = 2048, 576, 4608
XBYTES = S * D * 2
WBYTES = D * F * 2
WS_PART = 0
SLICE = XBYTES
WS_STATS = 16 * SLICE
WS_U = WS_STATS + 16384
WS_Z = WS_U + 144 * 256 * 128
WS_PF = WS_Z + XBYTES
WS_ZF = WS_PF + 2048
WS_DBG = WS_ZF + 2048
WS_END = WS_DBG + 4 * 512 * 8 * 256

class Track:
    def __init__(self, a, name, maxv):
        self.a, self.name, self.maxv = a, name, maxv
        self.q = []
    ctx = None
    def issue(self, tag=None):
        self.q.append((tag, self.ctx))
    def need(self, *tags):
        idx = -1
        for i, (t, c) in enumerate(self.q):
            if t in tags:
                assert c is None or c == self.ctx or self.ctx is None, (t, c, self.ctx)
                idx = i
        if idx < 0: return None
        younger = self.q[idx + 1:]
        n = sum(1 for (t, c) in younger if c is None or c == self.ctx)
        n = min(n, self.maxv)
        if self.ctx is None:
            self.q = younger
        else:
            self.q = [e for e in self.q[:idx + 1] if e[1] != self.ctx] + younger
        return f"s_waitcnt {self.name}({n})"
    def drain(self):
        self.q = [] if self.ctx is None else [e for e in self.q if e[1] != self.ctx]
        return f"s_waitcnt {self.name}(0)"

class Stamps:
    def __init__(self, a, on, kidx):
        self.a, self.on, self.kidx, self.n, self.names = a, on, kidx, 0, []
    def stamp(self, name, E=None):
        if not self.on: return
        assert self.n < 30
        self.a("s_memtime s[68:69]" if self.on == 2 else "s_memrealtime s[68:69]")
        self.a("s_waitcnt lgkmcnt(0)")
        if E is not None: E.lg.q = []
        self.a(f"s_mov_b32 s{70+self.n}, s68")
        self.names.append(name); self.n += 1
    def cyc(self, idx):
        if not self.on: return
        self.a("s_memtime s[68:69]")
        self.a("s_waitcnt lgkmcnt(0)")
        self.a(f"s_mov_b32 s{100+idx}, s68")
    def flush(self, srd, swave, v1=1, v2=2):
        if not self.on: return
        a = self.a
        a(f"v_mov_b32 v{v1}, 0")
        for i in range(self.n): a(f"v_writelane_b32 v{v1}, s{70+i}, {i}")
        a(f"v_writelane_b32 v{v1}, s100, 62")
        a(f"v_writelane_b32 v{v1}, s101, 63")
        a(f"v_mbcnt_lo_u32_b32 v{v2}, -1, 0")
        a(f"v_mbcnt_hi_u32_b32 v{v2}, -1, v{v2}")
        a(f"v_lshlrev_b32 v{v2}, 2, v{v2}")
        a(f"s_lshl_b32 s68, s2, 3")
        a(f"s_add_u32 s68, s68, s{swave}")
        a(f"s_lshl_b32 s68, s68, 8")
        a(f"s_add_u32 s68, s68, {WS_DBG + self.kidx * 512 * 8 * 256}")
        a(f"buffer_store_dword v{v1}, v{v2}, s[{srd}:{srd+3}], s68 offen")
        import json
        json.dump(self.names, open(f"stamps{self.kidx}.json", "w"))
```

```python
import sys
from common import *
import k_mlp, k_misc
REF = "parallel_sum__ssm_conv_h3__dense_activation_mish__prompt.s.ref"
def build(kernels, out):
    head = [l for l in open(REF).read().split("\n") if l.startswith(";") and "@launch" not in l and "Override launch" not in l and "grid=ceil" not in l]
    txt = "\n".join(head) + "\n"
    for name, fn, grid, block, lds, vg in kernels:
        txt += f"; @launch kernel={name} grid=({grid},1,1) block=({block},1,1) lds={lds}\n"
    txt += '.amdgcn_target "amdgcn-amd-amdhsa--gfx950"\n.text\n'
    a = Asm()
    seen = []
    for name, fn, grid, block, lds, vg in kernels:
        if name in seen: continue
        seen.append(name)
        a.lines.append(kernel_header(name).rstrip())
        fn(a)
    txt += a.text()
    txt += '.section .rodata,"a"\n'
    seen = []
    for name, fn, grid, block, lds, vg in kernels:
        if name in seen: continue
        seen.append(name)
        txt += kernel_desc(name, vg)
    open(out, "w").write(txt)
def std(opt):
    return [("prep_kernel", lambda a: k_misc.gen_prep(a, opt), 256, 320, 0, 128),
           ("conv_kernel", lambda a: k_misc.gen_conv(a, opt), 144, 512, k_misc.LDS_CONV, 256),
           ("mlp_kernel", lambda a: k_mlp.gen_mlp(a, opt), 256, 512, k_mlp.LDS_MLP, 256),
           ("comb_kernel", lambda a: k_misc.gen_comb(a, opt), 288, 512, k_misc.LDS_COMB, 128)]
if __name__ == "__main__":
    build(std({}), "v1.s")
    build(std({"stamps": 1}), "v1s.s")
```

```python
from common import *
from k_mlp import Emit, M16, mish_group

RING = 0
ACT = 73728
BIAS = 147456
STAT = BIAS + 1280
BNC2 = STAT + 1024
LDS_ALL = 163840
KB = 36864; KCH = 16640; KCP = [0, 4096 + 80, 8192 + 144, 12288 + 208]
UB = 110592; UCH = 9216; UCP = 4576
XS = 0

def XF(mt16, ks): return mt16 * 72 + ks * 4
def AFR(mu, kap): return mu * 36 + kap * 4
ACC = 144; PEND = 160; FR = 176; BI = 208; TM = 216; AO = 244
RA = [228, 229, 230, 231]
vW1, vW2, vJUNK, vACTW, vBIAS, vST, vRB, vL16 = 232, 233, 234, 235, 236, 237, 238, 239
T0 = 240
PH2 = [224, 252]
vACTH = 243
sX, sW1, sW2, sWS = 8, 12, 16, 20
sA, sB, sC, sD, sDBG = 24, 40, 44, 48, 52
sMT, sSL, sW, sMG, sPH, sFB, sFS, sHL, sODD = 28, 29, 30, 31, 32, 33, 34, 35, 36
sFB2, sHL2, sXH = 37, 38, 39
sT = 56
sEX = 60
sOFF, sONES, sW2A, sW2B, sM0G, sOFF2 = 62, 63, 64, 65, 66, 67
sXR1, sTB, sQ, sCNT = 3, 4, 5, 6

HPOS = 1
def is_half(T): return T == HPOS
def pair_of(T): return T if T < HPOS else T - 1
KORD = [8, 0, 1, 2, 3, 4, 5, 6, 7]
OOB = "0x7ffffff0"

def spread(main, side):
    out = []; k = 0; n = len(main)
    for i, m in enumerate(main):
        out.append(m)
        want = (i + 1) * len(side) // n
        while k < want:
            out.extend(side[k]); k += 1
    for g in side[k:]: out.extend(g)
    return out
def flat(groups): return [x for g in groups for x in g]
def srd2(a, d, nbytes):
    a(f"s_and_b32 s{d+1}, s{d+1}, 0xffff")
    a(f"s_mov_b32 s{d+2}, {nbytes}")
    a(f"s_mov_b32 s{d+3}, 0x00020000")

def gen_all(a, opt=None):
    opt = opt or {}
    E = Emit(a)
    Lend = a.newlabel("Lend")
    a("s_cmp_ge_u32 s2, 256")
    a(f"s_cbranch_scc1 {Lend}")
    ST = Stamps(a, opt.get("stamps"), 0)
    ST.stamp("start"); ST.cyc(0)
    for d, off in ((sX, 0), (sW1, 56), (sA, 64), (sW2, 72), (sWS, 96), (sB, 8), (sC, 16), (sD, 24), (sDBG, 88)):
        a(f"s_load_dwordx2 s[{d}:{d+1}], s[0:1], {off}")
    lane, r8, u8 = T0 + 1, T0 + 2, T0 + 3
    a(f"v_lshrrev_b32 v{T0}, 6, v0")
    a(f"v_and_b32 v{lane}, 63, v0")
    a(f"v_readfirstlane_b32 s{sW}, v{T0}")
    a(f"s_and_b32 s{sT}, s2, 3")
    a(f"s_lshl_b32 s{sT}, s{sT}, 2")
    a(f"s_bfe_u32 s{sT+1}, s2, 0x20003")
    a(f"s_add_u32 s{sSL}, s{sT}, s{sT+1}")
    a(f"s_bfe_u32 s{sT}, s2, 0x10002")
    a(f"s_lshl_b32 s{sT}, s{sT}, 3")
    a(f"s_lshr_b32 s{sT+1}, s2, 5")
    a(f"s_add_u32 s{sMT}, s{sT}, s{sT+1}")
    a(f"s_and_b32 s{sMG}, s{sW}, 3")
    a(f"s_lshr_b32 s{sPH}, s{sW}, 2")
    a(f"v_lshrrev_b32 v{r8}, 3, v{lane}")
    a(f"v_and_b32 v{u8}, 7, v{lane}")
    a(f"s_lshl_b32 s{sT+1}, s{sMG}, 5")
    a(f"s_lshl_b32 s{sT+2}, s{sPH}, 3")
    a(f"s_add_u32 s{sT+1}, s{sT+1}, s{sT+2}")
    a(f"s_lshl_b32 s{sT}, s{sMT}, 7")
    a(f"s_add_u32 s{sT}, s{sT}, s{sT+1}")
    vSTW, vXO = T0 + 4, T0 + 5
    a(f"v_add_u32 v{vXO}, s{sT}, v{r8}")
    a(f"v_mul_u32_u24 v{vXO}, 1152, v{vXO}")
    a(f"v_lshl_add_u32 v{vXO}, v{u8}, 4, v{vXO}")
    a(f"v_add_u32 v{vSTW}, s{sT+1}, v{r8}")
    a(f"v_lshlrev_b32 v{vSTW}, 3, v{vSTW}")
    a(f"v_add_u32 v{vSTW}, {STAT}, v{vSTW}")
    a(f"s_movk_i32 s{sXR1}, 18432")
    a("s_waitcnt lgkmcnt(0)")
    srd2(a, sX, XBYTES)
    RAW = [144, 180]
    def x_load(rho, j):
        so = "0" if rho == 0 else f"s{sXR1}"
        return dict(i=f"buffer_load_dwordx4 {v(RAW[rho]+4*j,4)}, v{vXO}, {s(sX,4)}, {so} offen offset:{128*j}", vm=("x", rho, j))
    for j in range(9): E.one(x_load(0, j))
    ST.stamp("x0 issued")
    srd2(a, sW1, WBYTES); srd2(a, sA, F * 2); srd2(a, sW2, WBYTES); srd2(a, sWS, WS_END)
    srd2(a, sB, XBYTES); srd2(a, sC, XBYTES); srd2(a, sD, 576 * 8); srd2(a, sDBG, 256)
    a(f"s_and_b32 s{sODD}, s{sSL}, 1")
    a(f"s_mul_i32 s{sT}, s{sSL}, 288")
    a(f"s_lshl_b32 s{sT+1}, s{sODD}, 5")
    a(f"s_add_u32 s{sFB}, s{sT}, s{sT+1}")
    a(f"s_xor_b32 s{sT+2}, s{sODD}, 1")
    a(f"s_lshl_b32 s{sT+2}, s{sT+2}, 8")
    a(f"s_add_u32 s{sFS}, s{sT}, s{sT+2}")
    a(f"s_sub_u32 s{sHL}, s{sFS}, s{sT+1}")
    a(f"s_lshl_b32 s{sFB2}, s{sFB}, 1")
    a(f"s_lshl_b32 s{sHL2}, s{sHL}, 1")
    a(f"s_lshl_b32 s{sM0G}, s{sMG}, 10")
    a(f"s_mov_b32 s{sONES}, 0x3f803f80")
    a(f"s_lshl_b32 s{sTB}, s{sMT}, 4")
    a(f"s_add_u32 s{sTB}, s{sTB}, s{sSL}")
    a(f"v_lshlrev_b32 v{vL16}, 4, v{lane}")
    t1, t2 = T0 + 8, T0 + 9
    a(f"s_lshl_b32 s{sT}, s{sMG}, 3")
    a(f"v_add_u32 v{t2}, s{sT}, v{r8}")
    a(f"v_mul_u32_u24 v{vW1}, 9216, v{t2}")
    a(f"v_bfe_u32 v{t1}, v{r8}, 1, 1")
    a(f"s_and_b32 s{sT}, s{sW}, 1")
    a(f"s_lshl_b32 s{sT}, s{sT}, 1")
    a(f"v_or_b32 v{t1}, s{sT}, v{t1}")
    a(f"v_lshlrev_b32 v{t1}, 1, v{t1}")
    a(f"v_xor_b32 v{t1}, v{t1}, v{u8}")
    a(f"v_lshl_add_u32 v{vW1}, v{t1}, 4, v{vW1}")
    a(f"v_mul_u32_u24 v{vW2}, 1152, v{t2}")
    a(f"v_and_b32 v{t1}, 6, v{r8}")
    a(f"v_xor_b32 v{t1}, v{t1}, v{u8}")
    a(f"v_lshl_add_u32 v{vW2}, v{t1}, 4, v{vW2}")
    a(f"s_mul_i32 s{sW2A}, s{sFB}, 1152")
    a(f"s_mul_i32 s{sW2B}, s{sFS}, 1152")
    vBE, vBV = T0 + 6, T0 + 7
    a(f"v_subrev_u32 v{vBE}, 256, v0")
    a(f"v_lshrrev_b32 v{vBV}, 5, v{vBE}")
    a(f"v_and_b32 v{vBE}, 15, v{vBE}")
    a(f"v_lshl_add_u32 v{vBE}, v{vBV}, 4, v{vBE}")
    a(f"v_add_u32 v{vBE}, s{sFS}, v{vBE}")
    a(f"v_add_u32 v{vBV}, s{sFB}, v0")
    a(f"v_cmp_gt_u32 vcc, 256, v0")
    g4, rp, c4, fsw = T0 + 10, T0 + 11, T0 + 12, T0 + 13
    a(f"v_lshrrev_b32 v{g4}, 4, v{lane}")
    a(f"v_bfe_u32 v{rp}, v{lane}, 2, 2")
    a(f"v_cndmask_b32 v{vBE}, v{vBE}, v{vBV}, vcc")
    a(f"v_lshlrev_b32 v{vBE}, 1, v{vBE}")
    a(f"v_and_b32 v{c4}, 3, v{lane}")
    a(f"v_lshrrev_b32 v{t1}, 1, v{rp}")
    a(f"v_and_b32 v{t2}, 1, v{g4}")
    a(f"v_lshl_or_b32 v{fsw}, v{t2}, 1, v{t1}")
    a(f"s_lshl_b32 s{sT}, s{sPH}, 1")
    a(f"v_xor_b32 v{t1}, s{sT}, v{fsw}")
    a(f"v_lshlrev_b32 v{t1}, 5, v{t1}")
    a(f"v_lshl_add_u32 v{t1}, v{g4}, 10, v{t1}")
    a(f"v_lshl_add_u32 v{t1}, v{rp}, 7, v{t1}")
    a(f"v_lshl_add_u32 v{RA[0]}, v{c4}, 3, v{t1}")
    a(f"v_xor_b32 v{RA[1]}, 32, v{RA[0]}")
    a(f"v_add_u32 v{RA[3]}, 0x8000, v{RA[1]}")
    a(f"v_add_u32 v{RA[2]}, 0x8000, v{RA[0]}")
    a(f"s_lshl_b32 s{sT}, s{sODD}, 1")
    a(f"s_add_u32 s{sT}, s{sT}, s{sPH}")
    a(f"s_lshl_b32 s{sT+1}, s{sPH}, 1")
    a(f"s_xor_b32 s{sT}, s{sT}, s{sT+1}")
    a(f"s_lshl_b32 s{sXH}, s{sT}, 5")
    a(f"s_lshr_b32 s{sT}, s{sW}, 1")
    a(f"v_xor_b32 v{t1}, s{sT}, v{fsw}")
    a(f"v_lshlrev_b32 v{t1}, 5, v{t1}")
    a(f"v_lshl_add_u32 v{t1}, v{g4}, 9, v{t1}")
    a(f"v_lshl_add_u32 v{t1}, v{rp}, 7, v{t1}")
    a(f"v_lshl_add_u32 v{vRB}, v{c4}, 3, v{t1}")
    a(f"s_lshl_b32 s{sT}, s{sPH}, 7")
    a(f"s_add_u32 s{sT}, s{sT}, {BIAS}")
    a(f"v_lshl_add_u32 v{vBIAS}, v{g4}, 4, s{sT}")
    a(f"s_lshl_b32 s{sT}, s{sMG}, 11")
    a(f"s_add_u32 s{sT}, s{sT}, {ACT + 8192}")
    a(f"v_add_u32 v{vACTW}, s{sT}, v{vL16}")
    a(f"s_mul_i32 s{sT}, s{sMG}, 18432")
    a(f"s_add_u32 s{sT}, s{sT}, {ACT}")
    vXW = T0 + 14
    a(f"s_lshl_b32 s{sT+1}, s{sPH}, 3")
    a(f"v_add_u32 v{t1}, s{sT+1}, v{r8}")
    a(f"v_xor_b32 v{t1}, v{t1}, v{u8}")
    a(f"v_lshlrev_b32 v{t1}, 4, v{t1}")
    a(f"v_lshl_add_u32 v{t1}, v{u8}, 8, v{t1}")
    a(f"v_add_u32 v{vXW}, s{sT}, v{t1}")
    vXR0, vXR1 = T0 + 15, T0 + 8
    a(f"v_and_b32 v{t2}, 15, v{lane}")
    a(f"v_xor_b32 v{t2}, v{t2}, v{g4}")
    a(f"v_lshlrev_b32 v{t2}, 4, v{t2}")
    a(f"v_lshl_add_u32 v{t2}, v{g4}, 8, v{t2}")
    a(f"v_add_u32 v{vXR0}, s{sT}, v{t2}")
    a(f"v_xor_b32 v{vXR1}, 64, v{vXR0}")
    a(f"s_mul_i32 s{sT+2}, s{sSL}, {SLICE}")
    a(f"s_lshl_b32 s{sT}, s{sMT}, 2")
    a(f"s_and_b32 s{sT+1}, s{sW}, 1")
    a(f"s_lshl_b32 s{sT+1}, s{sT+1}, 1")
    a(f"s_add_u32 s{sT}, s{sT}, s{sT+1}")
    a(f"s_mul_i32 s{sT}, s{sT}, 36864")
    a(f"s_add_u32 s{sT+2}, s{sT+2}, s{sT}")
    a(f"s_lshr_b32 s{sT}, s{sW}, 1")
    a(f"s_lshl_b32 s{sT}, s{sT}, 10")
    a(f"s_add_u32 s{sT+2}, s{sT+2}, s{sT}")
    a(f"v_add_u32 v{vST}, s{sT+2}, v{vL16}")

    A_, C_ = TM + 8, TM + 10
    def ln_stats(rho):
        o = []
        R = RAW[rho]
        s0, s1, q0, q1 = TM, TM + 1, TM + 2, TM + 3
        o += [f"v_mov_b32 v{s0}, 0", f"v_mov_b32 v{s1}, 0", f"v_mov_b32 v{q0}, 0", f"v_mov_b32 v{q1}, 0"]
        for j in range(9):
            for k in range(4):
                r = R + 4 * j + k
                o.append(dict(i=f"v_dot2c_f32_bf16 v{(s0, s1)[k & 1]}, s{sONES}, v{r}", needv=[("x", rho, j)]))
                o.append(f"v_dot2c_f32_bf16 v{(q0, q1)[k & 1]}, v{r}, v{r}")
        o += ["s_nop 2", f"v_add_f32 v{s0}, v{s0}, v{s1}", f"v_add_f32 v{q0}, v{q0}, v{q1}", "s_nop 0"]
        for dpp in ("quad_perm:[1,0,3,2]", "quad_perm:[2,3,0,1]", "row_half_mirror"):
            o += [f"v_add_f32_dpp v{s1}, v{s0}, v{s0} {dpp} row_mask:0xf bank_mask:0xf",
                  f"v_add_f32_dpp v{q1}, v{q0}, v{q0} {dpp} row_mask:0xf bank_mask:0xf", "s_nop 0"]
            s0, s1, q0, q1 = s1, s0, q1, q0
        mean, var, mb, rs = TM + 4, TM + 5, TM + 6, TM + 7
        o += [f"v_mul_f32 v{mean}, {f32(1.0/576)}, v{s0}",
              f"v_mul_f32 v{var}, {f32(1.0/576)}, v{q0}",
              f"v_fma_f32 v{var}, -v{mean}, v{mean}, v{var}",
              f"v_max_f32 v{var}, 0, v{var}",
              f"v_cvt_pk_bf16_f32 v{mb}, v{mean}, v{var}",
              f"v_and_b32 v{var}, 0xffff0000, v{mb}",
              f"v_lshlrev_b32 v{mb}, 16, v{mb}",
              f"v_add_f32 v{var}, {f32(1e-5)}, v{var}",
              f"v_cvt_pk_bf16_f32 v{var}, v{var}, v{var}",
              f"v_lshlrev_b32 v{var}, 16, v{var}",
              f"v_sqrt_f32 v{var}, v{var}",
              "s_nop 0",
              f"v_cvt_pk_bf16_f32 v{var}, v{var}, v{var}",
              f"v_lshlrev_b32 v{var}, 16, v{var}",
              f"v_rcp_f32 v{rs}, v{var}",
              "s_nop 0",
              f"v_mul_f32 v{A_}, {f32(LOG2E)}, v{rs}",
              f"v_mul_f32 v{C_}, v{mb}, v{A_}",
              dict(i=f"ds_write_b64 v{vSTW}, {v(mb,2)} offset:{rho*128}", lds="sw")]
        return o
    def ln_norm(rho):
        o = []
        R = RAW[rho]
        tp = [T0 + 10, T0 + 12]
        for j in range(9):
            for k in range(0, 4, 2):
                for kk in range(2):
                    r = R + 4 * j + k + kk; t = tp[kk]
                    o += [f"v_lshlrev_b32 v{t}, 16, v{r}", f"v_and_b32 v{t+1}, 0xffff0000, v{r}"]
                for kk in range(2):
                    t = tp[kk]
                    o.append(f"v_pk_fma_f32 {v(t,2)}, {v(t,2)}, {v(A_,2)}, {v(C_,2)} op_sel_hi:[1,0,0] neg_lo:[0,0,1] neg_hi:[0,0,1]")
                for kk in range(2):
                    r = R + 4 * j + k + kk; t = tp[kk]
                    o.append(f"v_cvt_pk_bf16_f32 v{r}, v{t}, v{t+1}")
            o.append(dict(i=f"ds_write_b128 v{vXW}, {v(R+4*j,4)} offset:{j*2048}", lds="xw"))
        return o
    def xn_read(rho, ks):
        return dict(i=f"ds_read_b128 {v(XF(rho,ks),4)}, v{(vXR0, vXR1)[ks & 1]} offset:{ks*1024}", lds=("xf", rho, ks))
    def w1_unit(U, hi):
        T, gam = divmod(U, 9)
        base = sHL2 if is_half(T) else sFB2
        add = (gam * 64 + hi * 32) * 9216 + (0 if is_half(T) else pair_of(T) * 128)
        return [f"s_add_u32 m0, s{sM0G}, {RING + gam * 8192 + hi * 4096}",
                f"s_add_u32 s{sOFF}, s{base}, {add}",
                dict(i=f"buffer_load_dwordx4 v{vW1}, {s(sW1,4)}, s{sOFF} offen lds", vm=("w1", (U - 1) // 3))]
    def units_of(sg): return range(max(0, 3 * sg + 1), min(45, 3 * sg + 4))
    def frag(g, aa): return FR + ((g % 4) * 2 + aa) * 4
    def a_reads(T, ks):
        o = []
        for aa in range(1 if is_half(T) else 2):
            f = frag(18 * T + ks, aa)
            hi = ks >= 8
            off = RING + ks * 4096 - (0x8000 if hi else 0)
            for nu in range(2):
                o.append(dict(i=f"ds_read_b64_tr_b16 {v(f+2*nu,2)}, v{RA[aa + 2*hi]} offset:{off + nu*512}", lds=("A", T, ks, aa)))
        return o
    def bias_reads(T):
        base = 1024 if is_half(T) else pair_of(T) * 256
        return [dict(i=f"ds_read_b128 {v(BI+4*aa,4)}, v{vBIAS} offset:{base + aa*64}", lds=("B", T)) for aa in range(1 if is_half(T) else 2)]
    def mish_tile(T, ph):
        o = []
        if is_half(T):
            for mt16 in range(2):
                o += mish_group(PH2[mt16], AO + mt16 * 2, TM)
                o.append(dict(i=f"ds_write_b64 v{vACTH}, {v(AO+mt16*2,2)} offset:{mt16*1024 + ph*8}", lds="aw"))
            return o
        for mt16 in range(2):
            for aa in range(2):
                o += mish_group(PEND + (aa * 2 + mt16) * 4, AO + mt16 * 4 + aa * 2, TM)
            o.append(dict(i=f"ds_write_b128 v{vACTW}, {v(AO+mt16*4,4)} offset:{mt16*1024 + (2*pair_of(T)+ph)*8192}", lds="aw"))
        return o
    def cost(x):
        t = x if isinstance(x, str) else x["i"]
        return 2 if t.startswith(("v_exp", "v_rcp")) else 1 if t.startswith("v_") else 0
    def take(q, budget):
        out = []
        while q and budget > 0:
            budget -= cost(q[0]); out.append(q.pop(0))
        while q and cost(q[0]) == 0: out.append(q.pop(0))
        return out
    def w2_dma(st, ph):
        slot = (st % 4) * 36864
        o = []
        qs = [20 + 4 * n for n in range(4)] if ph == 0 else [4 * n for n in range(5)]
        for q in qs:
            base, rowoff = (sW2A, q * 8) if q < 32 else (sW2B, (q - 32) * 8)
            o.append([f"s_add_u32 m0, s{sM0G}, {slot + q * 1024}",
                      f"s_add_u32 s{sOFF}, s{base}, {rowoff * 1152 + st * 128}",
                      dict(i=f"buffer_load_dwordx4 v{vW2}, {s(sW2,4)}, s{sOFF} offen lds", vm=("w2", st))])
        return o
    vAR, vAR2 = T0, 227
    vRBs = [vRB, T0 + 1, T0 + 2, 226]
    PD2 = 4
    def frag2(g): return FR + (g % 8) * 4
    def b_reads(st, i):
        f = frag2(9 * st + i); kap = KORD[i]
        return [dict(i=f"ds_read_b64_tr_b16 {v(f+2*nu,2)}, v{vRBs[st % 4]} offset:{kap*4096 + nu*2048}", lds=("W", st, i)) for nu in range(2)]
    def act_reads(kap):
        return [dict(i=f"ds_read_b128 {v(AFR(mu,kap),4)}, v{vAR2 if kap == 8 else vAR} offset:{mu*1024 + (0 if kap == 8 else kap*8192)}", lds=("act", kap)) for mu in range(4)]
    def epi_valu():
        o = []
        for pr in range(2):
            p = AO + pr * 4
            for mu in range(2):
                src = ACC + (pr * 2 + mu) * 4
                o.append(f"v_cvt_pk_bf16_f32 v{p+2*mu}, v{src}, v{src+1}")
                o.append(f"v_cvt_pk_bf16_f32 v{p+2*mu+1}, v{src+2}, v{src+3}")
        o.append("s_nop 0")
        for pr in range(2):
            p = AO + pr * 4
            o.append(f"v_permlane16_swap_b32 v{p}, v{p+2}")
            o.append(f"v_permlane16_swap_b32 v{p+1}, v{p+3}")
        return o
    def epi_store(st):
        o = []
        for pr in range(2):
            o.append(f"s_mov_b32 s{sOFF2}, {pr * 36864 + st * 4096}")
            o.append(dict(i=f"buffer_store_dwordx4 {v(AO+pr*4,4)}, v{vST}, {s(sWS,4)}, s{sOFF2} offen sc1", vm=("st", st)))
        return o

    import k_all_parts as P
    G = dict(locals()); G.update(globals())
    Lp1 = a.newlabel("Lph1")
    a(f"s_cmp_lg_u32 s{sPH}, 0")
    a(f"s_cbranch_scc1 {Lp1}")
    Lfin = a.newlabel("Lfin")
    P.body(G, 0, Lfin)
    a.label(Lp1)
    P.body(G, 1, Lfin)
    a.label(Lfin)
    P.final(G)
    a.label(Lend)
    a("s_endpgm")
```

```python
from common import *

def poll(a, load, cond_lines, tag):
    L, Ld = a.newlabel("Lpoll" + tag), a.newlabel("Lpd" + tag)
    a.label(L)
    for l in load: a(l)
    a("s_waitcnt vmcnt(0)")
    for l in cond_lines: a(l)
    a(f"s_cbranch_scc1 {Ld}")
    a("s_sleep 4")
    a(f"s_sub_u32 s{sCNT}, s{sCNT}, 1")
    a(f"s_cbranch_scc0 {L}")
    a(f"s_mov_b32 s{sCNT}, 0")
    a.label(Ld)

def body(G, ph, Lfin):
    globals().update(G)
    X = Emit(a); X.lg.q = list(E.lg.q); X.vm.q = list(E.vm.q)
    n0 = ST.n; names0 = list(ST.names)
    class Ctx:
        def __init__(s_, name, cmp): s_.name, s_.cmp = name, cmp
        def __enter__(s_):
            s_.L = a.newlabel("Lskip")
            a(s_.cmp); a(f"s_cbranch_scc0 {s_.L}")
            X.vm.ctx = s_.name; X.lg.ctx = s_.name
            return s_
        def __exit__(s_, *e):
            X.vm.ctx = None; X.lg.ctx = None
            a.label(s_.L)
    def barrier(needl, needv, name=None):
        X.one(dict(needl=needl, needv=needv))
        a("s_barrier")
        if name: ST.stamp(name, X)
    PREP = lambda: Ctx("prep", f"s_cmp_lt_u32 s{sMG}, 3")
    W0 = lambda: Ctx("w0", f"s_cmp_eq_u32 s{sMG}, 0")
    CV = lambda: Ctx("cv", "s_cmp_lt_u32 s2, 144")
    if ph == 1: a("s_setprio 1")
    a(f"s_mov_b32 s{sCNT}, 0x80000")
    KR, VR, SKR, KU, WU, UU, VT, OUT = 4, 28, 48, 56, 80, 88, 106, 108
    if ph == 0:
        a(f"s_mul_i32 s{sT}, s{sTB}, 9216")
        a(f"s_sub_u32 s{sT}, s{sT}, 4608")
        a(f"v_lshl_add_u32 v1, v0, 3, s{sT}")
        a("v_cmp_gt_u32 vcc, 144, v0")
        a(f"v_mov_b32 v2, {OOB}")
        a("v_lshlrev_b32 v46, 5, v0")
        a("v_cndmask_b32 v1, v2, v1, vcc")
        a("v_add_u32 v2, 4608, v1")
        a("v_add_u32 v3, 9216, v1")
    st0 = ln_stats(0)
    o = st0[:4]
    for j in range(9): o += st0[4 + 8 * j: 12 + 8 * j] + [x_load(1, j)]
    X.run(o + st0[76:])
    ST.stamp("stats0", X)
    if ph == 0:
        with PREP():
            for h in range(2): X.one(dict(i=f"buffer_load_dwordx4 {v(SKR+4*h,4)}, v46, {s(sD,4)}, 0 offen offset:{16*h}", vm="pl"))
            for r in range(12):
                X.one(dict(i=f"buffer_load_dwordx2 {v(KR+2*r,2)}, v{1+r//4}, {s(sB,4)}, 0 offen offset:{(r%4)*1152}", vm="pl"))
                if r >= 3: X.one(dict(i=f"buffer_load_dwordx2 {v(VR+2*(r-3),2)}, v{1+r//4}, {s(sC,4)}, 0 offen offset:{(r%4)*1152}", vm="pl"))
    bl = [[dict(i=f"buffer_load_ushort v{vBV}, v{vBE}, {s(sA,4)}, 0 offen", vm="bias")]]
    X.run(spread(ln_norm(0), bl + [w1_unit(U, ph) for U in range(0, 4)]))
    a(f"v_lshlrev_b32 v{vBE}, 2, v0")
    a(f"v_add_u32 v{vBE}, {BIAS}, v{vBE}")
    ST.stamp("norm0", X)
    X.run(spread(ln_stats(1), [w1_unit(U, ph) for U in range(4, 7)]))
    X.one(dict(i=f"v_lshlrev_b32 v{vBV}, 16, v{vBV}", needv=["bias"]))
    a(f"v_mul_f32 v{vBV}, {f32(LOG2E)}, v{vBV}")
    if ph == 0:
        X.one(dict(i=f"ds_write_b32 v{vBE}, v{vBV}", lds="bw"))
    else:
        with W0(): X.one(dict(i=f"ds_write_b32 v{vBE}, v{vBV}", lds="bw"))
    ST.stamp("stats1", X)
    if ph == 0:
        with PREP() as c:
            X.one(dict(needv=["pl"]))
            for pp in range(2):
                for j in range(4):
                    for h in range(2):
                        src = SKR + 2 * (2 * pp + h) + (j >> 1)
                        a(f"v_lshlrev_b32 v{WU+2*j+h}, 16, v{src}" if j % 2 == 0 else f"v_and_b32 v{WU+2*j+h}, 0xffff0000, v{src}")
                for r in range(12):
                    a(f"v_lshlrev_b32 v{KU+2*r}, 16, v{KR+2*r+pp}")
                    a(f"v_and_b32 v{KU+2*r+1}, 0xffff0000, v{KR+2*r+pp}")
                for r in range(9): a(f"v_pk_mul_f32 {v(UU+2*r,2)}, {v(KU+2*r,2)}, {v(WU+6,2)}")
                for j in range(1, 4):
                    for r in range(9): a(f"v_pk_fma_f32 {v(UU+2*r,2)}, {v(KU+2*(r+j),2)}, {v(WU+2*(3-j),2)}, {v(UU+2*r,2)}")
                for r in range(9):
                    a(f"v_lshlrev_b32 v{KU+2*r}, 16, v{VR+2*r+pp}")
                    a(f"v_and_b32 v{KU+2*r+1}, 0xffff0000, v{VR+2*r+pp}")
                for r in range(9): a(f"v_pk_mul_f32 {v(UU+2*r,2)}, {v(UU+2*r,2)}, {v(KU+2*r,2)}")
                for h in range(2):
                    for cp in range(2):
                        for i in range(4):
                            top = 7 + cp - 2 * i
                            a(f"v_cvt_pk_bf16_f32 v{OUT+(cp*4+2*pp+h)*4+i}, v{UU+2*top+h}, v{UU+2*(top-1)+h}")
            a(f"s_lshl_b32 s{sT}, s{sMG}, 13")
            a(f"s_add_u32 s{sT}, s{sT}, {RING + 7 * 8192}")
            a(f"s_cmp_eq_u32 s{sMG}, 2")
            a(f"s_cselect_b32 s{sT}, {BNC2}, s{sT}")
            a(f"v_lshlrev_b32 v140, 7, v{lane}")
            a(f"v_lshl_add_u32 v140, v{u8}, 4, v140")
            a(f"v_add_u32 v140, s{sT}, v140")
            a(f"v_add_u32 v143, s{sT}, v{vL16}")
            for p in range(8):
                ad = 141 + (p & 1)
                a(f"v_xor_b32 v{ad}, {p*16}, v140")
                X.one(dict(i=f"ds_write_b128 v{ad}, {v(OUT+4*p,4)}", lds="pw"))
            for k in range(8):
                X.one(dict(i=f"ds_read_b128 {v(KU+4*k,4)}, v143 offset:{k*1024}", lds=("pr", k)))
            a(f"v_xor_b32 v140, v{u8}, v{r8}")
            a(f"v_lshlrev_b32 v140, 4, v140")
            a(f"v_lshl_add_u32 v140, v{r8}, 15, v140")
            a(f"s_sub_u32 s{sT}, 255, s{sTB}")
            a(f"s_lshl_b32 s{sT}, s{sT}, 7")
            a(f"s_lshl_b32 s{sT+1}, s{sMG}, 21")
            a(f"s_add_u32 s{sT}, s{sT}, s{sT+1}")
            a(f"s_add_u32 s{sT}, s{sT}, {WS_U}")
            a(f"s_lshl_b32 s{sT+1}, s{sMT}, 7")
            a(f"s_lshl_b32 s{sT+2}, s{sSL}, 2")
            a(f"s_add_u32 s{sT+1}, s{sT+1}, s{sT+2}")
            a(f"s_add_u32 s{sT+1}, s{sT+1}, {WS_PF}")
            a(f"s_lshl_b32 s{sT+2}, s2, 2")
            a(f"s_add_u32 s{sT+2}, s{sT+2}, {WS_ZF}")
            a(f"v_mov_b32 v141, {OOB}")
            a(f"v_mov_b32 v142, 0")
            a(f"v_writelane_b32 v141, s{sT+1}, 0")
            a(f"v_writelane_b32 v141, s{sT+2}, 1")
            X.one(dict(i=f"buffer_store_dword v142, v141, {s(sWS,4)}, 0 offen sc1", vm="ust"))
            for k in range(8):
                if k == 2:
                    X.one(dict(needl=[("pr", 7)]))
                    a(f"s_cmp_eq_u32 s{sMG}, 2")
                    a(f"s_cbranch_scc1 {c.L}")
                X.one(dict(i=f"buffer_store_dwordx4 {v(KU+4*k,4)}, v140, {s(sWS,4)}, s{sT} offen sc1", vm="ust", needl=[("pr", k)]))
                if k < 7: a(f"s_add_u32 s{sT}, s{sT}, {8*32768}")
        if opt.get("touch", 1):
            a(f"s_and_b32 s{sT}, s{sMT}, 7")
            a(f"s_mul_i32 s{sT+1}, s{sT}, {72 * 9216}")
            a("v_lshrrev_b32 v1, 2, v0")
            a("v_mul_u32_u24 v1, 9216, v1")
            a("v_and_b32 v2, 3, v0")
            a(f"v_lshl_add_u32 v3, v2, 7, s{sFB2}")
            a(f"v_mov_b32 v46, s{sHL2}")
            a("v_cmp_eq_u32 vcc, 0, v2")
            a(f"s_add_u32 s{sT+2}, s{sT+1}, {64 * 9216}")
            a(f"v_mov_b32 v47, {OOB}")
            a("v_cndmask_b32 v3, v3, v46, vcc")
            a("v_add_u32 v1, v1, v3")
            a("v_cmp_gt_u32 vcc, 32, v0")
            X.one(dict(i=f"buffer_load_dword v{vJUNK}, v1, {s(sW1,4)}, s{sT+1} offen", vm="t"))
            a(f"s_mul_i32 s{sT+1}, s{sSL}, {288*1152}")
            a("v_cndmask_b32 v1, v47, v1, vcc")
            X.one(dict(i=f"buffer_load_dword v{vJUNK}, v1, {s(sW1,4)}, s{sT+2} offen", vm="t"))
            a(f"s_mul_i32 s{sT}, s{sT}, {36*1152}")
            a(f"s_add_u32 s{sT+1}, s{sT+1}, s{sT}")
            a("v_lshlrev_b32 v2, 7, v0")
            a("v_cmp_gt_u32 vcc, 68, v0")
            X.one(dict(i=f"buffer_load_dword v{vJUNK}, v2, {s(sW2,4)}, s{sT+1} offen", vm="t"))
            a(f"s_add_u32 s{sT+1}, s{sT+1}, 32768")
            a("v_cndmask_b32 v2, v47, v2, vcc")
            X.one(dict(i=f"buffer_load_dword v{vJUNK}, v2, {s(sW2,4)}, s{sT+1} offen", vm="t"))
    ST.stamp("prep", X)
    a(X.lg.drain()); a("s_barrier")
    ST.stamp("barA")
    n1 = ln_norm(1)
    JS = opt.get("js", 4)
    first = [x for x in n1[:17 * JS] if isinstance(x, str)]
    wr = [x for x in n1[:17 * JS] if not isinstance(x, str)]
    X.run(spread(first[:len(first) * 3 // 4], [[xn_read(0, ks)] for ks in range(18)]) + first[len(first) * 3 // 4:])
    a(X.lg.drain()); a("s_barrier")
    X.run(spread(n1[17 * JS:], [[w] for w in wr] + ([w1_unit(U, h) for U in (7, 8) for h in range(2)] if ph else [])))
    a(f"v_subrev_u32 v{vACTH}, 8192, v{vACTW}")
    ST.stamp("norm1", X)
    barrier(["xw"], [("w1", -1)], "Bx")

    def greads(g):
        if g >= 90: return []
        T, ks = divmod(g, 18)
        o = []
        if T in (HPOS, HPOS + 1) and ks == 0: o.append(f"v_xor_b32 v{RA[0]}, s{sXH}, v{RA[0]}")
        if T in (HPOS, HPOS + 1) and ks == 8: o.append(f"v_xor_b32 v{RA[2]}, s{sXH}, v{RA[2]}")
        return o + a_reads(T, ks)
    def burst1(st, bar, extra=()):
        T, t = divmod(st, 3)
        na = 1 if is_half(T) else 2
        mfs = []
        for kl in range(6):
            ks = 6 * t + kl
            for aa in range(na):
                for mt16 in range(2):
                    acc = ACC + (aa * 2 + mt16) * 4
                    src = v(BI + 4 * aa, 4) if ks == 0 else v(acc, 4)
                    dst = acc if ks < 17 else PH2[mt16] if is_half(T) else PEND + (aa * 2 + mt16) * 4
                    nl = [("A", T, ks, x) for x in range(na)]
                    if ks == 0: nl.append(("B", T))
                    if T == 0: nl.append(("xf", mt16, ks))
                    mfs.append((kl, dict(i=f"{M16} {v(dst,4)}, {v(frag(18*T+ks,aa),4)}, {v(XF(mt16,ks),4)}, {src}", needl=nl)))
        rd = [(kl, r) for kl in range(6) for r in greads(6 * st + 2 + kl)]
        extra = list(extra)
        n = len(mfs)
        nb = (opt.get("nb", 2) * na // 2 or 1) if ph == 0 else 0
        last = n if ph == 0 else n - opt.get("tail", 3) * na // 2
        a("s_setprio 0")
        for mi, (kl, m) in enumerate(mfs):
            X.one(m)
            if ph == 0 and mi == nb - 1 and bar: bar()
            if ph == 1 and mi == opt.get("prio_at", 12) * na // 2: a("s_setprio 1")
            if mi >= nb - 1:
                left = max(1, last - mi)
                cnt = -(-len(rd) // left)
                is_last_of_k = (mi + 1 == n) or mfs[mi + 1][0] != kl
                for _ in range(min(cnt, 2)):
                    if rd and (rd[0][0] - 2 < kl or (rd[0][0] - 2 == kl and is_last_of_k)):
                        X.one(rd.pop(0)[1])
            if extra: X.one(extra.pop(0))
        X.run([r for _, r in rd])
        X.run(extra)
        a(f"s_setprio {opt.get('vprio', 2) if ph == 0 else max(1, opt.get('vprio', 2))}")
    def valu1(items, dmas):
        X.run(spread(items, dmas) if items else flat(dmas))
    xr1 = [xn_read(1, ks) for ks in range(18)]
    X.run(xr1[:3] + bias_reads(0) + greads(0) + greads(1))
    mq = []
    def lastl(sg):
        g = min(89, 6 * sg + 7)
        return [("A", g // 18, g % 18, x) for x in range(2)] + (["aw"] if sg == 13 else []) + [("xf", 1, 17)]
    for st in range(15):
        T, t = divmod(st, 3)
        nm = f"B{st}" if t == 0 else None
        us = [9] if st == 0 else list(units_of(st + 2)) if st <= 12 else []
        if st <= 2: dm = [w1_unit(U, h) for U in us for h in range(2)] if ph else []
        else: dm = [w1_unit(U, ph) for U in us]
        if st == 14: dm = w2_dma(0, ph)
        nv = [("w1", st)] + (["ust"] if st == 2 else [])
        bar = lambda: barrier(lastl(st - 1) if st else [("A", 0, 1, 1)], nv, nm)
        br = [[r] for r in bias_reads(T + 1)] if (t == 1 and T < 4) else []
        def budget(flush):
            return 10 ** 6 if flush else opt.get("bh", 22) if is_half(T) else opt.get("bf", 40)
        if ph == 0:
            burst1(st, bar, xr1[3:] if st == 0 else ())
            if st == 14: break
            if st == 2:
                with W0():
                    a(f"v_mov_b32 v{TM}, {OOB}")
                    a(f"v_mov_b32 v{TM+1}, 1")
                    a(f"v_writelane_b32 v{TM}, 0, 0")
                    X.one(dict(i=f"buffer_atomic_add v{TM+1}, v{TM}, {s(sDBG,4)}, 0 offen sc1", vm="at"))
            fresh = (t == 2)
            if fresh: mq.extend(mish_tile(T, 0))
            Tn, tn = divmod(st + 1, 3)
            items = take(mq, budget(tn == 2 and not is_half(Tn)))
            if fresh and items:
                for g in dm[:2]: X.run(g)
                a("s_nop 1" if len(dm) >= 2 else "s_nop 7")
                dm = dm[2:]
            valu1(items, dm + br)
        else:
            fresh = (t == 0 and st > 0)
            if fresh: mq.extend(mish_tile(T - 1, 1))
            items = take(mq, budget(t == 2 and not is_half(T)))
            if st == 0: items = xr1[3:]
            if fresh and items: a("s_nop 7")
            k = opt.get("k1", 4) if st else 0
            X.run(items[:k])
            bar()
            valu1(items[k:], dm + br)
            burst1(st, None)
    assert not mq
    a(f"s_and_b32 s{sT}, s{sW}, 1")
    a(f"s_lshl_b32 s{sT}, s{sT}, 12")
    a(f"s_add_u32 s{sT}, s{sT}, {ACT}")
    a(f"v_add_u32 v{vAR2}, s{sT}, v{vL16}")
    a(f"v_add_u32 v{vAR}, 8192, v{vAR2}")
    for k in range(1, 4): a(f"v_add_u32 v{vRBs[k]}, {k*36864}, v{vRB}")
    a("s_nop 0")
    early = [[r] for kap in KORD[:6] for r in act_reads(kap)]
    if ph == 0: early = w2_dma(0, 0) + early
    mt = mish_tile(4, ph)
    X.run(spread(mt[:70], early) + mt[70:])
    for d, off in ((sA, 32), (sB, 40), (sC, 80)):
        a(f"s_load_dwordx2 s[{d}:{d+1}], s[0:1], {off}")
    if ph == 0:
        with W0():
            a(f"v_mov_b32 v{TM}, 0")
            poll(a, [f"buffer_load_dword v{TM+1}, v{TM}, {s(sDBG,4)}, 0 offen sc1"],
                 [f"v_readfirstlane_b32 s{sT}, v{TM+1}", "s_nop 0", f"s_cmp_ge_u32 s{sT}, 256"], "i")
    a(X.lg.drain())
    barrier([], [("w2", 0)], "G2 start")
    srd2(a, sA, XBYTES); srd2(a, sB, 576 * 2); srd2(a, sC, XBYTES)
    late = [r for kap in KORD[6:] for r in act_reads(kap)]
    def burst2(st, embed_barrier, extra=()):
        extra = list(extra)
        a("s_setprio 0")
        for i in range(9):
            kap = KORD[i]
            nxt = b_reads(st, i + PD2) if i + PD2 < 9 else []
            for mu in range(4):
                acc = ACC + mu * 4
                src = "0" if i == 0 else v(acc, 4)
                nl = [("W", st, i)] + ([("act", kap)] if st == 0 else [])
                X.one(dict(i=f"{M16} {v(acc,4)}, {v(frag2(9*st+i),4)}, {v(AFR(mu,kap),4)}, {src}", needl=nl))
                if nxt and mu % 2 == 0: X.one(nxt.pop(0))
                elif extra: X.one(extra.pop(0))
                if embed_barrier and i == 9 - PD2 + 1 and mu == 1:
                    a("s_setprio 1")
                    embed_barrier()
        a("s_setprio 2")
        assert not extra
    def pre2(st): return [r for i in range(PD2) for r in b_reads(st, i)]
    vUW, vDD = TM, TM + 1
    def conv_pref(st):
        if st == 6:
            with CV():
                a(f"s_lshl_b32 s{sT}, s{sW}, 10")
                a(f"v_add_u32 v{TM+2}, s{sT}, v{vL16}")
                a(f"s_lshl_b32 s{sT}, s2, 15")
                a(f"s_add_u32 s{sT}, s{sT}, {WS_U}")
                for it in range(4):
                    X.one(dict(i=f"buffer_load_dwordx4 {v(PEND+4*it,4)}, v{TM+2}, {s(sWS,4)}, s{sT} offen sc1", vm=("u", it)))
                    if it < 3: a(f"s_add_u32 s{sT}, s{sT}, 8192")
                a(f"s_lshl_b32 s{sQ}, s2, 2")
                a(f"s_add_u32 s{sQ}, s{sQ}, s{sMG}")
                a(f"s_lshl_b32 s{sT}, s{sQ}, 1")
                a(f"v_mov_b32 v{TM+3}, s{sT}")
                X.one(dict(i=f"buffer_load_ushort v{vDD}, v{TM+3}, {s(sB,4)}, 0 offen", vm="D"))
                a(f"v_bfe_u32 v{TM+3}, v{TM+2}, 4, 2")
                a(f"v_mul_u32_u24 v{vUW}, {UCH}, v{TM+3}")
                a(f"v_bfe_u32 v{TM+3}, v{TM+2}, 6, 1")
                a(f"v_mul_u32_u24 v{TM+3}, {UCP}, v{TM+3}")
                a(f"v_add_u32 v{vUW}, v{vUW}, v{TM+3}")
                a(f"v_lshrrev_b32 v{TM+3}, 7, v{TM+2}")
                a(f"v_lshl_add_u32 v{vUW}, v{TM+3}, 4, v{vUW}")
                a(f"v_add_u32 v{vUW}, {UB}, v{vUW}")
        if st == 7:
            with CV():
                a(f"s_lshl_b32 s{sT}, s{sQ}, 12")
                a(f"s_add_u32 s{sT}, s{sT}, {8 * ph}")
                a(f"s_mul_i32 s{sT+1}, s{sMG}, {KCH}")
                for c in range(2):
                    a(f"s_add_u32 m0, s{sT+1}, {KB + KCP[2 * ph + c]}")
                    if c: a(f"s_add_u32 s{sT}, s{sT}, 4")
                    else: a("s_nop 0")
                    for pc in range(4):
                        X.one(dict(i=f"buffer_load_dwordx4 v{vL16}, {s(sA,4)}, s{sT} offen offset:{pc*1024} lds", vm="kf"))
            if ph == 0:
                with W0():
                    a(f"s_lshl_b32 s{sT}, s{sMT}, 7")
                    a(f"s_lshl_b32 s{sT+1}, s{sSL}, 2")
                    a(f"s_add_u32 s{sT}, s{sT}, s{sT+1}")
                    a(f"s_add_u32 s{sT}, s{sT}, {WS_PF}")
                    a(f"v_mov_b32 v{TM+2}, {OOB}")
                    a(f"v_mov_b32 v{TM+3}, 5")
                    a(f"v_writelane_b32 v{TM+2}, s{sT}, 0")
                    X.one(dict(i=f"buffer_store_dword v{TM+3}, v{TM+2}, {s(sWS,4)}, 0 offen sc1", vm="pf"))
        if st == 8:
            with CV():
                for it in range(4):
                    X.one(dict(i=f"ds_write_b128 v{vUW}, {v(PEND+4*it,4)} offset:{it*1024}", lds="uw", needv=[("u", it)]))
                if ph == 0:
                    for k in range(4): a(f"v_mov_b32 v{TM+4+k}, 0")
                    a(f"s_cmp_eq_u32 s{sMG}, 3")
                    a("s_cselect_b32 exec_hi, 0, -1")
                    X.one(dict(i=f"ds_write_b128 v{vUW}, {v(TM+4,4)} offset:4096", lds="uw"))
                    a("s_mov_b32 exec_hi, -1")
    for st in range(9):
        nxtv = ([("w2", st + 1)] if st < 8 else []) + ([("st", 4)] if st == 6 else [])
        lastw = [("W", st, 8), ("act", 7)]
        if st == 0: dm = w2_dma(1, ph) + w2_dma(2, ph)
        elif st == 1: dm = w2_dma(3, ph) + w2_dma(4, ph)
        elif st + 3 <= 8: dm = w2_dma(st + 3, ph)
        else: dm = []
        nm = f"G2 B{st+1}" if st % 2 == 1 else None
        def vphase(est):
            d = list(dm)
            for g in d[:2]: X.run(g)
            if len(d) < 2: a("s_nop 7")
            valu1(epi_valu(), d[2:])
            X.run(epi_store(est))
        if ph == 0:
            X.run(pre2(st))
            if st == 0:
                X.run(flat(dm[:4])); dm = dm[4:]
            burst2(st, None, late if st == 0 else ())
            vphase(st)
            conv_pref(st)
            if st < 8: barrier(lastw, nxtv, nm)
        else:
            if st == 0: valu1(late, dm)
            else: vphase(st - 1)
            conv_pref(st)
            X.run(pre2(st))
            burst2(st, (lambda: barrier(lastw, nxtv, nm)) if st < 8 else None)
    if ph == 1:
        dm = []
        vphase(8)
    ST.stamp("G2 end", X)
    if ph == 0:
        a(f"s_branch {Lfin}")
        ST.n = n0; ST.names = names0

def final(G):
    globals().update(G)
    X = Emit(a)
    RL = 0
    vUW, vDD = TM, TM + 1
    a("s_setprio 0")
    vLN, vN, vG, vPF, vRL, vT = 240, 241, 242, 243, 244, 245
    a(f"v_lshrrev_b32 v{vLN}, 4, v{vL16}")
    a(f"v_and_b32 v{vN}, 15, v{vLN}")
    a(f"v_lshrrev_b32 v{vG}, 4, v{vLN}")
    a(f"s_lshl_b32 s{sT}, s{sMT}, 7")
    a(f"s_add_u32 s{sT}, s{sT}, {WS_PF}")
    a(f"v_lshl_add_u32 v{vPF}, v{vN}, 2, s{sT}")
    a(f"buffer_load_dword v{vT}, v{vPF}, {s(sWS,4)}, 0 offen sc1")
    a(f"v_lshrrev_b32 v246, 3, v{vLN}")
    a(f"v_mul_u32_u24 v{vRL}, {SLICE}, v246")
    a(f"v_and_b32 v246, 0x70, v{vL16}")
    a(f"v_add_u32 v{vRL}, v{vRL}, v246")
    a(f"s_lshr_b32 s{sT}, s{sTB}, 2")
    a(f"s_mul_i32 s{sT}, s{sT}, 36864")
    a(f"s_lshl_b32 s{sT+1}, s{sW}, 9")
    a(f"s_add_u32 s{sT}, s{sT}, s{sT+1}")
    a(f"s_and_b32 s{sT+1}, s{sSL}, 3")
    a(f"s_lshl_b32 s{sT+1}, s{sT+1}, 7")
    a(f"s_add_u32 s{sT}, s{sT}, s{sT+1}")
    a(f"v_add_u32 v{vRL}, s{sT}, v{vRL}")
    vA, vB, vD0, AD, vS0 = 232, 233, 234, 248, 252
    sKC = sFB
    a(f"s_mul_i32 s{sKC}, s{sMG}, {KCH}")
    a(f"s_add_u32 s{sKC}, s{sKC}, {KB}")
    a(f"v_add_u32 v246, 1, v{vN}")
    a(f"v_and_b32 v247, 3, v246")
    a(f"v_lshrrev_b32 v246, 2, v246")
    a(f"v_sub_u32 v246, v246, v{vG}")
    a(f"v_lshlrev_b32 v246, 4, v246")
    a(f"v_mul_u32_u24 v235, {4096+64}, v247")
    a(f"v_add_u32 v246, v246, v235")
    a(f"v_cmp_ne_u32 vcc, 0, v247")
    a(f"v_add_u32 v235, 16, v246")
    a(f"s_lshl_b32 s{sT}, s{sPH}, 8")
    a(f"v_cndmask_b32 v246, v246, v235, vcc")
    a(f"s_add_u32 s{sT+1}, s{sT}, s{sKC}")
    a(f"s_sub_u32 s{sT+1}, s{sT+1}, 16")
    a(f"v_add_u32 v{vA}, s{sT+1}, v246")
    a(f"v_and_b32 v246, 1, v{vN}")
    a(f"v_mul_u32_u24 v246, {UCP}, v246")
    a(f"v_lshrrev_b32 v247, 1, v{vN}")
    a(f"v_lshl_add_u32 v235, v247, 2, v{vG}")
    a(f"v_sub_u32 v236, 31, v235")
    a(f"v_lshl_add_u32 v246, v236, 4, v246")
    a(f"s_mul_i32 s{sT+1}, s{sMG}, {UCH}")
    a(f"s_add_u32 s{sT+1}, s{sT+1}, s{sT}")
    a(f"s_add_u32 s{sT+1}, s{sT+1}, {UB}")
    a(f"v_add_u32 v{vB}, s{sT+1}, v246")
    vXA = 237
    a(f"v_and_b32 v246, 3, v247")
    a(f"v_xor_b32 v246, s{sMG}, v246")
    a(f"v_lshlrev_b32 v246, 5, v246")
    a(f"v_lshl_add_u32 v246, v235, 7, v246")
    a(f"v_and_b32 v247, 1, v{vN}")
    a(f"v_lshl_add_u32 v246, v247, 4, v246")
    a(f"s_lshl_b32 s{sT}, s{sPH}, 15")
    a(f"v_add_u32 v{vXA}, s{sT}, v246")
    a(f"v_lshlrev_b32 v246, 2, v{vG}")
    a(f"v_sub_u32 v246, v{vN}, v246")
    a(f"s_lshl_b32 s{sT}, s{sPH}, 6")
    a(f"s_sub_u32 s{sT}, s{sT}, 3")
    a(f"v_add_u32 v{vD0}, s{sT}, v246")
    a("s_waitcnt vmcnt(0) lgkmcnt(0)")
    for i in range(4):
        a(f"v_add_u32 v246, {i}, v{vD0}")
        a("v_cmp_eq_u32 vcc, 0, v246")
        a(f"v_max_i32 v247, 0, v246")
        a(f"v_lshl_add_u32 v{vS0+i}, v247, 2, s{sKC}")
        a(f"v_cndmask_b32 v{AD+i}, 0, v{vDD}, vcc")
    ST.stamp("drained")
    a("s_barrier")
    L1 = a.newlabel("Lf")
    a(f"s_cmp_lg_u32 s{sW}, 0")
    a(f"s_cbranch_scc1 {L1}")
    a(f"v_cmp_eq_u32 vcc, s{sSL}, v{vLN}")
    a(f"v_mov_b32 v246, {OOB}")
    a(f"v_mov_b32 v247, 9")
    a(f"v_cndmask_b32 v246, v246, v{vPF}, vcc")
    a(f"buffer_store_dword v247, v246, {s(sWS,4)}, 0 offen sc1")
    a.label(L1)
    def pf_cond(n): return [f"v_cmp_gt_u32 vcc, {n}, v{vT}", "s_cmp_eq_u64 vcc, 0"]
    pf_load = [f"buffer_load_dword v{vT}, v{vPF}, {s(sWS,4)}, 0 offen sc1"]
    def rloads(s0, s1):
        for st in range(s0, s1):
            for hs in range(2):
                a(f"s_mov_b32 s{sOFF}, {hs * 8 * SLICE + st * 4096}")
                a(f"buffer_load_dwordx4 {v(RL+(2*st+hs)*4,4)}, v{vRL}, {s(sWS,4)}, s{sOFF} offen sc1")
    L2 = a.newlabel("Lf")
    for l in pf_cond(5): a(l)
    a(f"s_cbranch_scc1 {L2}")
    poll(a, pf_load, pf_cond(5), "p5")
    a.label(L2)
    rloads(0, 5)
    ST.stamp("batch1")
    Lnc, Lz = a.newlabel("Lnoconv"), a.newlabel("Lz")
    a("s_cmp_lt_u32 s2, 144")
    a(f"s_cbranch_scc0 {Lnc}")
    CA = 72
    def FA(buf, i): return 104 + buf * 64 + i * 4
    def FB(buf, i): return 136 + buf * 64 + i * 4
    def reads(bl):
        o = []
        for i in range(8):
            o.append(dict(i=f"ds_read_b128 {v(FB(bl&1,i),4)}, v{vB} offset:{bl*64 + (7-i)*512}", lds=("B", bl, i)))
            if bl == 0 and i == 0:
                for k in range(4): o.append(dict(i=f"ds_read_b32 v{FA(0,0)+k}, v{vS0+k}", lds=("A", 0, 0)))
            else:
                o.append(dict(i=f"ds_read_b128 {v(FA(bl&1,i),4)}, v{vA} offset:{bl*64 + i*512}", lds=("A", bl, i)))
        return o
    X.run(reads(0))
    for k in range(4):
        a(f"v_add_u32 v{vS0+k}, {k}, v{vD0}")
        a(f"v_cmp_le_i32 vcc, 0, v{vS0+k}")
        a("s_nop 1")
        X.one(dict(i=f"v_cndmask_b32 v{FA(0,0)+k}, 0, v{FA(0,0)+k}, vcc", needl=[("A", 0, 0)]))
    for n in range(8):
        X.one(dict(i=f"{M16} {v(CA+4*n,4)}, {v(AD,4)}, {v(FB(0,n),4)}, 0", needl=[("B", 0, n)]))
    for bl in range(4):
        nxt = reads(bl + 1) if bl < 3 else []
        pairs = sorted([(aa, mu) for aa in range(8) for mu in range(8) if aa + mu <= 7], key=lambda x: (max(x), x[0] + x[1]))
        for idx, (aa, mu) in enumerate(pairs):
            n = aa + mu
            X.one(dict(i=f"{M16} {v(CA+4*n,4)}, {v(FA(bl&1,aa),4)}, {v(FB(bl&1,mu),4)}, {v(CA+4*n,4)}", needl=[("A", bl, aa), ("B", bl, mu)]))
            if idx >= 4 and idx % 2 == 0 and nxt: X.one(nxt.pop(0))
        X.run(nxt)
    a(pf_load[0])
    ST.stamp("conv mfma", X)
    a("s_barrier")
    a(f"s_lshl_b32 s{sT}, s{sW}, 6")
    a(f"v_add_u32 v246, s{sT}, v{vLN}")
    a(f"v_lshrrev_b32 v247, 2, v246")
    a(f"v_and_b32 v235, 3, v246")
    for n in range(8): a(f"ds_write_b128 v{vXA}, {v(CA+4*n,4)} offset:{XS + n*4096}")
    a(f"v_bfe_u32 v236, v246, 4, 2")
    a(f"v_xor_b32 v236, v236, v235")
    a(f"v_lshlrev_b32 v236, 5, v236")
    a(f"v_lshl_add_u32 v236, v247, 7, v236")
    a(f"v_mul_u32_u24 v247, 9216, v247")
    a(f"v_lshl_add_u32 v247, v235, 4, v247")
    a(f"s_lshl_b32 s{sT}, s2, 6")
    a(f"s_add_u32 s{sT}, s{sT}, {WS_Z}")
    a(f"s_add_u32 s{sT+1}, s{sT}, {128*9216}")
    a("s_waitcnt lgkmcnt(0)")
    a("s_barrier")
    for k in range(2):
        for bh in range(2):
            for hh in range(2):
                a(f"ds_read_b128 {v(104+k*16+bh*8+hh*4,4)}, v236 offset:{XS + bh*32768 + k*16384 + hh*16}")
    a("s_waitcnt vmcnt(0)")
    for l in pf_cond(9): a(l)
    a(f"s_cselect_b32 s{sT+2}, 1, 0")
    for k in range(2):
        a(f"s_waitcnt lgkmcnt({4 - 4*k})")
        for j in range(8): a(f"v_add_f32 v{104+k*16+j}, v{104+k*16+j}, v{112+k*16+j}")
        for j in range(4): a(f"v_cvt_pk_bf16_f32 v{136+k*4+j}, v{104+k*16+2*j}, v{104+k*16+2*j+1}")
        a(f"buffer_store_dwordx4 {v(136+k*4,4)}, v247, {s(sWS,4)}, s{sT+k} offen sc1")
    L3, L4 = a.newlabel("Lf"), a.newlabel("Lf")
    a(f"s_cmp_eq_u32 s{sT+2}, 0")
    a(f"s_cbranch_scc1 {L3}")
    rloads(5, 9)
    a("s_waitcnt vmcnt(8)")
    a(f"s_branch {L4}")
    a.label(L3)
    a("s_waitcnt vmcnt(0)")
    a.label(L4)
    a("s_barrier")
    L5 = a.newlabel("Lf")
    a(f"s_cmp_lg_u32 s{sW}, 7")
    a(f"s_cbranch_scc1 {L5}")
    a(f"s_lshl_b32 s{sT}, s2, 2")
    a(f"s_add_u32 s{sT}, s{sT}, {WS_ZF}")
    a(f"v_mov_b32 v246, {OOB}")
    a(f"v_mov_b32 v247, 1")
    a(f"v_writelane_b32 v246, s{sT}, 0")
    a(f"buffer_store_dword v247, v246, {s(sWS,4)}, 0 offen sc1")
    a.label(L5)
    a(f"s_cmp_lg_u32 s{sT+2}, 0")
    a(f"s_cbranch_scc1 {Lz}")
    a.label(Lnc)
    poll(a, pf_load, pf_cond(9), "p9")
    rloads(5, 9)
    a.label(Lz)
    ST.stamp("z published")
    XV, ZV, ID, SEL, DM, DZ, SS = 72, 84, 92, 100, 120, 140, 160
    vXO_, vXO4, vSO, vSO4, vZA, vZB = 162, 163, 164, 165, 166, 167
    a(f"v_and_b32 v246, 7, v{vLN}")
    a(f"s_lshl_b32 s{sT}, s{sTB}, 3")
    a(f"v_add_u32 v247, s{sT}, v246")
    a(f"v_mul_u32_u24 v{vXO_}, 1152, v247")
    a(f"v_lshrrev_b32 v247, 1, v{vG}")
    a(f"v_lshl_add_u32 v{vXO_}, v247, 7, v{vXO_}")
    a(f"v_and_b32 v247, 1, v{vG}")
    a(f"v_lshl_add_u32 v{vXO_}, v247, 3, v{vXO_}")
    a(f"s_lshl_b32 s{sT}, s{sW}, 4")
    a(f"v_add_u32 v{vXO_}, s{sT}, v{vXO_}")
    a(f"v_mov_b32 v235, {OOB}")
    a(f"v_cmp_gt_u32 vcc, 32, v{vLN}")
    a(f"s_lshl_b32 s{sT}, s{sSL}, 6")
    a(f"s_add_u32 s{sT}, s{sT}, {STAT}")
    a(f"v_cndmask_b32 v{vXO4}, v235, v{vXO_}, vcc")
    a(f"v_cmp_gt_u32 vcc, 8, v{vN}")
    a(f"v_lshl_add_u32 v236, v246, 3, s{sT}")
    a(f"ds_read_b64 {v(SS,2)}, v236")
    a(f"v_cndmask_b32 v{vSO}, v235, v{vXO_}, vcc")
    a(f"v_cndmask_b32 v{vSO4}, v235, v{vXO4}, vcc")
    for q in range(5):
        a(f"buffer_load_dwordx2 {v(XV+2*q,2)}, v{vXO4 if q == 4 else vXO_}, {s(sX,4)}, 0 offen offset:{q*256}")
    a(f"v_lshrrev_b32 v247, 3, v{vLN}")
    a(f"v_lshlrev_b32 v{vZA}, 10, v247")
    a(f"v_lshl_add_u32 v{vZA}, v246, 4, v{vZA}")
    a(f"v_cmp_gt_u32 vcc, 8, v{vLN}")
    a(f"s_mul_i32 s{sFS}, s{sTB}, 9216")
    a(f"s_lshl_b32 s{sT}, s{sW}, 7")
    a(f"v_cndmask_b32 v{vZB}, v235, v{vZA}, vcc")
    a(f"s_add_u32 s{sFS}, s{sFS}, s{sT}")
    a(f"s_add_u32 s{sFS}, s{sFS}, {WS_Z}")
    a(f"s_add_u32 s{sHL}, s{sFS}, 8192")
    a(f"v_and_b32 v247, 1, v246")
    a(f"v_lshlrev_b32 v247, 4, v247")
    a(f"v_mov_b32 v236, 0x3f80")
    a(f"v_lshlrev_b32 v237, v247, v236")
    a(f"v_lshrrev_b32 v247, 1, v{vN}")
    for k in range(8):
        a(f"v_cmp_eq_u32 vcc, {k}, v247")
        a("s_nop 1")
        a(f"v_cndmask_b32 v{ID+k}, 0, v237, vcc")
    a(f"v_bfe_u32 v247, v246, 1, 1")
    a(f"v_lshlrev_b32 v247, 4, v247")
    a(f"v_lshlrev_b32 v237, v247, v236")
    a(f"v_and_b32 v247, 1, v246")
    a(f"v_lshlrev_b32 v247, 1, v247")
    a(f"v_lshrrev_b32 v238, 2, v246")
    a(f"v_add_u32 v247, v247, v238")
    a(f"v_lshl_add_u32 v247, v{vG}, 2, v247")
    for k in range(16):
        a(f"v_cmp_eq_u32 vcc, {k}, v247")
        a("s_nop 1")
        a(f"v_cndmask_b32 v{SEL+k}, 0, v237, vcc")
    L6 = a.newlabel("Lf")
    a(f"s_cmp_lg_u32 s{sW}, 0")
    a(f"s_cbranch_scc1 {L6}")
    a(f"v_min_u32 v246, 35, v{vLN}")
    a(f"v_lshlrev_b32 v246, 4, v246")
    a(f"s_mov_b32 s{sT}, {WS_ZF}")
    poll(a, [f"buffer_load_dwordx4 v[168:171], v246, {s(sWS,4)}, s{sT} offen sc1"],
         ["v_and_b32 v168, v168, v169", "v_and_b32 v170, v170, v171", "v_and_b32 v168, v168, v170",
          "v_cmp_ne_u32 vcc, 1, v168", "s_cmp_eq_u64 vcc, 0"], "z")
    a.label(L6)
    a("s_barrier")
    ST.stamp("z seen")
    a(f"buffer_load_dwordx4 {v(ZV,4)}, v{vZA}, {s(sWS,4)}, s{sFS} offen sc1")
    a(f"buffer_load_dwordx4 {v(ZV+4,4)}, v{vZB}, {s(sWS,4)}, s{sHL} offen sc1")
    a("s_waitcnt vmcnt(2)")
    for st in range(9):
        for hs in range(2):
            d = DM + (st >> 1) * 4
            src = "0" if (st % 2 == 0 and hs == 0) else v(d, 4)
            a(f"{M16} {v(d,4)}, {v(ID+(st&1)*4,4)}, {v(RL+(2*st+hs)*4,4)}, {src}")
    XFp = 176
    for q in range(5):
        for h in range(2):
            a(f"v_lshlrev_b32 v{XFp+4*q+2*h}, 16, v{XV+2*q+h}")
            a(f"v_and_b32 v{XFp+4*q+2*h+1}, 0xffff0000, v{XV+2*q+h}")
    a("s_waitcnt lgkmcnt(0)")
    for j in range(20):
        a(f"v_sub_f32 v{XFp+20+j}, v{XFp+j}, v{SS}")
        a(f"v_mul_f32 v{XFp+20+j}, v{XFp+20+j}, v{SS+1}")
    a(f"s_mov_b32 s{sT}, {f32(LN2)}")
    for j in range(20):
        a(f"v_add_f32_dpp v{DM+j}, v{DM+j}, v{DM+j} row_ror:8 row_mask:0xf bank_mask:0xf")
    for j in range(20):
        a(f"v_fmac_f32 v{XFp+j}, s{sT}, v{DM+j}")
    a("s_waitcnt vmcnt(0)")
    for q in range(5):
        a(f"{M16} {v(DZ+4*q,4)}, {v(ZV+(q>>2)*4,4)}, {v(SEL+(q&3)*4,4)}, 0")
    a("s_nop 7")
    for q in range(5):
        for r in range(4): a(f"v_fmac_f32 v{XFp+4*q+r}, v{XFp+20+4*q+r}, v{DZ+4*q+r}")
        a(f"v_cvt_pk_bf16_f32 v{XV+2*q}, v{XFp+4*q}, v{XFp+4*q+1}")
        a(f"v_cvt_pk_bf16_f32 v{XV+2*q+1}, v{XFp+4*q+2}, v{XFp+4*q+3}")
        a(f"buffer_store_dwordx2 {v(XV+2*q,2)}, v{vSO4 if q == 4 else vSO}, {s(sC,4)}, 0 offen offset:{q*256}")
    if opt.get("stamps"): a("s_waitcnt vmcnt(0)")
    ST.stamp("end"); ST.cyc(1)
    ST.flush(sWS, sW)
```

```python
from common import *
from k_mlp import Emit, M16

def gen_prep(a, opt=None):
    opt = opt or {}
    E = Emit(a)
    ST = Stamps(a, opt.get("stamps"), 3)
    Lend = a.newlabel("Lprep_end")
    a("s_cmp_ge_u32 s2, 256")
    a(f"s_cbranch_scc1 {Lend}")
    ST.stamp("start"); ST.cyc(0)
    if opt.get("stamps"):
        a("v_lshrrev_b32 v1, 6, v0"); a("s_nop 0"); a("v_readfirstlane_b32 s43, v1")
    a("s_load_dwordx4 s[4:7], s[0:1], 8")
    a("s_load_dwordx2 s[28:29], s[0:1], 24")
    a("s_load_dwordx2 s[30:31], s[0:1], 96")
    a("v_cmp_gt_u32 vcc, 288, v0")
    a("s_and_saveexec_b64 s[40:41], vcc")
    a(f"s_cbranch_execz {Lend}")
    a("s_mul_i32 s3, s2, 9216")
    a("s_sub_u32 s3, s3, 4608")
    a("v_lshlrev_b32 v1, 2, v0")
    a("v_add_u32 v1, s3, v1")
    a("v_lshlrev_b32 v2, 4, v0")
    a("s_waitcnt lgkmcnt(0)")
    srd(a, 8, 4, XBYTES); srd(a, 12, 6, XBYTES); srd(a, 16, 28, 576 * 8); srd(a, 20, 30, WS_END)
    K, V, SK = 10, 22, 32
    a(f"buffer_load_dwordx4 {v(SK,4)}, v2, s[16:19], 0 offen")
    for r in range(12):
        a(f"buffer_load_dword v{K+r}, v1, s[8:11], 0 offen")
        if r >= 3: a(f"buffer_load_dword v{V+r-3}, v1, s[12:15], 0 offen")
        a("v_add_u32 v1, 1152, v1")
    a("s_waitcnt vmcnt(0)")
    ST.stamp("landed")
    W = 40
    for ch in range(2):
        for h in range(2):
            a(f"v_lshlrev_b32 v{W+ch*4+2*h}, 16, v{SK+ch*2+h}")
            a(f"v_and_b32 v{W+ch*4+2*h+1}, 0xffff0000, v{SK+ch*2+h}")
    KF = 48
    for r in range(12):
        a(f"v_lshlrev_b32 v{KF+r}, 16, v{K+r}")
        a(f"v_and_b32 v{KF+12+r}, 0xffff0000, v{K+r}")
    U = 72
    for ch in range(2):
        for r in range(9):
            d = U + ch * 9 + r
            a(f"v_mul_f32 v{d}, v{KF+ch*12+r}, v{W+ch*4+3}")
            for j in range(1, 4):
                a(f"v_fmac_f32 v{d}, v{KF+ch*12+r+j}, v{W+ch*4+3-j}")
            if ch == 0: a(f"v_lshlrev_b32 v3, 16, v{V+r}")
            else: a(f"v_and_b32 v3, 0xffff0000, v{V+r}")
            a(f"v_mul_f32 v{d}, v{d}, v3")
    O = 92
    for ch in range(2):
        for cp in range(2):
            for i in range(4):
                top = 7 + cp - 2 * i
                a(f"v_cvt_pk_bf16_f32 v{O+(ch*2+cp)*4+i}, v{U+ch*9+top}, v{U+ch*9+top-1}")
    a("v_lshrrev_b32 v4, 1, v0")
    a("v_lshlrev_b32 v4, 15, v4")
    a("v_and_b32 v5, 1, v0")
    a("v_lshl_add_u32 v4, v5, 5, v4")
    a("s_sub_u32 s3, 255, s2")
    a("s_lshl_b32 s3, s3, 7")
    a(f"s_add_u32 s3, s3, {WS_U}")
    for ch in range(2):
        for cp in range(2):
            a(f"buffer_store_dwordx4 {v(O+(ch*2+cp)*4,4)}, v4, s[20:23], s3 offen offset:{cp*64+ch*16}")
    if opt.get("stamps"):
        a("s_waitcnt vmcnt(0)"); a("s_mov_b64 exec, -1")
    ST.stamp("end"); ST.cyc(1)
    ST.flush(20, 43)
    a.label(Lend)
    a("s_endpgm")

UB = 0; UCH = 9216; UCP = 4576
KB = 4 * UCH; KCH = 16640; KCP = [0, 4096 + 80, 8192 + 144, 12288 + 208]
LDS_CONV = KB + 4 * KCH
def gen_conv(a, opt=None):
    opt = opt or {}
    E = Emit(a)
    ST = Stamps(a, opt.get("stamps"), 1)
    Lend = a.newlabel("Lconv_end")
    a("s_cmp_ge_u32 s2, 144")
    a(f"s_cbranch_scc1 {Lend}")
    ST.stamp("start"); ST.cyc(0)
    a("s_load_dwordx4 s[4:7], s[0:1], 32")
    a("s_load_dwordx2 s[30:31], s[0:1], 96")
    a("v_lshrrev_b32 v1, 6, v0")
    a("v_and_b32 v2, 63, v0")
    a("v_readfirstlane_b32 s32, v1")
    a("v_lshlrev_b32 v3, 4, v2")
    a("s_and_b32 s33, s32, 3")
    a("s_lshr_b32 s34, s32, 2")
    a("s_lshl_b32 s35, s2, 2")
    a("s_add_u32 s35, s35, s33")
    a("s_waitcnt lgkmcnt(0)")
    srd(a, 8, 4, XBYTES); srd(a, 12, 6, 576 * 2); srd(a, 20, 30, WS_END)
    a("v_lshlrev_b32 v4, 4, v0")
    a("s_lshl_b32 s36, s2, 15")
    a(f"s_add_u32 s36, s36, {WS_U}")
    UL = 16
    for it in range(4):
        E.one(dict(i=f"buffer_load_dwordx4 {v(UL+4*it,4)}, v4, s[20:23], s36 offen", vm=("u", it)))
        if it < 3: a("s_add_u32 s36, s36, 8192")
    a("s_lshl_b32 s37, s35, 1")
    a("v_mov_b32 v5, s37")
    E.one(dict(i="buffer_load_ushort v6, v5, s[12:15], 0 offen", vm="D"))
    a("s_lshl_b32 s38, s35, 12")
    a("s_lshl_b32 s39, s34, 3")
    a("s_add_u32 s38, s38, s39")
    a(f"s_mul_i32 s40, s33, {KCH}")
    a(f"s_add_u32 s40, s40, {KB}")
    for c in range(2):
        a(f"s_mul_i32 s41, s34, {KCP[2+c]-KCP[c]}")
        if KCP[c]: a(f"s_add_u32 s41, s41, {KCP[c]}")
        a("s_add_u32 m0, s40, s41")
        a("s_nop 0")
        for pc in range(4):
            E.one(dict(i=f"buffer_load_dwordx4 v3, s[8:11], s38 offen offset:{pc*1024} lds", vm="kf"))
        if c == 0: a("s_add_u32 s38, s38, 4")
    a("v_and_b32 v7, 3, v0")
    a(f"v_mul_u32_u24 v7, {UCH}, v7")
    a("v_bfe_u32 v8, v0, 2, 1")
    a(f"v_mul_u32_u24 v8, {UCP}, v8")
    a("v_add_u32 v7, v7, v8")
    a("v_lshrrev_b32 v8, 3, v0")
    a("v_lshl_add_u32 v7, v8, 4, v7")
    for k in range(4): a(f"v_mov_b32 v{12+k}, 0")
    a("v_cmp_gt_u32 vcc, 224, v0")
    a("s_and_saveexec_b64 s[42:43], vcc")
    E.one(dict(i=f"ds_write_b128 v7, v[12:15] offset:{UB+4096}", lds="z"))
    a("s_mov_b64 exec, s[42:43]")
    for it in range(4):
        E.one(dict(i=f"ds_write_b128 v7, {v(UL+4*it,4)} offset:{UB+it*1024}", lds="uw", needv=[("u", it)]))
    a("v_and_b32 v8, 15, v2")
    a("v_lshrrev_b32 v9, 4, v2")
    a("v_add_u32 v10, 1, v8")
    a("v_and_b32 v11, 3, v10")
    a("v_lshrrev_b32 v10, 2, v10")
    a("v_sub_u32 v10, v10, v9")
    a("v_lshlrev_b32 v10, 4, v10")
    a(f"v_mul_u32_u24 v12, {4096+64}, v11")
    a("v_add_u32 v10, v10, v12")
    a("v_cmp_ne_u32 vcc, 0, v11")
    a("v_add_u32 v12, 16, v10")
    a("s_lshl_b32 s41, s34, 8")
    a("v_cndmask_b32 v10, v10, v12, vcc")
    a("s_add_u32 s41, s41, s40")
    a("s_sub_u32 s41, s41, 16")
    vA, vB = 240, 241
    a(f"v_add_u32 v{vA}, s41, v10")
    a("v_and_b32 v10, 1, v8")
    a(f"v_mul_u32_u24 v10, {UCP}, v10")
    a("v_lshrrev_b32 v11, 1, v8")
    a("v_lshl_add_u32 v12, v11, 2, v9")
    a("v_sub_u32 v12, 31, v12")
    a("v_lshl_add_u32 v10, v12, 4, v10")
    a(f"s_mul_i32 s41, s33, {UCH}")
    a("s_lshl_b32 s44, s34, 8")
    a("s_add_u32 s41, s41, s44")
    a(f"v_add_u32 v{vB}, s41, v10")
    vZ = 242
    a("v_lshlrev_b32 v10, 6, v11")
    a("v_lshl_add_u32 v10, v9, 4, v10")
    a("v_and_b32 v12, 1, v8")
    a(f"v_lshl_add_u32 v{vZ}, v12, 3, v10")
    a("s_lshl_b32 s45, s35, 12")
    a(f"s_add_u32 s45, s45, {WS_Z}")
    vD0 = 243
    a("v_lshlrev_b32 v10, 2, v9")
    a("v_sub_u32 v10, v8, v10")
    a("s_lshl_b32 s41, s34, 6")
    a("s_sub_u32 s41, s41, 3")
    a(f"v_add_u32 v{vD0}, s41, v10")
    AD = 244
    a(E.vm.drain())
    for i in range(4):
        a(f"v_add_u32 v10, {i}, v{vD0}")
        a("v_cmp_eq_u32 vcc, 0, v10")
        a(f"v_max_i32 v11, 0, v10")
        a(f"v_lshl_add_u32 v{248+i}, v11, 2, s40")
        a(f"v_cndmask_b32 v{AD+i}, 0, v6, vcc")
    ST.stamp("loaded", E)
    a(E.lg.drain())
    a("s_barrier")
    ST.stamp("bar")
    ACC = 0
    def FA(buf, i): return 32 + buf * 64 + i * 4
    def FB(buf, i): return 64 + buf * 64 + i * 4
    def reads(bl):
        o = []
        for i in range(8):
            o.append(dict(i=f"ds_read_b128 {v(FB(bl&1,i),4)}, v{vB} offset:{bl*64 + (7-i)*512}", lds=("B", bl, i)))
            if bl == 0 and i == 0:
                for k in range(4):
                    o.append(dict(i=f"ds_read_b32 v{FA(0,0)+k}, v{248+k}", lds=("A", 0, 0)))
            else:
                o.append(dict(i=f"ds_read_b128 {v(FA(bl&1,i),4)}, v{vA} offset:{bl*64 + i*512}", lds=("A", bl, i)))
        return o
    E.run(reads(0))
    for k in range(4):
        a(f"v_add_u32 v{248+k}, {k}, v{vD0}")
        a(f"v_cmp_le_i32 vcc, 0, v{248+k}")
        a("s_nop 1")
        E.one(dict(i=f"v_cndmask_b32 v{FA(0,0)+k}, 0, v{FA(0,0)+k}, vcc", needl=[("A", 0, 0)]))
    for n in range(8):
        E.one(dict(i=f"{M16} {v(ACC+4*n,4)}, {v(AD,4)}, {v(FB(0,n),4)}, 0", needl=[("B", 0, n)]))
    for bl in range(4):
        nxt = reads(bl + 1) if bl < 3 else []
        pairs = sorted([(aa, mu) for aa in range(8) for mu in range(8) if aa + mu <= 7], key=lambda x: (max(x), x[0] + x[1]))
        for idx, (aa, mu) in enumerate(pairs):
            n = aa + mu
            E.one(dict(i=f"{M16} {v(ACC+4*n,4)}, {v(FA(bl&1,aa),4)}, {v(FB(bl&1,mu),4)}, {v(ACC+4*n,4)}", needl=[("A", bl, aa), ("B", bl, mu)]))
            if idx >= 4 and idx % 2 == 0 and nxt:
                E.one(nxt.pop(0))
        E.run(nxt)
    ST.stamp("mfma done", E)
    a("s_barrier")
    a(f"s_lshl_b32 s41, s32, 12")
    a(f"s_add_u32 s41, s41, {KB}")
    a("v_and_b32 v250, 63, v0") if False else None
    a(f"v_mbcnt_lo_u32_b32 v250, -1, 0")
    a(f"v_mbcnt_hi_u32_b32 v250, -1, v250")
    a("v_lshlrev_b32 v250, 4, v250")
    a("v_add_u32 v251, s41, v250")
    a("s_xor_b32 s41, s32, 4")
    a("s_lshl_b32 s41, s41, 12")
    a(f"s_add_u32 s41, s41, {KB}")
    a("v_add_u32 v252, s41, v250")
    Lb1, Lj = a.newlabel("Lb1"), a.newlabel("Lj")
    a("s_cmp_lg_u32 s34, 0")
    a(f"s_cbranch_scc1 {Lb1}")
    for bh in range(2):
        if bh: a.label(Lb1)
        keep = range(4 * bh, 4 * bh + 4); send = range(4 - 4 * bh, 8 - 4 * bh)
        for i, n in enumerate(send):
            a(f"ds_write_b128 v251, {v(ACC+4*n,4)} offset:{i*1024}")
        a("s_waitcnt lgkmcnt(0)")
        a("s_barrier")
        for i in range(4):
            a(f"ds_read_b128 {v(32+4*i,4)}, v252 offset:{i*1024}")
        for i, n in enumerate(keep):
            a(f"s_waitcnt lgkmcnt({3-i})")
            for r in range(4): a(f"v_add_f32 v{ACC+4*n+r}, v{ACC+4*n+r}, v{32+4*i+r}")
            a(f"v_cvt_pk_bf16_f32 v{48+2*i}, v{ACC+4*n}, v{ACC+4*n+1}")
            a(f"v_cvt_pk_bf16_f32 v{49+2*i}, v{ACC+4*n+2}, v{ACC+4*n+3}")
            a(f"buffer_store_dwordx2 {v(48+2*i,2)}, v{vZ}, s[20:23], s45 offen offset:{n*512}")
        if bh == 0: a(f"s_branch {Lj}")
    a.label(Lj)
    if opt.get("stamps"): a("s_waitcnt vmcnt(0)")
    ST.stamp("end"); ST.cyc(1)
    ST.flush(20, 32)
    a.label(Lend)
    a("s_endpgm")

LDS_COMB = 8192
def gen_comb(a, opt=None, nsl=16):
    opt = opt or {}
    ST = Stamps(a, opt.get("stamps"), 2)
    Lend = a.newlabel("Lcomb_end")
    a("s_cmp_ge_u32 s2, 288")
    a(f"s_cbranch_scc1 {Lend}")
    ST.stamp("start"); ST.cyc(0)
    a("s_load_dwordx2 s[4:5], s[0:1], 0")
    a("s_load_dwordx2 s[6:7], s[0:1], 80")
    a("s_load_dwordx2 s[30:31], s[0:1], 96")
    a("s_and_b32 s32, s2, 31")
    a("s_lshr_b32 s33, s2, 5")
    a("v_lshrrev_b32 v1, 6, v0")
    a("v_and_b32 v2, 7, v0")
    a("v_bfe_u32 v3, v0, 3, 3")
    a("v_lshl_add_u32 v4, v1, 3, v2")
    a("v_lshrrev_b32 v5, 5, v4")
    a("v_mul_u32_u24 v5, 36864, v5")
    a("v_lshl_add_u32 v5, v3, 9, v5")
    a("v_and_b32 v6, 31, v4")
    a("v_lshl_add_u32 v5, v6, 4, v5")
    a("s_mul_i32 s34, s32, 73728")
    a("s_lshl_b32 s35, s33, 12")
    a("s_add_u32 s34, s34, s35")
    a("s_lshl_b32 s35, s32, 6")
    a("v_add_u32 v6, s35, v4")
    a("v_mul_u32_u24 v7, 1152, v6")
    a("v_lshl_add_u32 v7, v3, 4, v7")
    a("s_lshl_b32 s36, s33, 7")
    a("v_lshlrev_b32 v8, 3, v6")
    a("v_lshrrev_b32 v9, 3, v0")
    a("v_lshlrev_b32 v10, 12, v9")
    a("v_lshl_add_u32 v10, v2, 4, v10")
    a("s_lshl_b32 s37, s33, 18")
    a("s_lshl_b32 s38, s32, 7")
    a("s_add_u32 s37, s37, s38")
    a(f"s_add_u32 s37, s37, {WS_Z}")
    a(f"s_mov_b32 s38, {WS_STATS}")
    a("s_waitcnt lgkmcnt(0)")
    srd(a, 8, 4, XBYTES); srd(a, 12, 6, XBYTES); srd(a, 20, 30, WS_END)
    a("buffer_load_dwordx4 v[12:15], v10, s[20:23], s37 offen")
    a("buffer_load_dwordx4 v[16:19], v7, s[8:11], s36 offen")
    a("buffer_load_dwordx2 v[20:21], v8, s[20:23], s38 offen")
    P = 48
    for sl in range(nsl):
        a(f"buffer_load_dwordx4 {v(P+4*sl,4)}, v5, s[20:23], s34 offen")
        if sl < nsl - 1: a(f"s_add_u32 s34, s34, {SLICE}")
    a("v_xor_b32 v11, v2, v1")
    a("v_lshlrev_b32 v11, 4, v11")
    a("v_lshl_add_u32 v11, v9, 7, v11")
    a("v_xor_b32 v22, v1, v3")
    a("v_lshlrev_b32 v22, 4, v22")
    a("v_lshl_add_u32 v22, v3, 10, v22")
    a("v_and_b32 v23, 1, v2")
    a("v_lshl_add_u32 v22, v23, 3, v22")
    a("v_and_b32 v23, 6, v2")
    a("v_add_u32 v22, v22, v23")
    Z, AC = 24, 32
    for j in range(8):
        a(f"v_mov_b32 v{Z+j}, 0"); a(f"v_mov_b32 v{AC+j}, 0")
    a("s_mov_b32 s40, 0x00003f80")
    a("s_mov_b32 s41, 0x3f800000")
    a(f"s_waitcnt vmcnt({nsl+2})")
    ST.stamp("z landed")
    a("ds_write_b128 v11, v[12:15]")
    a("s_waitcnt lgkmcnt(0)")
    a("s_barrier")
    for j in range(8):
        a(f"ds_read_u16_d16_hi v{Z+j}, v22 offset:{j*128}")
    a(f"s_waitcnt vmcnt({nsl})")
    X = 40
    for k in range(4):
        a(f"v_lshlrev_b32 v{X+2*k}, 16, v{16+k}")
        a(f"v_and_b32 v{X+2*k+1}, 0xffff0000, v{16+k}")
    a("s_waitcnt lgkmcnt(0)")
    for j in range(8):
        a(f"v_sub_f32 v12, v{X+j}, v20")
        a(f"v_mul_f32 v12, v12, v21")
        a(f"v_fmac_f32 v{X+j}, v12, v{Z+j}")
    for sl in range(nsl):
        a(f"s_waitcnt vmcnt({nsl-1-sl})")
        for k in range(4):
            a(f"v_dot2c_f32_bf16 v{AC+2*k}, s40, v{P+4*sl+k}")
            a(f"v_dot2c_f32_bf16 v{AC+2*k+1}, s41, v{P+4*sl+k}")
    a(f"s_mov_b32 s42, {f32(LN2)}")
    a("s_nop 1")
    for j in range(8): a(f"v_fmac_f32 v{X+j}, s42, v{AC+j}")
    for k in range(4): a(f"v_cvt_pk_bf16_f32 v{12+k}, v{X+2*k}, v{X+2*k+1}")
    ST.stamp("all landed")
    a("buffer_store_dwordx4 v[12:15], v7, s[12:15], s36 offen")
    if opt.get("stamps"):
        a("s_waitcnt vmcnt(0)")
        a("v_readfirstlane_b32 s43, v1")
    ST.stamp("end"); ST.cyc(1)
    ST.flush(20, 43)
    a.label(Lend)
    a("s_endpgm")
```

```python
from common import *

RING = 0
ACT = 73728
BIAS = 147456
LDS_MLP = 147456 + 1280

def XF(mt16, ks): return mt16 * 72 + ks * 4
def AFR(mu, kap): return mu * 36 + kap * 4
ACC = 144; PEND = 160; FR = 176; BI = 200; AO = 208; TM = 216
RA = [228, 229, 230, 231]
vW1, vW2, vW2x, vACTW, vBIAS, vST, vRB, vL16 = 232, 233, 234, 235, 236, 237, 238, 239
T0 = 240
sX, sW1, sW2, sWS, sB1 = 8, 12, 16, 20, 24
sMT, sSL, sW, sMG, sPH, sFB, sFS, sHL, sODD = 28, 29, 30, 31, 32, 33, 34, 35, 36
sT = 46
sM0W = 60
sOFF = 61
sONES = 62
sW2A, sW2B = 63, 64
sST = 65
sOFF2 = 66

M16 = "v_mfma_f32_16x16x32_bf16"

class Emit:
    def __init__(self, a):
        self.a = a
        self.lg = Track(a, "lgkmcnt", 15)
        self.vm = Track(a, "vmcnt", 63)
    def run(self, items):
        for it in items:
            self.one(it)
    def one(self, it):
        if isinstance(it, str):
            self.a(it); return
        ws = []
        if it.get("needl"):
            w = self.lg.need(*it["needl"])
            if w: ws.append(w)
        if it.get("needv"):
            w = self.vm.need(*it["needv"])
            if w: ws.append(w)
        if len(ws) == 2:
            self.a("s_waitcnt " + ws[1].split()[1] + " " + ws[0].split()[1])
        elif ws: self.a(ws[0])
        if it.get("i"):
            if "lds" in it and len(self.lg.q) >= 15:
                n = 14
                self.lg.q = self.lg.q[-n:]
                self.a(f"s_waitcnt lgkmcnt({n})")
            self.a(it["i"])
        if "lds" in it: self.lg.issue(it["lds"])
        if "vm" in it: self.vm.issue(it["vm"])

def mish_group(src, dst, tm):
    e = [tm + k for k in range(4)]; q = [tm + 4 + k for k in range(4)]
    o = []
    for k in range(4): o.append(f"v_exp_f32 v{e[k]}, v{src+k}")
    for k in range(4): o.append(f"v_fma_f32 v{q[k]}, v{e[k]}, 0.5, 1.0")
    for k in range(4): o.append(f"v_fma_f32 v{q[k]}, v{e[k]}, v{q[k]}, 1.0")
    for k in range(4): o.append(f"v_rcp_f32 v{q[k]}, v{q[k]}")
    for k in range(4): o.append(f"v_fma_f32 v{e[k]}, -v{src+k}, v{q[k]}, v{src+k}")
    o.append(f"v_cvt_pk_bf16_f32 v{dst}, v{e[0]}, v{e[1]}")
    o.append(f"v_cvt_pk_bf16_f32 v{dst+1}, v{e[2]}, v{e[3]}")
    return o

def gen_mlp(a, opt=None):
    opt = opt or {}
    E = Emit(a)
    Lend = a.newlabel("Lmlp_end")
    a(f"s_cmp_ge_u32 s2, 256")
    a(f"s_cbranch_scc1 {Lend}")
    ST = Stamps(a, opt.get("stamps"), 0)
    ST.stamp("start"); ST.cyc(0)
    a("s_load_dwordx2 s[4:5], s[0:1], 0")
    a("s_load_dwordx4 s[40:43], s[0:1], 56")
    a("s_load_dwordx2 s[44:45], s[0:1], 72")
    a("s_load_dwordx2 s[6:7], s[0:1], 96")
    a(f"s_and_b32 s{sT}, s2, 3")
    a(f"s_lshl_b32 s{sT}, s{sT}, 2")
    a(f"s_bfe_u32 s{sT+1}, s2, 0x20003")
    a(f"s_add_u32 s{sSL}, s{sT}, s{sT+1}")
    a(f"s_bfe_u32 s{sT}, s2, 0x10002")
    a(f"s_lshl_b32 s{sT}, s{sT}, 3")
    a(f"s_lshr_b32 s{sT+1}, s2, 5")
    a(f"s_add_u32 s{sMT}, s{sT}, s{sT+1}")
    a(f"v_lshrrev_b32 v{T0}, 6, v0")
    a(f"v_and_b32 v{T0+1}, 63, v0")
    a(f"v_readfirstlane_b32 s{sW}, v{T0}")
    a(f"s_and_b32 s{sODD}, s{sSL}, 1")
    a(f"s_mul_i32 s{sT}, s{sSL}, 288")
    a(f"s_lshl_b32 s{sT+1}, s{sODD}, 5")
    a(f"s_add_u32 s{sFB}, s{sT}, s{sT+1}")
    a(f"s_xor_b32 s{sT+2}, s{sODD}, 1")
    a(f"s_lshl_b32 s{sT+2}, s{sT+2}, 8")
    a(f"s_add_u32 s{sFS}, s{sT}, s{sT+2}")
    a(f"s_sub_u32 s{sHL}, s{sFS}, s{sT+1}")
    a(f"s_and_b32 s{sMG}, s{sW}, 3")
    a(f"s_lshr_b32 s{sPH}, s{sW}, 2")
    a(f"s_lshl_b32 s{sM0W}, s{sW}, 10")
    a(f"s_mov_b32 s{sONES}, 0x3f803f80")
    lane = T0 + 1
    r8, u8 = T0 + 2, T0 + 3
    a(f"v_lshrrev_b32 v{r8}, 3, v{lane}")
    a(f"v_and_b32 v{u8}, 7, v{lane}")
    a(f"v_lshlrev_b32 v{vL16}, 4, v{lane}")
    a(f"s_lshl_b32 s{sT}, s{sMT}, 7")
    a(f"s_lshl_b32 s{sT+1}, s{sMG}, 5")
    a(f"s_add_u32 s{sT}, s{sT}, s{sT+1}")
    a(f"s_lshl_b32 s{sT+1}, s{sPH}, 3")
    a(f"s_add_u32 s{sT}, s{sT}, s{sT+1}")
    vROW, vXO = T0 + 4, T0 + 5
    a(f"v_add_u32 v{vROW}, s{sT}, v{r8}")
    a(f"v_mul_u32_u24 v{vXO}, 1152, v{vROW}")
    a(f"v_lshl_add_u32 v{vXO}, v{u8}, 4, v{vXO}")
    a(f"s_movk_i32 s{sT+2}, 18432")
    a("s_waitcnt lgkmcnt(0)")
    ST.stamp("kernarg")
    srd(a, sX, 4, XBYTES)
    RAW = [144, 180]
    for rho in range(2):
        for j in range(9):
            so = "0" if rho == 0 else f"s{sT+2}"
            E.one(dict(i=f"buffer_load_dwordx4 {v(RAW[rho]+4*j,4)}, v{vXO}, {s(sX,4)}, {so} offen offset:{128*j}", vm=("x", rho, j)))
    srd(a, sW1, 40, WBYTES)
    srd(a, sB1, 42, F * 2)
    srd(a, sW2, 44, WBYTES)
    srd(a, sWS, 6, WS_END)
    vBE, vBV = T0 + 6, T0 + 7
    a(f"v_subrev_u32 v{vBE}, 256, v0")
    a(f"v_lshrrev_b32 v{vBV}, 5, v{vBE}")
    a(f"v_and_b32 v{vBE}, 15, v{vBE}")
    a(f"v_lshl_add_u32 v{vBE}, v{vBV}, 4, v{vBE}")
    a(f"v_add_u32 v{vBE}, s{sFS}, v{vBE}")
    a(f"v_add_u32 v{vBV}, s{sFB}, v0")
    a(f"v_cmp_gt_u32 vcc, 256, v0")
    a(f"s_nop 1")
    a(f"v_cndmask_b32 v{vBE}, v{vBE}, v{vBV}, vcc")
    a(f"v_lshlrev_b32 v{vBE}, 1, v{vBE}")
    E.one(dict(i=f"buffer_load_ushort v{vBV}, v{vBE}, {s(sB1,4)}, 0 offen", vm="bias"))
    t1, t2 = T0 + 8, T0 + 9
    a(f"s_lshl_b32 s{sT}, s{sW}, 3")
    a(f"v_add_u32 v{t1}, s{sT}, v{r8}")
    a(f"v_mul_u32_u24 v{vW1}, 9216, v{t1}")
    a(f"v_bfe_u32 v{t1}, v{r8}, 1, 1")
    a(f"s_and_b32 s{sT}, s{sW}, 1")
    a(f"s_lshl_b32 s{sT}, s{sT}, 1")
    a(f"v_or_b32 v{t1}, s{sT}, v{t1}")
    a(f"v_lshlrev_b32 v{t1}, 1, v{t1}")
    a(f"v_xor_b32 v{t1}, v{t1}, v{u8}")
    a(f"v_lshl_add_u32 v{vW1}, v{t1}, 4, v{vW1}")
    def w1_dma(pair, t):
        o = []
        for i in range(3):
            gam = 3 * t + i
            base = sHL if pair == 4 else sFB
            add = gam * 64 * 9216 + (0 if pair == 4 else pair * 128)
            o.append(f"s_lshl_b32 s{sOFF}, s{base}, 1")
            o.append(f"s_add_u32 s{sOFF}, s{sOFF}, {add}")
            o.append(f"s_add_u32 m0, s{sM0W}, {RING + gam * 8192}")
            o.append("s_nop 0")
            o.append(dict(i=f"buffer_load_dwordx4 v{vW1}, {s(sW1,4)}, s{sOFF} offen lds", vm=("w1", pair, t)))
        return o
    for t in range(3): E.run(w1_dma(0, t))
    a(f"s_lshl_b32 s{sT}, s{sW}, 3")
    a(f"v_add_u32 v{t1}, s{sT}, v{r8}")
    a(f"v_mul_u32_u24 v{vW2}, 1152, v{t1}")
    a(f"v_and_b32 v{t1}, 6, v{r8}")
    a(f"v_xor_b32 v{t1}, v{t1}, v{u8}")
    a(f"v_lshl_add_u32 v{vW2}, v{t1}, 4, v{vW2}")
    a(f"s_lshl_b32 s{sT}, s{sW}, 2")
    a(f"v_add_u32 v{t1}, s{sT}, v{r8}")
    a(f"v_mul_u32_u24 v{vW2x}, 1152, v{t1}")
    a(f"v_and_b32 v{t1}, 6, v{t1}")
    a(f"v_xor_b32 v{t1}, v{t1}, v{u8}")
    a(f"v_lshl_add_u32 v{vW2x}, v{t1}, 4, v{vW2x}")
    a(f"s_mul_i32 s{sW2A}, s{sFB}, 1152")
    a(f"s_mul_i32 s{sW2B}, s{sFS}, 1152")
    g4, rp, c4 = T0 + 10, T0 + 11, T0 + 12
    a(f"v_lshrrev_b32 v{g4}, 4, v{lane}")
    a(f"v_bfe_u32 v{rp}, v{lane}, 2, 2")
    a(f"v_and_b32 v{c4}, 3, v{lane}")
    a(f"v_lshrrev_b32 v{t1}, 1, v{rp}")
    a(f"v_and_b32 v{t2}, 1, v{g4}")
    a(f"v_lshl_or_b32 v{t1}, v{t2}, 1, v{t1}")
    fsw = T0 + 13
    a(f"v_mov_b32 v{fsw}, v{t1}")
    a(f"s_lshl_b32 s{sT}, s{sPH}, 1")
    a(f"v_xor_b32 v{t1}, s{sT}, v{t1}")
    a(f"v_lshlrev_b32 v{t1}, 5, v{t1}")
    a(f"v_lshl_add_u32 v{t1}, v{g4}, 10, v{t1}")
    a(f"v_lshl_add_u32 v{t1}, v{rp}, 7, v{t1}")
    a(f"v_lshl_add_u32 v{RA[0]}, v{c4}, 3, v{t1}")
    if RING: a(f"v_add_u32 v{RA[0]}, {RING}, v{RA[0]}")
    a(f"v_xor_b32 v{RA[1]}, 32, v{RA[0]}")
    a(f"v_add_u32 v{RA[2]}, 0x8000, v{RA[0]}")
    a(f"v_add_u32 v{RA[3]}, 0x8000, v{RA[1]}")
    a(f"s_lshr_b32 s{sT}, s{sW}, 1")
    a(f"v_xor_b32 v{t1}, s{sT}, v{fsw}")
    a(f"v_lshlrev_b32 v{t1}, 5, v{t1}")
    a(f"v_lshl_add_u32 v{t1}, v{g4}, 9, v{t1}")
    a(f"v_lshl_add_u32 v{t1}, v{rp}, 7, v{t1}")
    a(f"v_lshl_add_u32 v{vRB}, v{c4}, 3, v{t1}")
    a(f"s_lshl_b32 s{sT}, s{sPH}, 7")
    a(f"s_add_u32 s{sT}, s{sT}, {BIAS}")
    a(f"v_lshl_add_u32 v{vBIAS}, v{g4}, 4, s{sT}")
    a(f"s_mul_i32 s{sT}, s{sMG}, 18432")
    a(f"s_lshl_b32 s{sT+1}, s{sPH}, 10")
    a(f"s_add_u32 s{sT}, s{sT}, s{sT+1}")
    a(f"s_add_u32 s{sT}, s{sT}, {ACT}")
    a(f"v_add_u32 v{vACTW}, s{sT}, v{vL16}")
    vXW = T0 + 14
    a(f"s_lshl_b32 s{sT}, s{sPH}, 3")
    a(f"v_add_u32 v{t1}, s{sT}, v{r8}")
    a(f"v_xor_b32 v{t1}, v{t1}, v{u8}")
    a(f"v_lshlrev_b32 v{t1}, 4, v{t1}")
    a(f"v_lshl_add_u32 v{t1}, v{u8}, 8, v{t1}")
    a(f"s_mul_i32 s{sT}, s{sMG}, 18432")
    a(f"s_add_u32 s{sT}, s{sT}, {ACT}")
    a(f"v_add_u32 v{vXW}, s{sT}, v{t1}")
    vXR0, vXR1 = T0 + 15, T0 + 8
    a(f"v_and_b32 v{t2}, 15, v{lane}")
    a(f"v_xor_b32 v{t2}, v{t2}, v{g4}")
    a(f"v_lshlrev_b32 v{t2}, 4, v{t2}")
    a(f"v_lshl_add_u32 v{t2}, v{g4}, 8, v{t2}")
    a(f"v_add_u32 v{vXR0}, s{sT}, v{t2}")
    a(f"v_xor_b32 v{vXR1}, 64, v{vXR0}")
    a(f"s_mul_i32 s{sST}, s{sSL}, {SLICE}")
    a(f"s_lshl_b32 s{sT}, s{sMT}, 2")
    a(f"s_and_b32 s{sT+1}, s{sW}, 1")
    a(f"s_lshl_b32 s{sT+1}, s{sT+1}, 1")
    a(f"s_add_u32 s{sT}, s{sT}, s{sT+1}")
    a(f"s_mul_i32 s{sT}, s{sT}, 36864")
    a(f"s_add_u32 s{sST}, s{sST}, s{sT}")
    a(f"s_lshr_b32 s{sT}, s{sW}, 1")
    a(f"s_lshl_b32 s{sT}, s{sT}, 10")
    a(f"s_add_u32 s{sST}, s{sST}, s{sT}")
    a(f"v_add_u32 v{vST}, s{sST}, v{vL16}")

    def ln_round(rho):
        o = []
        R = RAW[rho]
        s0, s1, q0, q1 = TM, TM + 1, TM + 2, TM + 3
        o += [f"v_mov_b32 v{s0}, 0", f"v_mov_b32 v{s1}, 0", f"v_mov_b32 v{q0}, 0", f"v_mov_b32 v{q1}, 0"]
        for j in range(9):
            for k in range(4):
                r = R + 4 * j + k
                o.append(dict(i=f"v_dot2c_f32_bf16 v{(s0, s1)[k & 1]}, s{sONES}, v{r}", needv=[("x", rho, j)]))
                o.append(f"v_dot2c_f32_bf16 v{(q0, q1)[k & 1]}, v{r}, v{r}")
        o += ["s_nop 2", f"v_add_f32 v{s0}, v{s0}, v{s1}", f"v_add_f32 v{q0}, v{q0}, v{q1}", "s_nop 0"]
        for dpp in ("quad_perm:[1,0,3,2]", "quad_perm:[2,3,0,1]", "row_half_mirror"):
            o += [f"v_add_f32_dpp v{s1}, v{s0}, v{s0} {dpp} row_mask:0xf bank_mask:0xf",
                  f"v_add_f32_dpp v{q1}, v{q0}, v{q0} {dpp} row_mask:0xf bank_mask:0xf", "s_nop 0"]
            s0, s1, q0, q1 = s1, s0, q1, q0
        mean, var, mb, rs = TM + 4, TM + 5, TM + 6, TM + 7
        o += [f"v_mul_f32 v{mean}, {f32(1.0/576)}, v{s0}",
              f"v_mul_f32 v{var}, {f32(1.0/576)}, v{q0}",
              f"v_fma_f32 v{var}, -v{mean}, v{mean}, v{var}",
              f"v_max_f32 v{var}, 0, v{var}",
              f"v_cvt_pk_bf16_f32 v{mb}, v{mean}, v{var}",
              f"v_and_b32 v{var}, 0xffff0000, v{mb}",
              f"v_lshlrev_b32 v{mb}, 16, v{mb}",
              f"v_add_f32 v{var}, {f32(1e-5)}, v{var}",
              f"v_cvt_pk_bf16_f32 v{var}, v{var}, v{var}",
              f"v_lshlrev_b32 v{var}, 16, v{var}",
              f"v_sqrt_f32 v{var}, v{var}",
              "s_nop 0",
              f"v_cvt_pk_bf16_f32 v{var}, v{var}, v{var}",
              f"v_lshlrev_b32 v{var}, 16, v{var}",
              f"v_rcp_f32 v{rs}, v{var}",
              "s_nop 0"]
        A, C = TM + 8, TM + 10
        o += [f"v_mul_f32 v{A}, {f32(LOG2E)}, v{rs}",
              f"v_mul_f32 v{C}, v{mb}, v{A}"]
        Ls = a.newlabel("Lst")
        o += [f"s_cmp_lg_u32 s{sSL}, 0", f"s_cbranch_scc1 {Ls}",
              f"v_cmp_eq_u32 vcc, 0, v{u8}",
              f"v_lshlrev_b32 v{mean}, 3, v{vROW}",
              f"v_add_u32 v{mean}, {WS_STATS + rho * 128}, v{mean}",
              f"s_and_saveexec_b64 s[{sT+4}:{sT+5}], vcc",
              f"buffer_store_dwordx2 {v(mb,2)}, v{mean}, {s(sWS,4)}, 0 offen",
              f"s_mov_b64 exec, s[{sT+4}:{sT+5}]",
              f"{Ls}:"]
        tp = [T0 + 10, T0 + 12]
        for n in range(36):
            r = R + n; t = tp[n & 1]
            o += [f"v_lshlrev_b32 v{t}, 16, v{r}", f"v_and_b32 v{t+1}, 0xffff0000, v{r}",
                  f"v_pk_fma_f32 {v(t,2)}, {v(t,2)}, {v(A,2)}, {v(C,2)} op_sel_hi:[1,0,0] neg_lo:[0,0,1] neg_hi:[0,0,1]",
                  f"v_cvt_pk_bf16_f32 v{r}, v{t}, v{t+1}"]
        return o
    def xn_write(rho):
        return [dict(i=f"ds_write_b128 v{vXW}, {v(RAW[rho]+4*j,4)} offset:{j*2048}", lds="xw") for j in range(9)]
    def xn_read(rho):
        return [dict(i=f"ds_read_b128 {v(XF(rho,ks),4)}, v{(vXR0, vXR1)[ks & 1]} offset:{ks*1024}", lds=("xf", rho)) for ks in range(18)]
    ST.stamp("issued")
    if opt.get("stamps"):
        E.one(dict(needv=[("x", 0, 8)])); ST.stamp("x0 landed")
    E.run(ln_round(0))
    ST.stamp("ln0")
    E.run(xn_write(0))
    a(f"v_lshlrev_b32 v{vBE}, 2, v0")
    E.one(dict(i=f"v_lshlrev_b32 v{vBV}, 16, v{vBV}", needv=["bias"]))
    a(f"v_mul_f32 v{vBV}, {f32(LOG2E)}, v{vBV}")
    a(f"v_cmp_gt_u32 vcc, 320, v0")
    a(f"s_and_saveexec_b64 s[{sT+4}:{sT+5}], vcc")
    E.one(dict(i=f"ds_write_b32 v{vBE}, v{vBV} offset:0", lds="bw") if False else f"v_add_u32 v{vBE}, {BIAS}, v{vBE}")
    E.one(dict(i=f"ds_write_b32 v{vBE}, v{vBV}", lds="bw"))
    a(f"s_mov_b64 exec, s[{sT+4}:{sT+5}]")
    a(E.lg.drain()); a("s_barrier")
    ST.stamp("bar0")
    E.run(xn_read(0))
    E.run(ln_round(1))
    ST.stamp("ln1", E)
    a(E.lg.drain()); a("s_barrier")
    E.run(xn_write(1))
    a(E.lg.drain())
    w = E.vm.need(("w1", 0, 0))
    if w: a(w)
    a("s_barrier")
    ST.stamp("bar2")
    E.run(xn_read(1))

    def frag(ks_global, aa): return FR + ((ks_global % 3) * 2 + aa) * 4
    def a_reads(pair, ks):
        o = []
        for aa in range(2 if pair < 4 else 1):
            f = frag(ks, aa)
            hi = ks >= 8
            off = ks * 4096 - (0x8000 if hi else 0)
            for nu in range(2):
                o.append(dict(i=f"ds_read_b64_tr_b16 {v(f+2*nu,2)}, v{RA[aa + 2*hi]} offset:{off + nu*512}", lds=("A", pair, ks, aa)))
        return o
    def bias_reads(pair):
        return [dict(i=f"ds_read_b128 {v(BI+4*aa,4)}, v{vBIAS} offset:{pair*256 + aa*64}", lds=("B", pair)) for aa in range(2 if pair < 4 else 1)]
    def mish_pair(pair):
        o = []
        for mt16 in range(2):
            for aa in range(2):
                o += mish_group(PEND + (aa * 2 + mt16) * 4, AO + mt16 * 4 + aa * 2, TM)
            o.append(dict(i=f"ds_write_b128 v{vACTW}, {v(AO+mt16*4,4)} offset:{mt16*9216 + pair*2048}", lds="aw"))
        return o
    def w2_dma(st):
        slot = (st % 4) * 36864
        o = []
        for n in range(4):
            o.append(f"s_add_u32 s{sOFF}, s{sW2A}, {n * 64 * 1152 + st * 128}")
            o.append(f"s_add_u32 m0, s{sM0W}, {slot + n * 8192}")
            o.append("s_nop 0")
            o.append(dict(i=f"buffer_load_dwordx4 v{vW2}, {s(sW2,4)}, s{sOFF} offen lds", vm=("w2", st)))
        o.append(f"s_add_u32 s{sOFF}, s{sW2B}, {st * 128}")
        o.append(f"s_lshr_b32 s{sT}, s{sM0W}, 1")
        o.append(f"s_add_u32 m0, s{sT}, {slot + 32768}")
        o.append("s_mov_b32 exec_hi, 0")
        o.append(dict(i=f"buffer_load_dwordx4 v{vW2x}, {s(sW2,4)}, s{sOFF} offen lds", vm=("w2", st)))
        o.append("s_mov_b32 exec_hi, -1")
        return o

    E.run(bias_reads(0))
    E.run(a_reads(0, 0)); E.run(a_reads(0, 1))
    for pair in range(5):
        na = 2 if pair < 4 else 1
        side = mish_pair(pair - 1) if pair > 0 else []
        nslots = 16 * 2 * na
        sidx = 0; slot = 0
        pend_dma = []
        for ks in range(18):
            if ks + 2 < 18: nxt = a_reads(pair, ks + 2)
            elif pair < 4: nxt = a_reads(pair + 1, ks + 2 - 18)
            else: nxt = []
            boundary = (ks % 6 == 4)
            t = ks // 6
            mf = []
            for aa in range(na):
                for mt16 in range(2):
                    acc = ACC + (aa * 2 + mt16) * 4
                    src = v(BI + 4 * aa, 4) if ks == 0 else v(acc, 4)
                    dst = PEND + (aa * 2 + mt16) * 4 if (ks == 17 and pair < 4) else acc
                    nl = [("A", pair, ks, aa)]
                    if ks == 0: nl.append(("B", pair))
                    if pair == 0: nl.append(("xf", mt16))
                    mf.append(dict(i=f"{M16} {v(dst,4)}, {v(frag(ks,aa),4)}, {v(XF(mt16,ks),4)}, {src}", needl=nl))
            if pair == 3 and ks == 15:
                E.run([f"s_lshl_b32 s{sT}, s{sODD}, 1", f"s_add_u32 s{sT}, s{sT}, s{sPH}", f"s_lshl_b32 s{sT+1}, s{sPH}, 1",
                       f"s_xor_b32 s{sT}, s{sT}, s{sT+1}", f"s_lshl_b32 s{sT+3}, s{sT}, 5",
                       f"v_xor_b32 v{RA[0]}, s{sT+3}, v{RA[0]}"])
            if pair == 4 and ks == 0:
                E.run([f"v_xor_b32 v{RA[2]}, s{sT+3}, v{RA[2]}"])
            nm = len(mf)
            for mi, m in enumerate(mf):
                E.one(m)
                if boundary and mi == nm // 2 - 1:
                    last = [("A", pair, 6 * t + 5, aa) for aa in range(na)]
                    nst = ("w1", pair, t + 1) if t < 2 else ("w1", pair + 1, 0)
                    if not (pair == 4 and t == 2):
                        E.one(dict(needl=last, needv=[nst]))
                        a("s_barrier")
                        if t == 0 or pair == 0: ST.stamp(f"g1 p{pair} t{t}", E)
                        if pair < 4: pend_dma = w1_dma(pair + 1, t)
                        elif t == 1: pend_dma = w2_dma(0)
                if boundary:
                    if mi >= nm // 2 - 1:
                        k = mi - (nm // 2 - 1)
                        per = (len(nxt) + (nm - nm // 2)) // (nm - nm // 2 + 1) if nxt else 0
                        E.run(nxt[k * per:(k + 1) * per] if mi < nm - 1 else nxt[k * per:])
                else:
                    per = (len(nxt) + nm - 1) // nm
                    E.run(nxt[mi * per:(mi + 1) * per])
                if 1 <= ks <= 16:
                    slot += 1
                    want = slot * len(side) // nslots
                    E.run(side[sidx:want]); sidx = want
                if pend_dma:
                    n = 0
                    while n < len(pend_dma) and isinstance(pend_dma[n], str): n += 1
                    n += 1
                    if n < len(pend_dma) and isinstance(pend_dma[n], str) and "exec_hi, -1" in pend_dma[n]: n += 1
                    E.run(pend_dma[:n]); pend_dma = pend_dma[n:]
            if ks == 8 and pair < 4: E.run(bias_reads(pair + 1))
        E.run(pend_dma)
        assert sidx == len(side)
    a("s_nop 7")
    a(f"s_mul_i32 s{sT}, s{sPH}, {1024 - 8}")
    a(f"v_subrev_u32 v{vACTW}, s{sT}, v{vACTW}")
    for mt16 in range(2):
        E.run(mish_group(ACC + mt16 * 4, AO + mt16 * 2, TM))
        E.one(dict(i=f"ds_write_b64 v{vACTW}, {v(AO+mt16*2,2)} offset:{mt16*9216 + 8*1024}", lds="aw"))
    a(E.lg.drain())
    w = E.vm.need(("w2", 0))
    if w: a(w)
    a("s_barrier")
    ST.stamp("g2 start", E)
    E.run(w2_dma(1))
    vAR = T0
    a(f"s_and_b32 s{sT}, s{sW}, 1")
    a(f"s_mul_i32 s{sT}, s{sT}, 36864")
    a(f"s_add_u32 s{sT}, s{sT}, {ACT}")
    a(f"v_add_u32 v{vAR}, s{sT}, v{vL16}")
    vRBs = [vRB, T0 + 1, T0 + 2, T0 + 3]
    for k in range(1, 4): a(f"v_add_u32 v{vRBs[k]}, {k*36864}, v{vRB}")
    def frag2(kap): return FR + (kap % 3) * 4
    def b_reads(st, kap):
        f = frag2(kap)
        return [dict(i=f"ds_read_b64_tr_b16 {v(f+2*nu,2)}, v{vRBs[st % 4]} offset:{kap*4096 + nu*2048}", lds=("W", st, kap)) for nu in range(2)]
    def act_reads(kap):
        return [dict(i=f"ds_read_b128 {v(AFR(mu,kap),4)}, v{vAR} offset:{mu*9216 + kap*1024}", lds=("act", kap)) for mu in range(4)]
    def epilogue(st):
        o = []
        for pr in range(2):
            p = AO + pr * 4
            for mu in range(2):
                src = PEND + (pr * 2 + mu) * 4
                o.append(f"v_cvt_pk_bf16_f32 v{p+2*mu}, v{src}, v{src+1}")
                o.append(f"v_cvt_pk_bf16_f32 v{p+2*mu+1}, v{src+2}, v{src+3}")
        o2 = []
        for pr in range(2):
            p = AO + pr * 4
            o2.append(f"v_permlane16_swap_b32 v{p}, v{p+2}")
            o2.append(f"v_permlane16_swap_b32 v{p+1}, v{p+3}")
        o3 = []
        for pr in range(2):
            p = AO + pr * 4
            o3.append(f"s_mov_b32 s{sOFF2}, {pr * 36864 + st * 4096}")
            o3.append(dict(i=f"buffer_store_dwordx4 {v(p,4)}, v{vST}, {s(sWS,4)}, s{sOFF2} offen {opt.get('stmod','sc1')}", vm=("st", st)))
        return o + ["s_nop 1"] + o2 + o3
    E.run(b_reads(0, 0)); E.run(act_reads(0)); E.run(b_reads(0, 1)); E.run(act_reads(1))
    for st in range(9):
        side = epilogue(st - 1) if st > 0 else []
        sidx = 0; slot = 0; nslots = 20
        pend_dma = []
        for kap in range(9):
            if kap + 2 < 9: nxt = b_reads(st, kap + 2) + (act_reads(kap + 2) if st == 0 else [])
            elif st < 8: nxt = b_reads(st + 1, kap + 2 - 9)
            else: nxt = []
            boundary = (kap == 7 and st < 8)
            for mu in range(4):
                acc = ACC + mu * 4
                src = "0" if kap == 0 else v(acc, 4)
                dst = PEND + mu * 4 if kap == 8 else acc
                nl = [("W", st, kap)] + ([("act", kap)] if st == 0 else [])
                E.one(dict(i=f"{M16} {v(dst,4)}, {v(frag2(kap),4)}, {v(AFR(mu,kap),4)}, {src}", needl=nl))
                if boundary:
                    if mu == 1:
                        E.one(dict(needl=[("W", st, 8), ("act", 8)], needv=[("w2", st + 1)]))
                        a("s_barrier")
                        ST.stamp(f"g2 st{st}", E)
                        if st == 0: pend_dma = w2_dma(2) + w2_dma(3) + w2_dma(4)
                        elif st + 4 <= 8: pend_dma = w2_dma(st + 4)
                        E.run(nxt)
                else:
                    per = (len(nxt) + 3) // 4
                    E.run(nxt[mu * per:(mu + 1) * per])
                if 2 <= kap <= 6:
                    slot += 1
                    want = slot * len(side) // nslots
                    E.run(side[sidx:want]); sidx = want
                if pend_dma:
                    n = 0
                    while n < len(pend_dma) and isinstance(pend_dma[n], str): n += 1
                    n += 1
                    if n < len(pend_dma) and isinstance(pend_dma[n], str) and "exec_hi, -1" in pend_dma[n]: n += 1
                    E.run(pend_dma[:n]); pend_dma = pend_dma[n:]
        E.run(pend_dma)
        assert sidx == len(side)
    a("s_nop 7")
    E.run(epilogue(8))
    ST.stamp("issued last", E)
    if opt.get("stamps"): a("s_waitcnt vmcnt(0)")
    ST.stamp("end"); ST.cyc(1)
    ST.flush(sWS, sW)
    a.label(Lend)
    a("s_endpgm")
```

```python
import sys
from gen import *
import k_all
NAME = "parallel_sum__ssm_conv_h3__dense_activation_mish__prompt_kernel"
def build1(opt, out):
    head = [l for l in open(REF).read().split("\n") if l.startswith(";") and "@launch" not in l]
    txt = "\n".join(head) + f"\n; @launch grid=(256,1,1) block=(512,1,1) lds={k_all.LDS_ALL}\n"
    txt += '.amdgcn_target "amdgcn-amd-amdhsa--gfx950"\n.text\n'
    a = Asm()
    a.lines.append(kernel_header(NAME).rstrip())
    k_all.gen_all(a, opt)
    txt += a.text() + '.section .rodata,"a"\n' + kernel_desc(NAME, 256)
    open(out, "w").write(txt)
if __name__ == "__main__":
    build1({}, "v5.s")
    build1({"stamps": 1}, "v5s.s")
    build1({"stamps": 2}, "v5c.s")
    build1({"stamps": 1, "b1": 3}, "e1.s")
    build1({"stamps": 1, "b1": 5}, "e2.s")
```

```python
from common import *
from k_mlp import Emit, M16, mish_group

RING = 0
ACT = 73728
STAT = 147456
BIAS = STAT + 1024
BNC = BIAS + 1280
LDS_ALL = 163840
KB = 36864; KCH = 16640; KCP = [0, 4096 + 80, 8192 + 144, 12288 + 208]
UB = 110592; UCH = 9216; UCP = 4576
XS = 0

def XF(mt16, ks): return mt16 * 72 + ks * 4
def AFR(mu, kap): return mu * 36 + kap * 4
ACC = 144; PEND = 160; FR = 176; BI = 208; TM = 216; AO = 244
RA = [228, 229, 230, 231]
vW1, vW2, vJUNK, vACTW, vBIAS, vST, vRB, vL16 = 232, 233, 234, 235, 236, 237, 238, 239
T0 = 240
PH2 = [224, 252]
vACTH = 243
vTID = 242
sX, sW1, sW2, sWS = 8, 12, 16, 20
sA, sB, sC, sD, sDBG = 24, 40, 44, 48, 52
sMT, sSL, sW, sMG, sPH, sFB, sFS, sHL, sODD = 28, 29, 30, 31, 32, 33, 34, 35, 36
sFB2, sHL2, sXH = 37, 38, 39
sT = 56
sEX = 60
sOFF, sONES, sW2A, sW2B, sM0G, sOFF2 = 62, 63, 64, 65, 66, 67
sXR1, sTB, sCNT = 3, 4, 5
sTAG = 6
TAGL = BNC
PBN = ACT + 49152

HPOS = 1
def is_half(T): return T == HPOS
def pair_of(T): return T if T < HPOS else T - 1
KORD = [8, 0, 1, 2, 3, 4, 5, 6, 7]
OOB = "0x7ffffff0"

def spread(main, side):
    out = []; k = 0; n = len(main)
    for i, m in enumerate(main):
        out.append(m)
        want = (i + 1) * len(side) // n
        while k < want:
            out.extend(side[k]); k += 1
    for g in side[k:]: out.extend(g)
    return out
def flat(groups): return [x for g in groups for x in g]
def srd2(a, d, nbytes):
    a(f"s_and_b32 s{d+1}, s{d+1}, 0xffff")
    a(f"s_mov_b32 s{d+2}, {nbytes}")
    a(f"s_mov_b32 s{d+3}, 0x00020000")

def gen_all(a, opt=None):
    opt = opt or {}
    E = Emit(a)
    Lend = a.newlabel("Lend")
    a("s_cmp_ge_u32 s2, 256")
    a(f"s_cbranch_scc1 {Lend}")
    ST = Stamps(a, opt.get("stamps"), 0)
    ST.stamp("start"); ST.cyc(0)
    for d, off in ((sX, 0), (sW1, 56), (sA, 64), (sW2, 72), (sWS, 96), (sB, 8), (sC, 16), (sD, 24), (sDBG, 88)):
        a(f"s_load_dwordx2 s[{d}:{d+1}], s[0:1], {off}")
    lane, r8, u8 = T0 + 1, T0 + 2, T0 + 3
    a(f"v_lshrrev_b32 v{T0}, 6, v0")
    a(f"v_and_b32 v{lane}, 63, v0")
    a(f"v_readfirstlane_b32 s{sW}, v{T0}")
    a(f"s_and_b32 s{sT}, s2, 3")
    a(f"s_lshl_b32 s{sT}, s{sT}, 2")
    a(f"s_bfe_u32 s{sT+1}, s2, 0x20003")
    a(f"s_add_u32 s{sSL}, s{sT}, s{sT+1}")
    a(f"s_bfe_u32 s{sT}, s2, 0x10002")
    a(f"s_lshl_b32 s{sT}, s{sT}, 3")
    a(f"s_lshr_b32 s{sT+1}, s2, 5")
    a(f"s_add_u32 s{sMT}, s{sT}, s{sT+1}")
    a(f"s_and_b32 s{sMG}, s{sW}, 3")
    a(f"s_lshr_b32 s{sPH}, s{sW}, 2")
    a(f"v_lshrrev_b32 v{r8}, 3, v{lane}")
    a(f"v_and_b32 v{u8}, 7, v{lane}")
    a(f"s_lshl_b32 s{sT+1}, s{sMG}, 5")
    a(f"s_lshl_b32 s{sT+2}, s{sPH}, 3")
    a(f"s_add_u32 s{sT+1}, s{sT+1}, s{sT+2}")
    a(f"s_lshl_b32 s{sT}, s{sMT}, 7")
    a(f"s_add_u32 s{sT}, s{sT}, s{sT+1}")
    vSTW, vXO = T0 + 4, T0 + 5
    a(f"v_add_u32 v{vXO}, s{sT}, v{r8}")
    a(f"v_mul_u32_u24 v{vXO}, 1152, v{vXO}")
    a(f"v_lshl_add_u32 v{vXO}, v{u8}, 4, v{vXO}")
    a(f"v_add_u32 v{vSTW}, s{sT+1}, v{r8}")
    a(f"v_lshlrev_b32 v{vSTW}, 3, v{vSTW}")
    a(f"v_add_u32 v{vSTW}, {STAT}, v{vSTW}")
    a(f"s_movk_i32 s{sXR1}, 18432")
    a(f"s_lshl_b32 s{sTB}, s{sMT}, 4")
    a(f"s_add_u32 s{sTB}, s{sTB}, s{sSL}")
    if opt.get("ctouch", 1):
        Lc = a.newlabel("Lct")
        a(f"s_cmp_lg_u32 s{sW}, 3")
        a(f"s_cbranch_scc1 {Lc}")
        a(f"s_getpc_b64 s[{sT}:{sT+1}]")
        Lh = a.newlabel("Lhere"); a.label(Lh)
        a(f"s_bfe_u32 s{sT+2}, s2, 0x30003")
        a(f"s_lshl_b32 s{sT+2}, s{sT+2}, 13")
        a(f"v_lshl_add_u32 v47, v{lane}, 7, s{sT+2}")
        a(f"v_min_u32 v47, {Lend}-{Lh}, v47")
        a(f"global_load_dword v{vJUNK}, v47, s[{sT}:{sT+1}]")
        a.label(Lc)
    a("s_waitcnt lgkmcnt(0)")
    srd2(a, sX, XBYTES)
    RAW = [144, 180]
    def x_load(rho, j):
        so = "0" if rho == 0 else f"s{sXR1}"
        return dict(i=f"buffer_load_dwordx4 {v(RAW[rho]+4*j,4)}, v{vXO}, {s(sX,4)}, {so} offen offset:{128*j}", vm=("x", rho, j))
    srd2(a, sWS, WS_END)
    Lr = a.newlabel("Ltag")
    a(f"s_lshl_b32 s{sT}, s2, 3")
    a(f"s_add_u32 s{sT}, s{sT}, s{sW}")
    a(f"s_cmp_lg_u32 s{sT}, 7")
    a(f"s_cbranch_scc1 {Lr}")
    srd2(a, sDBG, 256)
    a(f"s_memrealtime s[{sT}:{sT+1}]")
    a(f"v_mov_b32 v1, {OOB}")
    a("v_writelane_b32 v1, 0, 0")
    a("s_waitcnt lgkmcnt(0)")
    a(f"s_lshl_b64 s[{sT}:{sT+1}], s[{sT}:{sT+1}], 4")
    a(f"s_bitset1_b32 s{sT+1}, 31")
    a(f"v_mov_b32 v2, s{sT}")
    a(f"v_mov_b32 v3, s{sT+1}")
    a(f"buffer_store_dwordx2 v[2:3], v1, {s(sDBG,4)}, 0 offen sc1")
    a.label(Lr)
    for j in range(9): E.one(x_load(0, j))
    ST.stamp("x0 issued")
    srd2(a, sW1, WBYTES); srd2(a, sA, F * 2); srd2(a, sW2, WBYTES)
    srd2(a, sB, XBYTES); srd2(a, sC, XBYTES); srd2(a, sD, 576 * 8); srd2(a, sDBG, 256)
    a(f"s_and_b32 s{sODD}, s{sSL}, 1")
    a(f"s_mul_i32 s{sT}, s{sSL}, 288")
    a(f"s_lshl_b32 s{sT+1}, s{sODD}, 5")
    a(f"s_add_u32 s{sFB}, s{sT}, s{sT+1}")
    a(f"s_xor_b32 s{sT+2}, s{sODD}, 1")
    a(f"s_lshl_b32 s{sT+2}, s{sT+2}, 8")
    a(f"s_add_u32 s{sFS}, s{sT}, s{sT+2}")
    a(f"s_sub_u32 s{sHL}, s{sFS}, s{sT+1}")
    a(f"s_lshl_b32 s{sFB2}, s{sFB}, 1")
    a(f"s_lshl_b32 s{sHL2}, s{sHL}, 1")
    a(f"s_lshl_b32 s{sM0G}, s{sMG}, 10")
    a(f"s_mov_b32 s{sONES}, 0x3f803f80")
    a(f"v_lshlrev_b32 v{vL16}, 4, v{lane}")
    t1, t2 = T0 + 8, T0 + 9
    a(f"s_lshl_b32 s{sT}, s{sMG}, 3")
    a(f"v_add_u32 v{t2}, s{sT}, v{r8}")
    a(f"v_mul_u32_u24 v{vW1}, 9216, v{t2}")
    a(f"v_bfe_u32 v{t1}, v{r8}, 1, 1")
    a(f"s_and_b32 s{sT}, s{sW}, 1")
    a(f"s_lshl_b32 s{sT}, s{sT}, 1")
    a(f"v_or_b32 v{t1}, s{sT}, v{t1}")
    a(f"v_lshlrev_b32 v{t1}, 1, v{t1}")
    a(f"v_xor_b32 v{t1}, v{t1}, v{u8}")
    a(f"v_lshl_add_u32 v{vW1}, v{t1}, 4, v{vW1}")
    a(f"v_mul_u32_u24 v{vW2}, 1152, v{t2}")
    a(f"v_and_b32 v{t1}, 6, v{r8}")
    a(f"v_xor_b32 v{t1}, v{t1}, v{u8}")
    a(f"v_lshl_add_u32 v{vW2}, v{t1}, 4, v{vW2}")
    a(f"s_mul_i32 s{sW2A}, s{sFB}, 1152")
    a(f"s_mul_i32 s{sW2B}, s{sFS}, 1152")
    vBE, vBV = T0 + 6, T0 + 7
    a(f"v_subrev_u32 v{vBE}, 256, v0")
    a(f"v_lshrrev_b32 v{vBV}, 5, v{vBE}")
    a(f"v_and_b32 v{vBE}, 15, v{vBE}")
    a(f"v_lshl_add_u32 v{vBE}, v{vBV}, 4, v{vBE}")
    a(f"v_add_u32 v{vBE}, s{sFS}, v{vBE}")
    a(f"v_add_u32 v{vBV}, s{sFB}, v0")
    a(f"v_cmp_gt_u32 vcc, 256, v0")
    g4, rp, c4, fsw = T0 + 10, T0 + 11, T0 + 12, T0 + 13
    a(f"v_lshrrev_b32 v{g4}, 4, v{lane}")
    a(f"v_bfe_u32 v{rp}, v{lane}, 2, 2")
    a(f"v_cndmask_b32 v{vBE}, v{vBE}, v{vBV}, vcc")
    a(f"v_lshlrev_b32 v{vBE}, 1, v{vBE}")
    a(f"v_and_b32 v{c4}, 3, v{lane}")
    a(f"v_lshrrev_b32 v{t1}, 1, v{rp}")
    a(f"v_and_b32 v{t2}, 1, v{g4}")
    a(f"v_lshl_or_b32 v{fsw}, v{t2}, 1, v{t1}")
    a(f"s_lshl_b32 s{sT}, s{sPH}, 1")
    a(f"v_xor_b32 v{t1}, s{sT}, v{fsw}")
    a(f"v_lshlrev_b32 v{t1}, 5, v{t1}")
    a(f"v_lshl_add_u32 v{t1}, v{g4}, 10, v{t1}")
    a(f"v_lshl_add_u32 v{t1}, v{rp}, 7, v{t1}")
    a(f"v_lshl_add_u32 v{RA[0]}, v{c4}, 3, v{t1}")
    a(f"v_xor_b32 v{RA[1]}, 32, v{RA[0]}")
    a(f"v_add_u32 v{RA[3]}, 0x8000, v{RA[1]}")
    a(f"v_add_u32 v{RA[2]}, 0x8000, v{RA[0]}")
    a(f"s_lshl_b32 s{sT}, s{sODD}, 1")
    a(f"s_add_u32 s{sT}, s{sT}, s{sPH}")
    a(f"s_lshl_b32 s{sT+1}, s{sPH}, 1")
    a(f"s_xor_b32 s{sT}, s{sT}, s{sT+1}")
    a(f"s_lshl_b32 s{sXH}, s{sT}, 5")
    a(f"s_lshr_b32 s{sT}, s{sW}, 1")
    a(f"v_xor_b32 v{t1}, s{sT}, v{fsw}")
    a(f"v_lshlrev_b32 v{t1}, 5, v{t1}")
    a(f"v_lshl_add_u32 v{t1}, v{g4}, 9, v{t1}")
    a(f"v_lshl_add_u32 v{t1}, v{rp}, 7, v{t1}")
    a(f"v_lshl_add_u32 v{vRB}, v{c4}, 3, v{t1}")
    a(f"s_lshl_b32 s{sT}, s{sPH}, 7")
    a(f"s_add_u32 s{sT}, s{sT}, {BIAS}")
    a(f"v_lshl_add_u32 v{vBIAS}, v{g4}, 4, s{sT}")
    a(f"s_lshl_b32 s{sT}, s{sMG}, 11")
    a(f"s_add_u32 s{sT}, s{sT}, {ACT + 8192}")
    a(f"v_add_u32 v{vACTW}, s{sT}, v{vL16}")
    a(f"s_mul_i32 s{sT}, s{sMG}, 18432")
    a(f"s_add_u32 s{sT}, s{sT}, {ACT}")
    vXW = T0 + 14
    a(f"s_lshl_b32 s{sT+1}, s{sPH}, 3")
    a(f"v_add_u32 v{t1}, s{sT+1}, v{r8}")
    a(f"v_xor_b32 v{t1}, v{t1}, v{u8}")
    a(f"v_lshlrev_b32 v{t1}, 4, v{t1}")
    a(f"v_lshl_add_u32 v{t1}, v{u8}, 8, v{t1}")
    a(f"v_add_u32 v{vXW}, s{sT}, v{t1}")
    vXR0, vXR1 = T0 + 15, T0 + 8
    a(f"v_and_b32 v{t2}, 15, v{lane}")
    a(f"v_xor_b32 v{t2}, v{t2}, v{g4}")
    a(f"v_lshlrev_b32 v{t2}, 4, v{t2}")
    a(f"v_lshl_add_u32 v{t2}, v{g4}, 8, v{t2}")
    a(f"v_add_u32 v{vXR0}, s{sT}, v{t2}")
    a(f"v_xor_b32 v{vXR1}, 64, v{vXR0}")
    a(f"s_mul_i32 s{sT+2}, s{sSL}, {SLICE}")
    a(f"s_lshl_b32 s{sT}, s{sMT}, 2")
    a(f"s_and_b32 s{sT+1}, s{sW}, 1")
    a(f"s_lshl_b32 s{sT+1}, s{sT+1}, 1")
    a(f"s_add_u32 s{sT}, s{sT}, s{sT+1}")
    a(f"s_mul_i32 s{sT}, s{sT}, 36864")
    a(f"s_add_u32 s{sT+2}, s{sT+2}, s{sT}")
    a(f"s_lshr_b32 s{sT}, s{sW}, 1")
    a(f"s_lshl_b32 s{sT}, s{sT}, 10")
    a(f"s_add_u32 s{sT+2}, s{sT+2}, s{sT}")
    a(f"v_add_u32 v{vST}, s{sT+2}, v{vL16}")

    A_, C_ = TM + 8, TM + 10
    def ln_stats(rho):
        o = []
        R = RAW[rho]
        s0, s1, q0, q1 = TM, TM + 1, TM + 2, TM + 3
        o += [f"v_mov_b32 v{s0}, 0", f"v_mov_b32 v{s1}, 0", f"v_mov_b32 v{q0}, 0", f"v_mov_b32 v{q1}, 0"]
        for j in range(9):
            for k in range(4):
                r = R + 4 * j + k
                o.append(dict(i=f"v_dot2c_f32_bf16 v{(s0, s1)[k & 1]}, s{sONES}, v{r}", needv=[("x", rho, j)]))
                o.append(f"v_dot2c_f32_bf16 v{(q0, q1)[k & 1]}, v{r}, v{r}")
        o += ["s_nop 2", f"v_add_f32 v{s0}, v{s0}, v{s1}", f"v_add_f32 v{q0}, v{q0}, v{q1}", "s_nop 0"]
        for dpp in ("quad_perm:[1,0,3,2]", "quad_perm:[2,3,0,1]", "row_half_mirror"):
            o += [f"v_add_f32_dpp v{s1}, v{s0}, v{s0} {dpp} row_mask:0xf bank_mask:0xf",
                  f"v_add_f32_dpp v{q1}, v{q0}, v{q0} {dpp} row_mask:0xf bank_mask:0xf", "s_nop 0"]
            s0, s1, q0, q1 = s1, s0, q1, q0
        mean, var, mb, rs = TM + 4, TM + 5, TM + 6, TM + 7
        o += [f"v_mul_f32 v{mean}, {f32(1.0/576)}, v{s0}",
              f"v_mul_f32 v{var}, {f32(1.0/576)}, v{q0}",
              f"v_fma_f32 v{var}, -v{mean}, v{mean}, v{var}",
              f"v_max_f32 v{var}, 0, v{var}",
              f"v_cvt_pk_bf16_f32 v{mb}, v{mean}, v{var}",
              f"v_and_b32 v{var}, 0xffff0000, v{mb}",
              f"v_lshlrev_b32 v{mb}, 16, v{mb}",
              f"v_add_f32 v{var}, {f32(1e-5)}, v{var}",
              f"v_cvt_pk_bf16_f32 v{var}, v{var}, v{var}",
              f"v_lshlrev_b32 v{var}, 16, v{var}",
              f"v_sqrt_f32 v{var}, v{var}",
              "s_nop 0",
              f"v_cvt_pk_bf16_f32 v{var}, v{var}, v{var}",
              f"v_lshlrev_b32 v{var}, 16, v{var}",
              f"v_rcp_f32 v{rs}, v{var}",
              "s_nop 0",
              f"v_mul_f32 v{A_}, {f32(LOG2E)}, v{rs}",
              f"v_mul_f32 v{C_}, v{mb}, v{A_}",
              dict(i=f"ds_write_b64 v{vSTW}, {v(mb,2)} offset:{rho*128}", lds="sw")]
        return o
    def ln_norm(rho):
        o = []
        R = RAW[rho]
        tp = [T0 + 10, T0 + 12]
        for j in range(9):
            for k in range(0, 4, 2):
                for kk in range(2):
                    r = R + 4 * j + k + kk; t = tp[kk]
                    o += [f"v_lshlrev_b32 v{t}, 16, v{r}", f"v_and_b32 v{t+1}, 0xffff0000, v{r}"]
                for kk in range(2):
                    t = tp[kk]
                    o.append(f"v_pk_fma_f32 {v(t,2)}, {v(t,2)}, {v(A_,2)}, {v(C_,2)} op_sel_hi:[1,0,0] neg_lo:[0,0,1] neg_hi:[0,0,1]")
                for kk in range(2):
                    r = R + 4 * j + k + kk; t = tp[kk]
                    o.append(f"v_cvt_pk_bf16_f32 v{r}, v{t}, v{t+1}")
            o.append(dict(i=f"ds_write_b128 v{vXW}, {v(R+4*j,4)} offset:{j*2048}", lds="xw"))
        return o
    def xn_read(rho, ks):
        return dict(i=f"ds_read_b128 {v(XF(rho,ks),4)}, v{(vXR0, vXR1)[ks & 1]} offset:{ks*1024}", lds=("xf", rho, ks))
    def w1_unit(U, hi):
        T, gam = divmod(U, 9)
        base = sHL2 if is_half(T) else sFB2
        add = (gam * 64 + hi * 32) * 9216 + (0 if is_half(T) else pair_of(T) * 128)
        return [f"s_add_u32 m0, s{sM0G}, {RING + gam * 8192 + hi * 4096}",
                f"s_add_u32 s{sOFF}, s{base}, {add}",
                dict(i=f"buffer_load_dwordx4 v{vW1}, {s(sW1,4)}, s{sOFF} offen lds", vm=("w1", (U - 1) // 3))]
    def units_of(sg): return range(max(0, 3 * sg + 1), min(45, 3 * sg + 4))
    def frag(g, aa): return FR + ((g % 4) * 2 + aa) * 4
    def a_reads(T, ks):
        o = []
        for aa in range(1 if is_half(T) else 2):
            f = frag(18 * T + ks, aa)
            hi = ks >= 8
            off = RING + ks * 4096 - (0x8000 if hi else 0)
            for nu in range(2):
                o.append(dict(i=f"ds_read_b64_tr_b16 {v(f+2*nu,2)}, v{RA[aa + 2*hi]} offset:{off + nu*512}", lds=("A", T, ks, aa)))
        return o
    def bias_reads(T):
        base = 1024 if is_half(T) else pair_of(T) * 256
        return [dict(i=f"ds_read_b128 {v(BI+4*aa,4)}, v{vBIAS} offset:{base + aa*64}", lds=("B", T)) for aa in range(1 if is_half(T) else 2)]
    def mish_tile(T, ph):
        o = []
        if is_half(T):
            for mt16 in range(2):
                o += mish_group(PH2[mt16], AO + mt16 * 2, TM)
                o.append(dict(i=f"ds_write_b64 v{vACTH}, {v(AO+mt16*2,2)} offset:{mt16*1024 + ph*8}", lds="aw"))
            return o
        for mt16 in range(2):
            for aa in range(2):
                o += mish_group(PEND + (aa * 2 + mt16) * 4, AO + mt16 * 4 + aa * 2, TM)
            o.append(dict(i=f"ds_write_b128 v{vACTW}, {v(AO+mt16*4,4)} offset:{mt16*1024 + (2*pair_of(T)+ph)*8192}", lds="aw"))
        return o
    def cost(x):
        t = x if isinstance(x, str) else x.get("i", "")
        return 2 if t.startswith(("v_exp", "v_rcp")) else 1 if t.startswith("v_") else 0
    def take(q, budget):
        out = []
        while q and budget > 0:
            budget -= cost(q[0]); out.append(q.pop(0))
        while q and cost(q[0]) == 0: out.append(q.pop(0))
        return out
    def w2_dma(st, ph):
        slot = (st % 4) * 36864
        o = []
        qs = [20 + 4 * n for n in range(4)] if ph == 0 else [4 * n for n in range(5)]
        for q in qs:
            base, rowoff = (sW2A, q * 8) if q < 32 else (sW2B, (q - 32) * 8)
            o.append([f"s_add_u32 m0, s{sM0G}, {slot + q * 1024}",
                      f"s_add_u32 s{sOFF}, s{base}, {rowoff * 1152 + st * 128}",
                      dict(i=f"buffer_load_dwordx4 v{vW2}, {s(sW2,4)}, s{sOFF} offen lds", vm=("w2", st))])
        return o
    vAR, vAR2 = T0, 227
    vRBs = [vRB, T0 + 1, T0 + 2, 226]
    PD2 = 4
    def frag2(g): return FR + (g % 6) * 4
    def b_reads(st, i):
        f = frag2(9 * st + i); kap = KORD[i]
        return [dict(i=f"ds_read_b64_tr_b16 {v(f+2*nu,2)}, v{vRBs[st % 4]} offset:{kap*4096 + nu*2048}", lds=("W", st, i)) for nu in range(2)]
    def act_reads(kap):
        return [dict(i=f"ds_read_b128 {v(AFR(mu,kap),4)}, v{vAR2 if kap == 8 else vAR} offset:{mu*1024 + (0 if kap == 8 else kap*8192)}", lds=("act", kap)) for mu in range(4)]
    def epi_valu():
        o = []
        for pr in range(2):
            p = AO + pr * 4
            for mu in range(2):
                src = ACC + (pr * 2 + mu) * 4
                o.append(f"v_cvt_pk_bf16_f32 v{p+2*mu}, v{src}, v{src+1}")
                o.append(f"v_cvt_pk_bf16_f32 v{p+2*mu+1}, v{src+2}, v{src+3}")
        o.append("s_nop 0")
        for pr in range(2):
            p = AO + pr * 4
            o.append(f"v_permlane16_swap_b32 v{p}, v{p+2}")
            o.append(f"v_permlane16_swap_b32 v{p+1}, v{p+3}")
        return o
    def epi_store(st):
        o = []
        for pr in range(2):
            o.append(f"s_mov_b32 s{sOFF2}, {pr * 36864 + st * 4096}")
            o.append(dict(i=f"buffer_store_dwordx4 {v(AO+pr*4,4)}, v{vST}, {s(sWS,4)}, s{sOFF2} offen sc1", vm=("st", st)))
        return o

    import k_all_parts as P
    G = dict(locals()); G.update(globals())
    Lp1 = a.newlabel("Lph1")
    a(f"s_cmp_lg_u32 s{sPH}, 0")
    a(f"s_cbranch_scc1 {Lp1}")
    Lfin = a.newlabel("Lfin")
    P.body(G, 0, Lfin)
    a.label(Lp1)
    P.body(G, 1, Lfin)
    a.label(Lfin)
    P.final(G)
    a.label(Lend)
    a("s_endpgm")
```

```python
from common import *

def poll(a, load, cond_lines, tag):
    L, Ld = a.newlabel("Lpoll" + tag), a.newlabel("Lpd" + tag)
    a.label(L)
    for l in load: a(l)
    a("s_waitcnt vmcnt(0)")
    for l in cond_lines: a(l)
    a(f"s_cbranch_scc1 {Ld}")
    a("s_sleep 16")
    a(f"s_sub_u32 s{sCNT}, s{sCNT}, 1")
    a(f"s_cbranch_scc0 {L}")
    a(f"s_mov_b32 s{sCNT}, 0")
    a.label(Ld)

def flag_cond(regs, level):
    o = [f"s_add_u32 s{sT+3}, s{sTAG}, {level}"]
    for r in regs:
        o += [f"v_subrev_u32 v{r}, s{sT+3}, v{r}", f"v_xor_b32 v{r+1}, s{sTAG+1}, v{r+1}", f"v_lshrrev_b32 v{r}, 4, v{r}", f"v_or_b32 v{r}, v{r}, v{r+1}"]
    for r in regs[1:]: o.append(f"v_or_b32 v{regs[0]}, v{regs[0]}, v{r}")
    return o + [f"v_cmp_ne_u32 vcc, 0, v{regs[0]}", "s_cmp_eq_u64 vcc, 0"]

def body(G, ph, Lfin):
    globals().update(G)
    X = Emit(a); X.lg.q = list(E.lg.q); X.vm.q = list(E.vm.q)
    n0 = ST.n; names0 = list(ST.names)
    class Ctx:
        def __init__(s_, name, cmp): s_.name, s_.cmp = name, cmp
        def __enter__(s_):
            s_.L = a.newlabel("Lskip")
            a(s_.cmp); a(f"s_cbranch_scc0 {s_.L}")
            X.vm.ctx = s_.name; X.lg.ctx = s_.name
            return s_
        def __exit__(s_, *e):
            X.vm.ctx = None; X.lg.ctx = None
            a.label(s_.L)
    def barrier(needl, needv, name=None):
        X.one(dict(needl=needl, needv=needv))
        a("s_barrier")
        if name: ST.stamp(name, X)
    PREP = lambda: Ctx("prep", f"s_cmp_lt_u32 s{sMG}, 3")
    W0 = lambda: Ctx("w0", f"s_cmp_eq_u32 s{sMG}, 0")
    CV = lambda: Ctx("cv", "s_cmp_lt_u32 s2, 144")
    if ph == 1: a("s_setprio 1")
    a(f"s_mov_b32 s{sCNT}, 0x80000")
    st0 = ln_stats(0)
    o = st0[:4]
    for j in range(9): o += st0[4 + 8 * j: 12 + 8 * j] + [x_load(1, j)]
    X.run(o + st0[76:])
    ST.stamp("stats0", X)
    if ph == 0:
        a("v_mov_b32 v8, 0")
        X.one(dict(i=f"buffer_load_dwordx2 v[6:7], v8, {s(sDBG,4)}, 0 offen sc1", vm="tg"))
    bl = [[dict(i=f"buffer_load_ushort v{vBV}, v{vBE}, {s(sA,4)}, 0 offen", vm="bias")]]
    X.run(spread(ln_norm(0), bl + [w1_unit(U, ph) for U in range(0, 4)]))
    a(f"v_lshlrev_b32 v{vBE}, 2, v0")
    a(f"v_add_u32 v{vBE}, {BIAS}, v{vBE}")
    ST.stamp("norm0", X)
    import contextlib
    PREP = (lambda: contextlib.nullcontext()) if ph == 0 else W0
    SKR, VR, vKA, vBW = PEND, PEND + 4, PEND + 13, PEND + 14
    WU, UU, KT, PT = 224, 244, TM, TM + 6
    vTG = 240
    kd = [[f"s_mul_i32 s{sT}, s{sTB}, 9216", f"s_lshl_b32 s{sT+1}, s{sW}, 11", f"s_add_u32 s{sT}, s{sT}, s{sT+1}", f"s_sub_u32 s{sT}, s{sT}, 4608",
           f"v_add_u32 v1, s{sT}, v{vL16}", f"s_add_u32 m0, s{sT+1}, {BNC}", "v_add_u32 v2, 1024, v1",
           dict(i=f"buffer_load_dwordx4 v1, {s(sB,4)}, 0 offen lds", vm="kd")],
          [f"s_lshl_b32 s{sT+1}, s{sW}, 11", f"s_add_u32 m0, s{sT+1}, {BNC + 1024}", "s_nop 0",
           dict(i=f"buffer_load_dwordx4 v2, {s(sB,4)}, 0 offen lds", vm="kd")]]
    def prep_loads():
        o = [f"s_mul_i32 s{sT}, s{sTB}, 9216", f"s_lshl_b32 s{sT+1}, s{sW}, 8", f"s_add_u32 s{sT}, s{sT}, s{sT+1}",
             f"v_lshrrev_b32 v5, 2, v{vL16}", f"v_add_u32 v3, s{sT}, v5", f"v_add_u32 v{vKA}, s{sT+1}, v5", f"v_add_u32 v{vKA}, {BNC}, v{vKA}"]
        if ph == 1: o += [f"v_mov_b32 v4, {OOB}", f"v_cmp_gt_u32 vcc, 512, v{vL16}", "s_nop 1", f"v_cndmask_b32 v3, v4, v3, vcc"]
        o += ["v_subrev_u32 v4, 1152, v3", "v_add_u32 v5, 4608, v3", f"s_lshl_b32 s{sT+1}, s{sW}, 10",
              dict(i=f"buffer_load_dwordx4 {v(SKR,4)}, v{vL16}, {s(sD,4)}, s{sT+1} offen", vm="pl"),
              dict(i=f"buffer_load_dword v{VR}, v4, {s(sC,4)}, 0 offen", vm="pl")]
        for r in range(8): o.append(dict(i=f"buffer_load_dword v{VR+1+r}, v{3 if r < 4 else 5}, {s(sC,4)}, 0 offen offset:{(r%4)*1152}", vm="pl"))
        o += [f"s_lshl_b32 s{sT}, s{sW}, 12", f"s_add_u32 s{sT}, s{sT}, {PBN}", f"v_lshl_add_u32 v{vBW}, v{vL16}, 2, s{sT}"]
        return o
    def unp(d, src, hi): return f"v_and_b32 v{d}, 0xffff0000, v{src}" if hi else f"v_lshlrev_b32 v{d}, 16, v{src}"
    def prep_bw(h):
        return [dict(i=f"ds_write_b128 v{vBW}, {v((WU, KT)[cp],4)} offset:{32*h + 16*cp}", lds="pw") for cp in range(2)]
    def prep_comp(h):
        o = [dict(needl=["pw"])]
        for k in range(6): o.append(f"v_mov_b32 v{KT+k}, 0")
        kr = lambda r: dict(i=f"ds_read_u16_d16_hi v{KT + r % 6}, v{vKA} offset:{r*1152 + 2*h}", lds=("k", h, r))
        for r in range(6): o.append(kr(r))
        o.append(dict(needv=["pl"]))
        for j in range(4): o.append(unp(WU + j, SKR + 2 * h + (j >> 1), j & 1))
        for r in range(12):
            t_ = KT + r % 6
            first = True
            for j in range(4):
                rr = r - j
                if 0 <= rr <= 8:
                    ins = f"v_mul_f32 v{UU+rr}, v{t_}, v{WU+3}" if j == 0 else f"v_fmac_f32 v{UU+rr}, v{t_}, v{WU+3-j}"
                    o.append(dict(i=ins, needl=[("k", h, r)]) if first else ins); first = False
            if r + 6 < 12: o.append(kr(r + 6))
        for r in range(9):
            t_ = PT + (r & 1)
            o += [unp(t_, VR + r, h), f"v_mul_f32 v{UU+r}, v{UU+r}, v{t_}"]
        for cp in range(2):
            for i in range(4):
                top = 7 + cp - 2 * i
                o.append(f"v_cvt_pk_bf16_f32 v{(WU, KT)[cp]+i}, v{UU+top}, v{UU+top-1}")
        return o
    def prep_out():
        o = [f"s_lshl_b32 s{sT}, s{sW}, 12", f"s_add_u32 s{sT}, s{sT}, {PBN}", f"v_add_u32 v{PT}, s{sT}, v{vL16}"]
        nk = 4 if ph == 0 else 2
        for k in range(nk): o.append(dict(i=f"ds_read_b128 {v(PEND+4*k,4)}, v{PT} offset:{k*1024}", lds=("pr", k)))
        o += [f"s_sub_u32 s{sT}, 255, s{sTB}", f"s_mul_i32 s{sT}, s{sT}, 18432", f"s_lshl_b32 s{sT+1}, s{sW}, 12", f"s_add_u32 s{sT}, s{sT}, s{sT+1}",
              f"s_add_u32 s{sT}, s{sT}, {WS_U}"]
        for k in range(nk):
            o.append(dict(i=f"buffer_store_dwordx4 {v(PEND+4*k,4)}, v{vL16}, {s(sWS,4)}, s{sT} offen offset:{k*1024} sc1", vm="ust", needl=[("pr", k)]))
        return o
    X.run(spread(ln_stats(1), [w1_unit(U, ph) for U in range(4, 9)] + kd))
    with PREP(): X.run(prep_loads())
    X.one(dict(i=f"v_lshlrev_b32 v{vBV}, 16, v{vBV}", needv=["bias"]))
    a(f"v_mul_f32 v{vBV}, {f32(LOG2E)}, v{vBV}")
    if ph == 0:
        X.one(dict(i=f"ds_write_b32 v{vBE}, v{vBV}", lds="bw"))
    else:
        with W0(): X.one(dict(i=f"ds_write_b32 v{vBE}, v{vBV}", lds="bw"))
    ST.stamp("stats1", X)
    a(f"s_load_dwordx2 s[{sA}:{sA+1}], s[0:1], 32")
    a(f"s_lshl_b32 s{sT}, s{sW}, 3")
    a(f"v_add_u32 v{vTID}, s{sT}, v{lane}")
    a(f"v_lshlrev_b32 v{vTID}, 7, v{vTID}")
    a(f"v_cmp_gt_u32 vcc, 8, v{lane}")
    a(f"v_mov_b32 v2, {OOB}")
    a("s_nop 0")
    a(f"v_cndmask_b32 v{vTID}, v2, v{vTID}, vcc")
    if ph == 0:
        X.one(dict(needv=["tg"]))
        Lt = a.newlabel("Ltg")
        cond = [f"v_readfirstlane_b32 s{sTAG+1}, v7", f"v_readfirstlane_b32 s{sTAG}, v6", f"s_cmp_lg_u32 s{sTAG+1}, 0"]
        X.run(cond); a(f"s_cbranch_scc1 {Lt}")
        poll(a, [f"buffer_load_dwordx2 v[6:7], v8, {s(sDBG,4)}, 0 offen sc1"], cond, "i")
        a.label(Lt)
    if opt.get("touch", 1):
        a("v_lshlrev_b32 v1, 7, v0")
        a(f"v_mov_b32 v2, {OOB}")
        a("v_cmp_gt_u32 vcc, 324, v0")
        a(f"s_and_b32 s{sT}, s{sMT}, 7")
        a(f"s_mul_i32 s{sT}, s{sT}, {36*1152}")
        a("v_cndmask_b32 v1, v2, v1, vcc")
        a(f"s_mul_i32 s{sT+1}, s{sSL}, {288*1152}")
        a(f"s_add_u32 s{sT+1}, s{sT+1}, s{sT}")
        X.one(dict(i=f"buffer_load_dword v{vJUNK}, v1, {s(sW2,4)}, s{sT+1} offen", vm="t"))
    a(X.lg.drain()); a("s_barrier")
    srd2(a, sA, XBYTES)
    ST.stamp("barA")
    n1 = ln_norm(1)
    JS = opt.get("js", 4)
    first = [x for x in n1[:17 * JS] if isinstance(x, str)]
    wr = [x for x in n1[:17 * JS] if not isinstance(x, str)]
    X.run(spread(first[:len(first) * 3 // 4], [[xn_read(0, ks)] for ks in range(18)]) + first[len(first) * 3 // 4:])
    a(X.lg.drain()); a("s_barrier")
    X.run(spread(n1[17 * JS:], [[w] for w in wr]))
    a(f"v_subrev_u32 v{vACTH}, 8192, v{vACTW}")
    ST.stamp("norm1", X)
    barrier(["xw"], [("w1", -1)], "Bx")

    def greads(g):
        if g >= 90: return []
        T, ks = divmod(g, 18)
        o = []
        if T in (HPOS, HPOS + 1) and ks == 0: o.append(f"v_xor_b32 v{RA[0]}, s{sXH}, v{RA[0]}")
        if T in (HPOS, HPOS + 1) and ks == 8: o.append(f"v_xor_b32 v{RA[2]}, s{sXH}, v{RA[2]}")
        return o + a_reads(T, ks)
    def burst1(st, bar, extra=()):
        T, t = divmod(st, 3)
        na = 1 if is_half(T) else 2
        mfs = []
        for kl in range(6):
            ks = 6 * t + kl
            for aa in range(na):
                for mt16 in range(2):
                    acc = ACC + (aa * 2 + mt16) * 4
                    src = v(BI + 4 * aa, 4) if ks == 0 else v(acc, 4)
                    dst = acc if ks < 17 else PH2[mt16] if is_half(T) else PEND + (aa * 2 + mt16) * 4
                    nl = [("A", T, ks, x) for x in range(na)]
                    if ks == 0: nl.append(("B", T))
                    if T == 0: nl.append(("xf", mt16, ks))
                    mfs.append((kl, dict(i=f"{M16} {v(dst,4)}, {v(frag(18*T+ks,aa),4)}, {v(XF(mt16,ks),4)}, {src}", needl=nl)))
        rd = [(kl, r) for kl in range(6) for r in greads(6 * st + 2 + kl)]
        extra = list(extra)
        n = len(mfs)
        nb = (opt.get("nb", 2) * na // 2 or 1) if ph == 0 else 0
        last = n if ph == 0 else n - opt.get("tail", 3) * na // 2
        a("s_setprio 0")
        for mi, (kl, m) in enumerate(mfs):
            X.one(m)
            if ph == 0 and mi == nb - 1 and bar: bar()
            if ph == 1 and mi == opt.get("prio_at", 12) * na // 2: a("s_setprio 1")
            if mi >= nb - 1:
                left = max(1, last - mi)
                cnt = -(-len(rd) // left)
                is_last_of_k = (mi + 1 == n) or mfs[mi + 1][0] != kl
                for _ in range(min(cnt, 2)):
                    if rd and (rd[0][0] - 2 < kl or (rd[0][0] - 2 == kl and is_last_of_k)):
                        X.one(rd.pop(0)[1])
            if extra: X.one(extra.pop(0))
        X.run([r for _, r in rd])
        X.run(extra)
        a(f"s_setprio {opt.get('vprio', 2) if ph == 0 else max(1, opt.get('vprio', 2))}")
    def valu1(items, dmas):
        X.run(spread(items, dmas) if items else flat(dmas))
    def touches(st):
        ld = lambda srd_: dict(i=f"buffer_load_dword v{vJUNK}, v{vTID}, {s(srd_,4)}, s{sT+1} offen", vm="t")
        t0_ = opt.get("t0", 6)
        k = st - t0_
        if k in (4, 5): return [f"s_lshl_b32 s{sT+1}, s2, 14", f"s_add_u32 s{sT+1}, s{sT+1}, {(k-4)*8192}", ld(sA)]
        return []
    xr1 = [xn_read(1, ks) for ks in range(18)]
    X.run(xr1[:3] + bias_reads(0) + greads(0) + greads(1))
    mq = []
    SIG1 = opt.get("sig1", 4)
    def pf_addr():
        return [f"s_lshl_b32 s{sT}, s{sMT}, 7", f"s_lshl_b32 s{sT+1}, s{sSL}, 3", f"s_add_u32 s{sT}, s{sT}, s{sT+1}", f"s_add_u32 s{sT}, s{sT}, {WS_PF}"]
    def pf_items(val, tag, vd, va):
        return pf_addr() + [f"s_cmp_eq_u32 s{sMG}, 0", f"s_cselect_b32 s{sT}, s{sT}, {OOB}", f"v_mov_b32 v{va}, {OOB}", f"s_add_u32 s{sT+1}, s{sTAG}, {val}",
               f"v_mov_b32 v{vd}, s{sT+1}", f"v_mov_b32 v{vd+1}, s{sTAG+1}",
               f"v_writelane_b32 v{va}, s{sT}, 0", dict(i=f"buffer_store_dwordx2 {v(vd,2)}, v{va}, {s(sWS,4)}, 0 offen sc1", vm=tag)]
    def lastl(sg):
        g = min(89, 6 * sg + 7)
        return [("A", g // 18, g % 18, x) for x in range(2)] + (["aw"] if sg == 13 else []) + [("xf", 1, 17)]
    for st in range(15):
        T, t = divmod(st, 3)
        nm = f"B{st}" if t == 0 else None
        us = [9] if st == 0 else list(units_of(st + 2)) if st <= 12 else []
        dm = [w1_unit(U, ph) for U in us]
        if st == 14: dm = w2_dma(0, ph)
        nv = [("w1", st)] + (["kd"] if st == 0 else []) + (["ust"] if st == SIG1 else [])
        bar = lambda: barrier(lastl(st - 1) if st else [("A", 0, 1, 1)], nv, nm)
        br = [[r] for r in bias_reads(T + 1)] if (t == 1 and T < 4) else []
        if opt.get("touch", 1) and touches(st): br = br + [touches(st)]
        def budget(flush):
            return 10 ** 6 if flush else opt.get("bh", 22) if is_half(T) else opt.get("bf", 40)
        if ph == 0:
            burst1(st, bar, xr1[3:] if st == 0 else ())
            if st == 14: break
            if st == 0: mq.extend(prep_comp(0))
            if st == 1: mq.extend(prep_bw(0) + prep_comp(1) + prep_bw(1) + prep_out())
            if st == SIG1: br = br + [pf_items(1, "sig", 240, 252)]
            fresh = (t == 2)
            if fresh: mq.extend(mish_tile(T, 0))
            Tn, tn = divmod(st + 1, 3)
            items = take(mq, budget((tn == 2 and not is_half(Tn)) or st < 2))
            if fresh and items:
                for g in dm[:2]: X.run(g)
                a("s_nop 1" if len(dm) >= 2 else "s_nop 7")
                dm = dm[2:]
            valu1(items, dm + br)
        else:
            fresh = (t == 0 and st > 0)
            if fresh: mq.extend(mish_tile(T - 1, 1))
            items = take(mq, budget(t == 2 and not is_half(T)))
            if st == 0: items = xr1[3:]
            if fresh and items: a("s_nop 7")
            k = opt.get("k1", 4) if st else 0
            X.run(items[:k])
            bar()
            valu1(items[k:], dm + br)
            if st == 1:
                with PREP(): X.run(prep_comp(0) + prep_bw(0))
            if st == 2:
                with PREP(): X.run(prep_comp(1) + prep_bw(1) + prep_out())
            burst1(st, None)
    assert not mq
    a(f"s_and_b32 s{sT}, s{sW}, 1")
    a(f"s_lshl_b32 s{sT}, s{sT}, 12")
    a(f"s_add_u32 s{sT}, s{sT}, {ACT}")
    a(f"v_add_u32 v{vAR2}, s{sT}, v{vL16}")
    a(f"v_add_u32 v{vAR}, 8192, v{vAR2}")
    for k in range(1, 4): a(f"v_add_u32 v{vRBs[k]}, {k*36864}, v{vRB}")
    a("s_nop 0")
    early = [[r] for kap in KORD[:6] for r in act_reads(kap)]
    if ph == 0: early = w2_dma(0, 0) + early
    mt = mish_tile(4, ph)
    X.run(spread(mt[:70], early) + mt[70:])
    a(f"s_load_dwordx2 s[{sW1}:{sW1+1}], s[0:1], 80")
    a(f"s_load_dwordx2 s[{sD}:{sD+1}], s[0:1], 40")
    a(f"v_mov_b32 v{TM+1}, {TAGL}")
    vIP, vIA = 200, 212
    if ph == 0:
        with W0():
            a(f"v_mov_b32 v{TM+2}, s{sTAG}")
            a(f"v_mov_b32 v{TM+3}, s{sTAG+1}")
            a(f"ds_write_b64 v{TM+1}, {v(TM+2,2)}")
            Lnc_ = a.newlabel("Lnc")
            a("s_cmp_lt_u32 s2, 144")
            a(f"s_cbranch_scc0 {Lnc_}")
            a(f"v_add_u32 v{vIA}, {WS_PF}, v{vL16}")
            poll(a, [f"buffer_load_dwordx4 {v(vIP+4*k,4)}, v{vIA}, {s(sWS,4)}, 0 offen offset:{k*1024} sc1" for k in range(2)],
                 flag_cond([vIP, vIP + 2, vIP + 4, vIP + 6], 1), "u")
            a.label(Lnc_)
    a(X.lg.drain())
    barrier([], [("w2", 0)], "G2 start")
    if ph == 1: X.one(dict(i=f"ds_read_b64 {v(254,2)}, v{TM+1}", lds="tag"))
    srd2(a, sW1, XBYTES); srd2(a, sD, 576 * 2)
    late = [r for kap in KORD[6:] for r in act_reads(kap)]
    def burst2(st, embed_barrier, extra=()):
        extra = list(extra)
        a("s_setprio 0")
        for i in range(9):
            kap = KORD[i]
            nxt = b_reads(st, i + PD2) if i + PD2 < 9 else []
            for mu in range(4):
                acc = ACC + mu * 4
                src = "0" if i == 0 else v(acc, 4)
                nl = [("W", st, i)] + ([("act", kap)] if st == 0 else [])
                X.one(dict(i=f"{M16} {v(acc,4)}, {v(frag2(9*st+i),4)}, {v(AFR(mu,kap),4)}, {src}", needl=nl))
                if nxt and mu % 2 == 0: X.one(nxt.pop(0))
                elif extra: X.one(extra.pop(0))
                if embed_barrier and i == 9 - PD2 + 1 and mu == 1:
                    a("s_setprio 1")
                    embed_barrier()
        a("s_setprio 2")
        assert not extra
    def pre2(st): return [r for i in range(PD2) for r in b_reads(st, i)]
    vUW, vDD = TM, TM + 1
    def kf_dma(c):
        a(f"s_lshl_b32 s{sT}, s2, 14")
        a(f"s_lshl_b32 s{sT+1}, s{sMG}, 2")
        a(f"s_add_u32 s{sT}, s{sT}, s{sT+1}")
        a(f"s_add_u32 s{sT}, s{sT}, {(2 * c + ph) * 4096}")
        a(f"s_mul_i32 s{sT+1}, s{sMG}, {4096 + 64}")
        a(f"s_min_u32 s{sT+2}, s{sMG}, 1")
        a(f"s_lshl_b32 s{sT+2}, s{sT+2}, 4")
        a(f"s_add_u32 s{sT+1}, s{sT+1}, s{sT+2}")
        a(f"s_add_u32 m0, s{sT+1}, {KB + (2 * c + ph) * KCH}")
        a("s_nop 0")
        for pc in range(4):
            X.one(dict(i=f"buffer_load_dwordx4 v{vL16}, {s(sA,4)}, s{sT} offen offset:{pc*1024} lds", vm="kf"))
    def conv_pref(st):
        if st == 1 and ph == 1:
            X.one(dict(i=f"v_readfirstlane_b32 s{sTAG}, v254", needl=["tag"]))
            a(f"v_readfirstlane_b32 s{sTAG+1}, v255")
        if st == opt.get("ul", 2):
            a(f"s_lshl_b32 s{sT}, s{sW}, 10")
            a(f"v_add_u32 v{TM+2}, s{sT}, v{vL16}")
            a(f"v_lshrrev_b32 v{TM+4}, 7, v{TM+2}")
            a(f"v_mul_u32_u24 v{TM+3}, 18432, v{TM+4}")
            a(f"v_and_b32 v{TM+5}, 0x70, v{TM+2}")
            a(f"v_add_u32 v{TM+3}, v{TM+3}, v{TM+5}")
            a("s_cmp_lt_u32 s2, 144")
            a(f"s_cselect_b32 s{sT+1}, 0, {OOB}")
            a(f"v_or_b32 v{TM+3}, s{sT+1}, v{TM+3}")
            a(f"s_lshl_b32 s{sT}, s2, 7")
            a(f"s_add_u32 s{sT}, s{sT}, {WS_U}")
            for it in range(4):
                X.one(dict(i=f"buffer_load_dwordx4 {v(PEND+4*it,4)}, v{TM+3}, {s(sWS,4)}, s{sT} offen sc1", vm="u"))
                if it < 3: a(f"s_add_u32 s{sT}, s{sT}, {64*18432}")
            a(f"v_bfe_u32 v{TM+3}, v{TM+2}, 5, 2")
            a(f"v_mul_u32_u24 v{vUW}, {UCH}, v{TM+3}")
            a(f"v_bfe_u32 v{TM+3}, v{TM+2}, 4, 1")
            a(f"v_mul_u32_u24 v{TM+3}, {UCP}, v{TM+3}")
            a(f"v_add_u32 v{vUW}, v{vUW}, v{TM+3}")
            a(f"v_lshl_add_u32 v{vUW}, v{TM+4}, 4, v{vUW}")
            a(f"v_add_u32 v{vUW}, {UB}, v{vUW}")
            a(f"s_lshl_b32 s{sT}, s2, 3")
            a(f"s_lshl_b32 s{sT+1}, s{sMG}, 1")
            a(f"s_add_u32 s{sT}, s{sT}, s{sT+1}")
            a(f"v_mov_b32 v{TM+3}, s{sT}")
            X.one(dict(i=f"buffer_load_ushort v{vDD}, v{TM+3}, {s(sD,4)}, 0 offen", vm="u"))
        if st == 6: kf_dma(0)
        if st == 7: kf_dma(1)
        if st == 8:
            if ph == 0: X.run(pf_items(5, "pf", TM + 4, TM + 2))
            X.one(dict(needv=["u"]))
            for it in range(4):
                X.one(dict(i=f"ds_write_b128 v{vUW}, {v(PEND+4*it,4)} offset:{it*1024}", lds="uw"))
            if ph == 0:
                for k in range(4): a(f"v_mov_b32 v{208+k}, 0")
                a(f"s_cmp_eq_u32 s{sMG}, 3")
                a("s_cselect_b32 exec_hi, 0, -1")
                X.one(dict(i=f"ds_write_b128 v{vUW}, {v(208,4)} offset:4096", lds="uw"))
                a("s_mov_b32 exec_hi, -1")
        if st == 9: X.one(dict(needv=["kf"]))
    for st in range(9):
        nxtv = ([("w2", st + 1)] if st < 8 else []) + ([("st", 4)] if st == 7 else [])
        lastw = [("W", st, 8), ("act", 7)]
        if st == 0: dm = w2_dma(1, ph) + w2_dma(2, ph)
        elif st == 1: dm = w2_dma(3, ph) + w2_dma(4, ph)
        elif st + 3 <= 8: dm = w2_dma(st + 3, ph)
        else: dm = []
        nm = f"G2 B{st+1}" if st % 2 == 1 else None
        def vphase(est):
            d = list(dm)
            for g in d[:2]: X.run(g)
            if len(d) < 2: a("s_nop 7")
            valu1(epi_valu(), d[2:])
            conv_pref(st)
            X.run(epi_store(est))
        if ph == 0:
            X.run(pre2(st))
            if st == 0:
                X.run(flat(dm[:4])); dm = dm[4:]
            burst2(st, None, late if st == 0 else ())
            vphase(st)
            if st < 8: barrier(lastw, nxtv, nm)
        else:
            if st == 0: valu1(late, dm)
            else: vphase(st - 1)
            X.run(pre2(st))
            burst2(st, (lambda: barrier(lastw, nxtv, nm)) if st < 8 else None)
    if ph == 1:
        dm = []; st = 10
        vphase(8)
    conv_pref(9)
    ST.stamp("G2 end", X)
    if ph == 0:
        a(f"s_branch {Lfin}")
        ST.n = n0; ST.names = names0

def final(G):
    globals().update(G)
    X = Emit(a)
    RL = 0
    vUW, vDD = TM, TM + 1
    a("s_setprio 0")
    vLN, vN, vG, vPF, vRL, vT = 240, 241, 242, 243, 244, 254
    a(f"v_lshrrev_b32 v{vLN}, 4, v{vL16}")
    a(f"v_and_b32 v{vN}, 15, v{vLN}")
    a(f"v_lshrrev_b32 v{vG}, 4, v{vLN}")
    a(f"s_lshl_b32 s{sT}, s{sMT}, 7")
    a(f"s_add_u32 s{sT}, s{sT}, {WS_PF}")
    a(f"v_lshl_add_u32 v{vPF}, v{vN}, 3, s{sT}")
    a(f"v_lshrrev_b32 v246, 3, v{vLN}")
    a(f"v_mul_u32_u24 v{vRL}, {SLICE}, v246")
    a(f"v_and_b32 v246, 0x70, v{vL16}")
    a(f"v_add_u32 v{vRL}, v{vRL}, v246")
    a(f"s_lshr_b32 s{sT}, s{sTB}, 2")
    a(f"s_mul_i32 s{sT}, s{sT}, 36864")
    a(f"s_lshl_b32 s{sT+1}, s{sW}, 9")
    a(f"s_add_u32 s{sT}, s{sT}, s{sT+1}")
    a(f"s_and_b32 s{sT+1}, s{sSL}, 3")
    a(f"s_lshl_b32 s{sT+1}, s{sT+1}, 7")
    a(f"s_add_u32 s{sT}, s{sT}, s{sT+1}")
    a(f"v_add_u32 v{vRL}, s{sT}, v{vRL}")
    vA, vB, vD0, AD, vS0 = 232, 233, 234, 248, 68
    sKC = sFB
    a(f"s_mul_i32 s{sKC}, s{sMG}, {KCH}")
    a(f"s_add_u32 s{sKC}, s{sKC}, {KB}")
    a(f"v_add_u32 v246, 1, v{vN}")
    a(f"v_and_b32 v247, 3, v246")
    a(f"v_lshrrev_b32 v246, 2, v246")
    a(f"v_sub_u32 v246, v246, v{vG}")
    a(f"v_lshlrev_b32 v246, 4, v246")
    a(f"v_mul_u32_u24 v235, {4096+64}, v247")
    a(f"v_add_u32 v246, v246, v235")
    a(f"v_cmp_ne_u32 vcc, 0, v247")
    a(f"v_add_u32 v235, 16, v246")
    a(f"s_lshl_b32 s{sT}, s{sPH}, 8")
    a(f"v_cndmask_b32 v246, v246, v235, vcc")
    a(f"s_add_u32 s{sT+1}, s{sT}, s{sKC}")
    a(f"s_sub_u32 s{sT+1}, s{sT+1}, 16")
    a(f"v_add_u32 v{vA}, s{sT+1}, v246")
    a(f"v_and_b32 v246, 1, v{vN}")
    a(f"v_mul_u32_u24 v246, {UCP}, v246")
    a(f"v_lshrrev_b32 v247, 1, v{vN}")
    a(f"v_lshl_add_u32 v235, v247, 2, v{vG}")
    a(f"v_sub_u32 v236, 31, v235")
    a(f"v_lshl_add_u32 v246, v236, 4, v246")
    a(f"s_mul_i32 s{sT+1}, s{sMG}, {UCH}")
    a(f"s_add_u32 s{sT+1}, s{sT+1}, s{sT}")
    a(f"s_add_u32 s{sT+1}, s{sT+1}, {UB}")
    a(f"v_add_u32 v{vB}, s{sT+1}, v246")
    vXA = 237
    a(f"v_and_b32 v246, 3, v247")
    a(f"v_xor_b32 v246, s{sMG}, v246")
    a(f"v_lshlrev_b32 v246, 5, v246")
    a(f"v_lshl_add_u32 v246, v235, 7, v246")
    a(f"v_and_b32 v247, 1, v{vN}")
    a(f"v_lshl_add_u32 v246, v247, 4, v246")
    a(f"s_lshl_b32 s{sT}, s{sPH}, 15")
    a(f"v_add_u32 v{vXA}, s{sT}, v246")
    a(f"v_lshlrev_b32 v246, 2, v{vG}")
    a(f"v_sub_u32 v246, v{vN}, v246")
    a(f"s_lshl_b32 s{sT}, s{sPH}, 6")
    a(f"s_sub_u32 s{sT}, s{sT}, 3")
    a(f"v_add_u32 v{vD0}, s{sT}, v246")
    for i in range(4):
        a(f"v_add_u32 v246, {i}, v{vD0}")
        a("v_cmp_eq_u32 vcc, 0, v246")
        a(f"v_max_i32 v247, 0, v246")
        a(f"v_lshl_add_u32 v{vS0+i}, v247, 2, s{sKC}")
        a(f"v_cndmask_b32 v{AD+i}, 0, v{vDD}, vcc")
    def publish9():
        L1 = a.newlabel("Lf")
        a(f"s_cmp_lg_u32 s{sW}, 0")
        a(f"s_cbranch_scc1 {L1}")
        a(f"v_cmp_eq_u32 vcc, s{sSL}, v{vLN}")
        a(f"v_mov_b32 v245, {OOB}")
        a(f"s_add_u32 s{sT}, s{sTAG}, 9")
        a(f"v_mov_b32 v246, s{sT}")
        a(f"v_mov_b32 v247, s{sTAG+1}")
        a(f"v_cndmask_b32 v245, v245, v{vPF}, vcc")
        a(f"buffer_store_dwordx2 v[246:247], v245, {s(sWS,4)}, 0 offen sc1")
        a.label(L1)
    def pf_cond(n): return flag_cond([vT], n)
    pf_load = [f"buffer_load_dwordx2 {v(vT,2)}, v{vPF}, {s(sWS,4)}, 0 offen sc1"]
    def rl(s0, s1, ad=None):
        return [[f"s_mov_b32 s{sOFF}, {hs * 8 * SLICE + st * 4096}",
                 f"buffer_load_dwordx4 {v(RL+(2*st+hs)*4,4)}, v{ad or vRL}, {s(sWS,4)}, s{sOFF} offen sc1"] for st in range(s0, s1) for hs in range(2)]
    def rloads(s0, s1):
        for l in flat(rl(s0, s1)): a(l)
    sB1 = sFB2
    Lnc, Lz, Lcv, Lb1 = a.newlabel("Lnoconv"), a.newlabel("Lz"), a.newlabel("Lcv"), a.newlabel("Lb1")
    a("s_cmp_lt_u32 s2, 144")
    a(f"s_cbranch_scc1 {Lcv}")
    a("s_waitcnt vmcnt(0)")
    a("s_barrier")
    publish9()
    a(f"s_branch {Lb1}")
    a.label(Lcv)
    a("s_waitcnt lgkmcnt(0)")
    a("s_barrier")
    ST.stamp("conv start")
    a(pf_load[0])
    CA = 72
    def FA(buf, i): return 104 + buf * 64 + i * 4
    def FB(buf, i): return 136 + buf * 64 + i * 4
    def reads(bl):
        o = []
        for i in range(8):
            o.append(dict(i=f"ds_read_b128 {v(FB(bl&1,i),4)}, v{vB} offset:{bl*64 + (7-i)*512}", lds=("B", bl, i)))
            if bl == 0 and i == 0:
                for k in range(4): o.append(dict(i=f"ds_read_b32 v{FA(0,0)+k}, v{vS0+k}", lds=("A", 0, 0)))
            else:
                o.append(dict(i=f"ds_read_b128 {v(FA(bl&1,i),4)}, v{vA} offset:{bl*64 + i*512}", lds=("A", bl, i)))
        return o
    X.run(reads(0))
    for k in range(4):
        a(f"v_add_u32 v{vS0+k}, {k}, v{vD0}")
        a(f"v_cmp_le_i32 vcc, 0, v{vS0+k}")
        a("s_nop 1")
        X.one(dict(i=f"v_cndmask_b32 v{FA(0,0)+k}, 0, v{FA(0,0)+k}, vcc", needl=[("A", 0, 0)]))
    for n in range(8):
        X.one(dict(i=f"{M16} {v(CA+4*n,4)}, {v(AD,4)}, {v(FB(0,n),4)}, 0", needl=[("B", 0, n)]))
    b1 = []
    NB1 = opt.get('b1', 0)
    for bl in range(4):
        nxt = reads(bl + 1) if bl < 3 else []
        pairs = sorted([(aa, mu) for aa in range(8) for mu in range(8) if aa + mu <= 7], key=lambda x: (max(x), x[0] + x[1]))
        for idx, (aa, mu) in enumerate(pairs):
            n = aa + mu
            X.one(dict(i=f"{M16} {v(CA+4*n,4)}, {v(FA(bl&1,aa),4)}, {v(FB(bl&1,mu),4)}, {v(CA+4*n,4)}", needl=[("A", bl, aa), ("B", bl, mu)]))
            if idx >= 4 and idx % 2 == 0 and nxt: X.one(nxt.pop(0))
            if idx % 3 == 1 and b1: X.run(b1.pop(0))
        X.run(nxt)
        if bl == 0:
            a("s_waitcnt vmcnt(0)")
            a("s_barrier")
            publish9()
            if NB1:
                for l in pf_cond(5): a(l)
                a(f"s_cselect_b32 s{sB1}, 1, 0")
                a(f"s_cselect_b32 s{sT}, 0, {OOB}")
                a(f"v_or_b32 v238, s{sT}, v{vRL}")
                b1 = rl(0, NB1, 238)
            else: a(f"s_mov_b32 s{sB1}, 0")
    assert not b1
    a(pf_load[0])
    ST.stamp("conv mfma", X)
    a("s_barrier")
    a(f"s_lshl_b32 s{sT}, s{sW}, 6")
    a(f"v_add_u32 v246, s{sT}, v{vLN}")
    a(f"v_lshrrev_b32 v247, 2, v246")
    a(f"v_and_b32 v235, 3, v246")
    for n in range(8): a(f"ds_write_b128 v{vXA}, {v(CA+4*n,4)} offset:{XS + n*4096}")
    a(f"v_bfe_u32 v236, v246, 4, 2")
    a(f"v_xor_b32 v236, v236, v235")
    a(f"v_lshlrev_b32 v236, 5, v236")
    a(f"v_lshl_add_u32 v236, v247, 7, v236")
    a(f"v_lshlrev_b32 v247, 4, v246")
    a(f"s_lshl_b32 s{sT}, s2, 14")
    a(f"s_add_u32 s{sT}, s{sT}, {WS_Z}")
    a(f"s_add_u32 s{sT+1}, s{sT}, 8192")
    a("s_waitcnt lgkmcnt(0)")
    a("s_barrier")
    for k in range(2):
        for bh in range(2):
            for hh in range(2):
                a(f"ds_read_b128 {v(104+k*16+bh*8+hh*4,4)}, v236 offset:{XS + bh*32768 + k*16384 + hh*16}")
    for k in range(2):
        a(f"s_waitcnt lgkmcnt({4 - 4*k})")
        for j in range(8): a(f"v_add_f32 v{104+k*16+j}, v{104+k*16+j}, v{112+k*16+j}")
        for j in range(4): a(f"v_cvt_pk_bf16_f32 v{136+k*4+j}, v{104+k*16+2*j}, v{104+k*16+2*j+1}")
        a(f"buffer_store_dwordx4 {v(136+k*4,4)}, v247, {s(sWS,4)}, s{sT+k} offen sc1")
    a("s_waitcnt vmcnt(0)")
    a("s_barrier")
    L5 = a.newlabel("Lf")
    a(f"s_cmp_lg_u32 s{sW}, 7")
    a(f"s_cbranch_scc1 {L5}")
    a(f"s_lshl_b32 s{sT}, s2, 3")
    a(f"s_add_u32 s{sT}, s{sT}, {WS_ZF}")
    a(f"v_mov_b32 v245, {OOB}")
    a(f"v_mov_b32 v246, s{sTAG}")
    a(f"v_mov_b32 v247, s{sTAG+1}")
    a(f"v_writelane_b32 v245, s{sT}, 0")
    a(f"buffer_store_dwordx2 v[246:247], v245, {s(sWS,4)}, 0 offen sc1")
    a.label(L5)
    ST.stamp("z flag")
    L7, L8 = a.newlabel("Lf"), a.newlabel("Lf")
    for l in pf_cond(9): a(l)
    a(f"s_cbranch_scc1 {L7}")
    poll(a, pf_load, pf_cond(9), "p9c")
    a.label(L7)
    if NB1:
        a(f"s_cmp_lg_u32 s{sB1}, 0")
        a(f"s_cbranch_scc1 {L8}")
    rloads(0, NB1)
    a.label(L8)
    rloads(NB1, 9)
    a(f"s_branch {Lz}")
    a.label(Lb1)
    poll(a, pf_load, pf_cond(5), "p5")
    rloads(0, 5)
    poll(a, pf_load, pf_cond(9), "p9")
    rloads(5, 9)
    a.label(Lz)
    ST.stamp("z published")
    XV, ZV, ID, SEL, DM, DZ, SS = 72, 84, 92, 100, 120, 140, 160
    vXO_, vXO4, vSO, vSO4, vZA, vZB = 162, 163, 164, 165, 166, 167
    a(f"v_and_b32 v246, 7, v{vLN}")
    a(f"s_lshl_b32 s{sT}, s{sTB}, 3")
    a(f"v_add_u32 v247, s{sT}, v246")
    a(f"v_mul_u32_u24 v{vXO_}, 1152, v247")
    a(f"v_lshrrev_b32 v247, 1, v{vG}")
    a(f"v_lshl_add_u32 v{vXO_}, v247, 7, v{vXO_}")
    a(f"v_and_b32 v247, 1, v{vG}")
    a(f"v_lshl_add_u32 v{vXO_}, v247, 3, v{vXO_}")
    a(f"s_lshl_b32 s{sT}, s{sW}, 4")
    a(f"v_add_u32 v{vXO_}, s{sT}, v{vXO_}")
    a(f"v_mov_b32 v235, {OOB}")
    a(f"v_cmp_gt_u32 vcc, 32, v{vLN}")
    a(f"s_lshl_b32 s{sT}, s{sSL}, 6")
    a(f"s_add_u32 s{sT}, s{sT}, {STAT}")
    a(f"v_cndmask_b32 v{vXO4}, v235, v{vXO_}, vcc")
    a(f"v_cmp_gt_u32 vcc, 8, v{vN}")
    a(f"v_lshl_add_u32 v236, v246, 3, s{sT}")
    a(f"ds_read_b64 {v(SS,2)}, v236")
    a(f"v_cndmask_b32 v{vSO}, v235, v{vXO_}, vcc")
    a(f"v_cndmask_b32 v{vSO4}, v235, v{vXO4}, vcc")
    for q in range(5):
        a(f"buffer_load_dwordx2 {v(XV+2*q,2)}, v{vXO4 if q == 4 else vXO_}, {s(sX,4)}, 0 offen offset:{q*256}")
    a(f"v_lshrrev_b32 v247, 3, v{vLN}")
    a(f"v_lshlrev_b32 v{vZA}, 18, v247")
    a(f"v_bfe_u32 v247, v{vLN}, 2, 1")
    a(f"v_lshl_add_u32 v{vZA}, v247, 14, v{vZA}")
    a(f"v_and_b32 v247, 48, v{vL16}")
    a(f"v_add_u32 v{vZA}, v{vZA}, v247")
    a(f"v_cmp_gt_u32 vcc, 8, v{vLN}")
    a(f"s_lshl_b32 s{sFS}, s{sTB}, 6")
    a(f"s_lshl_b32 s{sT}, s{sW}, 15")
    a(f"v_cndmask_b32 v{vZB}, v235, v{vZA}, vcc")
    a(f"s_add_u32 s{sFS}, s{sFS}, s{sT}")
    a(f"s_add_u32 s{sFS}, s{sFS}, {WS_Z}")
    a(f"s_add_u32 s{sHL}, s{sFS}, {128*16384}")
    a(f"v_and_b32 v247, 1, v246")
    a(f"v_lshlrev_b32 v247, 4, v247")
    a(f"v_mov_b32 v236, 0x3f80")
    a(f"v_lshlrev_b32 v237, v247, v236")
    a(f"v_lshrrev_b32 v247, 1, v{vN}")
    for k in range(8):
        a(f"v_cmp_eq_u32 vcc, {k}, v247")
        a("s_nop 1")
        a(f"v_cndmask_b32 v{ID+k}, 0, v237, vcc")
    a(f"v_bfe_u32 v247, v246, 1, 1")
    a(f"v_lshlrev_b32 v247, 4, v247")
    a(f"v_lshlrev_b32 v237, v247, v236")
    a(f"v_and_b32 v247, 1, v246")
    a(f"v_lshlrev_b32 v247, 1, v247")
    a(f"v_lshrrev_b32 v238, 2, v246")
    a(f"v_add_u32 v247, v247, v238")
    a(f"v_lshl_add_u32 v247, v{vG}, 2, v247")
    for k in range(16):
        a(f"v_cmp_eq_u32 vcc, {k}, v247")
        a("s_nop 1")
        a(f"v_cndmask_b32 v{SEL+k}, 0, v237, vcc")
    L6 = a.newlabel("Lf")
    a(f"s_cmp_lg_u32 s{sW}, 0")
    a(f"s_cbranch_scc1 {L6}")
    a(f"v_min_u32 v246, 35, v{vLN}")
    a(f"v_lshlrev_b32 v246, 5, v246")
    a(f"v_add_u32 v246, {WS_ZF}, v246")
    poll(a, [f"buffer_load_dwordx4 v[168:171], v246, {s(sWS,4)}, 0 offen sc1", f"buffer_load_dwordx4 v[172:175], v246, {s(sWS,4)}, 0 offen offset:16 sc1"],
         flag_cond([168, 170, 172, 174], 0), "z")
    a.label(L6)
    a("s_barrier")
    ST.stamp("z seen")
    a(f"buffer_load_dwordx4 {v(ZV,4)}, v{vZA}, {s(sWS,4)}, s{sFS} offen sc1")
    a(f"buffer_load_dwordx4 {v(ZV+4,4)}, v{vZB}, {s(sWS,4)}, s{sHL} offen sc1")
    a("s_waitcnt vmcnt(2)")
    for st in range(9):
        for hs in range(2):
            d = DM + (st >> 1) * 4
            src = "0" if (st % 2 == 0 and hs == 0) else v(d, 4)
            a(f"{M16} {v(d,4)}, {v(ID+(st&1)*4,4)}, {v(RL+(2*st+hs)*4,4)}, {src}")
    XFp = 176
    for q in range(5):
        for h in range(2):
            a(f"v_lshlrev_b32 v{XFp+4*q+2*h}, 16, v{XV+2*q+h}")
            a(f"v_and_b32 v{XFp+4*q+2*h+1}, 0xffff0000, v{XV+2*q+h}")
    a("s_waitcnt lgkmcnt(0)")
    for j in range(20):
        a(f"v_sub_f32 v{XFp+20+j}, v{XFp+j}, v{SS}")
        a(f"v_mul_f32 v{XFp+20+j}, v{XFp+20+j}, v{SS+1}")
    a(f"s_mov_b32 s{sT}, {f32(LN2)}")
    for j in range(20):
        a(f"v_add_f32_dpp v{DM+j}, v{DM+j}, v{DM+j} row_ror:8 row_mask:0xf bank_mask:0xf")
    for j in range(20):
        a(f"v_fmac_f32 v{XFp+j}, s{sT}, v{DM+j}")
    a("s_waitcnt vmcnt(0)")
    for q in range(5):
        a(f"{M16} {v(DZ+4*q,4)}, {v(ZV+(q>>2)*4,4)}, {v(SEL+(q&3)*4,4)}, 0")
    a("s_nop 7")
    for q in range(5):
        for r in range(4): a(f"v_fmac_f32 v{XFp+4*q+r}, v{XFp+20+4*q+r}, v{DZ+4*q+r}")
        a(f"v_cvt_pk_bf16_f32 v{XV+2*q}, v{XFp+4*q}, v{XFp+4*q+1}")
        a(f"v_cvt_pk_bf16_f32 v{XV+2*q+1}, v{XFp+4*q+2}, v{XFp+4*q+3}")
        a(f"buffer_store_dwordx2 {v(XV+2*q,2)}, v{vSO4 if q == 4 else vSO}, {s(sW1,4)}, 0 offen offset:{q*256}")
    if opt.get("stamps"): a("s_waitcnt vmcnt(0)")
    ST.stamp("end"); ST.cyc(1)
    ST.flush(sWS, sW)
```

```python
from asmlib import *
import math
LOG2E = math.log2(math.e)
LN2 = math.log(2.0)
S, D, F = 2048, 576, 4608
XBYTES = S * D * 2
WBYTES = D * F * 2
WS_PART = 0
SLICE = XBYTES
PSL = 36864
PTB = 13 * PSL
WS_STATS = 16 * SLICE
WS_U = WS_STATS + 16384
WS_Z = WS_U + 144 * 256 * 128
WS_PF = WS_Z + XBYTES
WS_ZF = WS_PF + 2048
WS_PF2 = WS_ZF + 2048
WS_DBG = WS_PF2 + 8192
WS_END = WS_DBG + 4 * 512 * 8 * 256

class Track:
    def __init__(self, a, name, maxv):
        self.a, self.name, self.maxv = a, name, maxv
        self.q = []
    ctx = None
    def issue(self, tag=None):
        self.q.append((tag, self.ctx))
    def need(self, *tags):
        idx = -1
        for i, (t, c) in enumerate(self.q):
            if t in tags:
                assert c is None or c == self.ctx or self.ctx is None, (t, c, self.ctx)
                idx = i
        if idx < 0: return None
        younger = self.q[idx + 1:]
        n = sum(1 for (t, c) in younger if c is None or c == self.ctx)
        n = min(n, self.maxv)
        if self.ctx is None:
            self.q = younger
        else:
            self.q = [e for e in self.q[:idx + 1] if e[1] != self.ctx] + younger
        return f"s_waitcnt {self.name}({n})"
    def drain(self):
        self.q = [] if self.ctx is None else [e for e in self.q if e[1] != self.ctx]
        return f"s_waitcnt {self.name}(0)"

class Stamps:
    def __init__(self, a, on, kidx):
        self.a, self.on, self.kidx, self.n, self.names = a, on, kidx, 0, []
    def stamp(self, name, E=None):
        if not self.on: return
        assert self.n < 30
        self.a("s_memtime s[68:69]" if self.on == 2 else "s_memrealtime s[68:69]")
        self.a("s_waitcnt lgkmcnt(0)")
        if E is not None: E.lg.q = []
        self.a(f"s_mov_b32 s{70+self.n}, s68")
        self.names.append(name); self.n += 1
    def cyc(self, idx):
        if not self.on: return
        self.a("s_memtime s[68:69]")
        self.a("s_waitcnt lgkmcnt(0)")
        self.a(f"s_mov_b32 s{100+idx}, s68")
    def flush(self, srd, swave, v1=1, v2=2):
        if not self.on: return
        a = self.a
        if self.on == 3:
            sel = [i for i, n in enumerate(self.names) if n in ("start", "stats0", "barA", "Bx", "B3", "B6", "B12", "G2 start", "G2 B4", "G2 B8", "G2 end", "z published", "z seen", "end")]
            print([self.names[i] for i in sel])
            a("s_lshr_b64 s[68:69], s[6:7], 4")
            a(f"v_mov_b32 v{v1}, 0")
            for k, i in enumerate(sel):
                a(f"s_sub_u32 s69, s{70+i}, s68")
                a(f"s_max_i32 s69, s69, 0")
                a(f"v_writelane_b32 v{v1}, s69, {k+2}")
            a(f"v_mbcnt_lo_u32_b32 v{v2}, -1, 0")
            a(f"v_mbcnt_hi_u32_b32 v{v2}, -1, v{v2}")
            a(f"v_lshlrev_b32 v{v2}, 2, v{v2}")
            a(f"s_cmp_lg_u32 s{swave}, 0")
            L = a.newlabel("Lfl"); a(f"s_cbranch_scc1 {L}")
            a("s_mov_b64 exec, 0xfffc")
            a(f"buffer_atomic_umax v{v1}, v{v2}, s[52:55], 0 offen sc1")
            a.label(L)
            return
        a(f"v_mov_b32 v{v1}, 0")
        for i in range(self.n): a(f"v_writelane_b32 v{v1}, s{70+i}, {i}")
        a(f"v_writelane_b32 v{v1}, s100, 62")
        a(f"v_writelane_b32 v{v1}, s101, 63")
        a(f"v_mbcnt_lo_u32_b32 v{v2}, -1, 0")
        a(f"v_mbcnt_hi_u32_b32 v{v2}, -1, v{v2}")
        a(f"v_lshlrev_b32 v{v2}, 2, v{v2}")
        a(f"s_lshl_b32 s68, s2, 3")
        a(f"s_add_u32 s68, s68, s{swave}")
        a(f"s_lshl_b32 s68, s68, 8")
        a(f"s_add_u32 s68, s68, {WS_DBG + self.kidx * 512 * 8 * 256}")
        a(f"buffer_store_dword v{v1}, v{v2}, s[{srd}:{srd+3}], s68 offen")
        import json
        json.dump(self.names, open(f"stamps{self.kidx}.json", "w"))
```

```python
from common import *
from k_mlp import Emit, M16, mish_group
import k7h

NSL = 12
RING = 0
ACT = 73728
BIAS = 155648
LDS_ALL = 163840
SLOT = 49152
def POS(k): return {0: 7, 1: 8, 9: 9, 10: 7, 11: 8}.get(k, k - 2)

def XF(mt16, ks): return mt16 * 72 + ks * 4
def AFR(mu, kap):
    q, r = divmod(kap, 3); n = mu * 3 + r
    return 144 + n * 4 if q == 3 else XF(n // 6, 6 * q + n % 6)
ACC = 144; PEND = 160; FR = 176; BI = 208; TM = 216; AO = 244
ACC2 = 192; FR2 = 208
RA = [228, 229, 230, 231]
vW1, vW2, vJUNK, vACTW, vBIAS, vST, vRB, vL16 = 232, 233, 234, 235, 236, 237, 238, 239
T0 = 240
sX, sW1, sW2, sWS, sA, sDBG = 8, 12, 16, 20, 24, 52
sMT, sSL, sW, sMG, sPH, sFB2, sW2A = 28, 29, 30, 31, 32, 33, 34
sPFA = 35
sT = 56; sEX = 60
sOFF, sONES, sM0G, sOFF2 = 62, 63, 64, 65
sXR1, sCNT, sTAG = 3, 5, 6
OOB = "0x7ffffff0"

def spread(main, side):
    out = []; k = 0; n = len(main)
    for i, m in enumerate(main):
        out.append(m)
        want = (i + 1) * len(side) // n
        while k < want:
            out.extend(side[k]); k += 1
    for g in side[k:]: out.extend(g)
    return out
def flat(groups): return [x for g in groups for x in g]
def srd2(a, d, nbytes):
    a(f"s_and_b32 s{d+1}, s{d+1}, 0xffff")
    a(f"s_mov_b32 s{d+2}, {nbytes}")
    a(f"s_mov_b32 s{d+3}, 0x00020000")
def poll(a, load, cond_lines, tag, sleep=8):
    L, Ld = a.newlabel("Lpoll" + tag), a.newlabel("Lpd" + tag)
    a.label(L)
    for l in load: a(l)
    a("s_waitcnt vmcnt(0)")
    for l in cond_lines: a(l)
    a(f"s_cbranch_scc1 {Ld}")
    a(f"s_sleep {sleep}")
    a(f"s_sub_u32 s{sCNT}, s{sCNT}, 1")
    a(f"s_cbranch_scc0 {L}")
    a(f"s_mov_b32 s{sCNT}, 0")
    a.label(Ld)
def stats_math(s0, q0, mean, var, mb, rs):
    return [f"v_mul_f32 v{mean}, {f32(1.0/576)}, v{s0}",
            f"v_mul_f32 v{var}, {f32(1.0/576)}, v{q0}",
            f"v_fma_f32 v{var}, -v{mean}, v{mean}, v{var}",
            f"v_max_f32 v{var}, 0, v{var}",
            f"v_cvt_pk_bf16_f32 v{mb}, v{mean}, v{var}",
            f"v_and_b32 v{var}, 0xffff0000, v{mb}",
            f"v_lshlrev_b32 v{mb}, 16, v{mb}",
            f"v_add_f32 v{var}, {f32(1e-5)}, v{var}",
            f"v_cvt_pk_bf16_f32 v{var}, v{var}, v{var}",
            f"v_lshlrev_b32 v{var}, 16, v{var}",
            f"v_sqrt_f32 v{var}, v{var}",
            "s_nop 0",
            f"v_cvt_pk_bf16_f32 v{var}, v{var}, v{var}",
            f"v_lshlrev_b32 v{var}, 16, v{var}",
            f"v_rcp_f32 v{rs}, v{var}",
            "s_nop 0"]

def gen(a, opt=None):
    opt = opt or {}
    E = Emit(a)
    Lend, Lhelp = a.newlabel("Lend"), a.newlabel("Lhelp")
    a("s_cmp_ge_u32 s2, 256")
    a(f"s_cbranch_scc1 {Lend}")
    ST = Stamps(a, opt.get("stamps"), 0)
    ST.stamp("start"); ST.cyc(0)
    a(f"s_mov_b32 s{sCNT}, 0x80000")
    a("s_cmp_ge_u32 s2, 192")
    a(f"s_cbranch_scc1 {Lhelp}")
    for d, off in ((sX, 0), (sW1, 56), (sA, 64), (sW2, 72), (sWS, 96), (sDBG, 88)):
        a(f"s_load_dwordx2 s[{d}:{d+1}], s[0:1], {off}")
    lane, r8, u8 = T0 + 1, T0 + 2, T0 + 3
    a(f"v_lshrrev_b32 v{T0}, 6, v0")
    a(f"v_and_b32 v{lane}, 63, v0")
    a(f"v_readfirstlane_b32 s{sW}, v{T0}")
    a(f"s_lshr_b32 s{sT}, s2, 3")
    a(f"s_mul_i32 s{sT+1}, s{sT}, 11")
    a(f"s_lshr_b32 s{sT+1}, s{sT+1}, 5")
    a(f"s_mul_i32 s{sT+2}, s{sT+1}, 3")
    a(f"s_sub_u32 s{sT}, s{sT}, s{sT+2}")
    a(f"s_and_b32 s{sT+2}, s2, 3")
    a(f"s_mul_i32 s{sT+2}, s{sT+2}, 3")
    a(f"s_add_u32 s{sSL}, s{sT}, s{sT+2}")
    a(f"s_bfe_u32 s{sT}, s2, 0x10002")
    a(f"s_lshl_b32 s{sT}, s{sT}, 3")
    a(f"s_add_u32 s{sMT}, s{sT}, s{sT+1}")
    a(f"s_and_b32 s{sMG}, s{sW}, 3")
    a(f"s_lshr_b32 s{sPH}, s{sW}, 2")
    a(f"v_lshrrev_b32 v{r8}, 3, v{lane}")
    a(f"v_and_b32 v{u8}, 7, v{lane}")
    a(f"s_lshl_b32 s{sT+1}, s{sMG}, 5")
    a(f"s_lshl_b32 s{sT+2}, s{sPH}, 3")
    a(f"s_add_u32 s{sT+1}, s{sT+1}, s{sT+2}")
    a(f"s_lshl_b32 s{sT}, s{sMT}, 7")
    a(f"s_add_u32 s{sT}, s{sT}, s{sT+1}")
    vXO = T0 + 5
    a(f"v_add_u32 v{vXO}, s{sT}, v{r8}")
    a(f"v_mul_u32_u24 v{vXO}, 1152, v{vXO}")
    a(f"v_lshl_add_u32 v{vXO}, v{u8}, 4, v{vXO}")
    a(f"s_movk_i32 s{sXR1}, 18432")
    a("s_waitcnt lgkmcnt(0)")
    srd2(a, sX, XBYTES)
    RAW = [144, 180]
    def x_load(rho, j):
        so = "0" if rho == 0 else f"s{sXR1}"
        return dict(i=f"buffer_load_dwordx4 {v(RAW[rho]+4*j,4)}, v{vXO}, {s(sX,4)}, {so} offen offset:{128*j}", vm=("x", rho, j))
    for j in range(9): E.one(x_load(0, j))
    ST.stamp("x0 issued")
    srd2(a, sW1, WBYTES); srd2(a, sA, F * 2); srd2(a, sW2, WBYTES); srd2(a, sWS, WS_END); srd2(a, sDBG, 256)
    a(f"s_mul_i32 s{sFB2}, s{sSL}, 768")
    a(f"s_mul_i32 s{sW2A}, s{sSL}, {384*1152}")
    a(f"s_lshl_b32 s{sM0G}, s{sMG}, 10")
    a(f"s_mov_b32 s{sONES}, 0x3f803f80")
    a(f"v_lshlrev_b32 v{vL16}, 4, v{lane}")
    t1, t2 = T0 + 8, T0 + 9
    a(f"s_lshl_b32 s{sT}, s{sMG}, 3")
    a(f"v_add_u32 v{t2}, s{sT}, v{r8}")
    a(f"v_mul_u32_u24 v{vW1}, 9216, v{t2}")
    a(f"v_bfe_u32 v{t1}, v{r8}, 1, 1")
    a(f"s_and_b32 s{sT}, s{sW}, 1")
    a(f"s_lshl_b32 s{sT}, s{sT}, 1")
    a(f"v_or_b32 v{t1}, s{sT}, v{t1}")
    a(f"v_lshlrev_b32 v{t1}, 1, v{t1}")
    a(f"v_xor_b32 v{t1}, v{t1}, v{u8}")
    a(f"v_lshl_add_u32 v{vW1}, v{t1}, 4, v{vW1}")
    a(f"v_mul_u32_u24 v{vW2}, 1152, v{t2}")
    a(f"v_and_b32 v{t1}, 6, v{r8}")
    a(f"v_xor_b32 v{t1}, v{t1}, v{u8}")
    a(f"v_lshl_add_u32 v{vW2}, v{t1}, 4, v{vW2}")
    vBE, vBV = T0 + 6, T0 + 7
    a(f"v_lshlrev_b32 v{vBE}, 1, v0")
    g4, rp, c4, fsw = T0 + 10, T0 + 11, T0 + 12, T0 + 13
    a(f"v_lshrrev_b32 v{g4}, 4, v{lane}")
    a(f"v_bfe_u32 v{rp}, v{lane}, 2, 2")
    a(f"v_and_b32 v{c4}, 3, v{lane}")
    a(f"v_lshrrev_b32 v{t1}, 1, v{rp}")
    a(f"v_and_b32 v{t2}, 1, v{g4}")
    a(f"v_lshl_or_b32 v{fsw}, v{t2}, 1, v{t1}")
    a(f"s_lshl_b32 s{sT}, s{sPH}, 1")
    a(f"v_xor_b32 v{t1}, s{sT}, v{fsw}")
    a(f"v_lshlrev_b32 v{t1}, 5, v{t1}")
    a(f"v_lshl_add_u32 v{t1}, v{g4}, 10, v{t1}")
    a(f"v_lshl_add_u32 v{t1}, v{rp}, 7, v{t1}")
    a(f"v_lshl_add_u32 v{RA[0]}, v{c4}, 3, v{t1}")
    a(f"v_xor_b32 v{RA[1]}, 32, v{RA[0]}")
    a(f"v_add_u32 v{RA[3]}, 0x8000, v{RA[1]}")
    a(f"v_add_u32 v{RA[2]}, 0x8000, v{RA[0]}")
    a(f"s_lshr_b32 s{sT}, s{sW}, 1")
    a(f"v_xor_b32 v{t1}, s{sT}, v{fsw}")
    a(f"v_lshlrev_b32 v{t1}, 5, v{t1}")
    a(f"v_lshl_add_u32 v{t1}, v{g4}, 9, v{t1}")
    a(f"v_lshl_add_u32 v{t1}, v{rp}, 7, v{t1}")
    a(f"v_lshl_add_u32 v{vRB}, v{c4}, 3, v{t1}")
    a(f"s_lshl_b32 s{sT}, s{sPH}, 7")
    a(f"s_add_u32 s{sT}, s{sT}, {BIAS}")
    a(f"v_lshl_add_u32 v{vBIAS}, v{g4}, 4, s{sT}")
    a(f"s_lshl_b32 s{sT}, s{sMG}, 11")
    a(f"s_add_u32 s{sT}, s{sT}, {ACT}")
    a(f"v_add_u32 v{vACTW}, s{sT}, v{vL16}")
    a(f"s_mul_i32 s{sT}, s{sMG}, 18432")
    a(f"s_add_u32 s{sT}, s{sT}, {ACT}")
    vXW = T0 + 14
    a(f"s_lshl_b32 s{sT+1}, s{sPH}, 3")
    a(f"v_add_u32 v{t1}, s{sT+1}, v{r8}")
    a(f"v_xor_b32 v{t1}, v{t1}, v{u8}")
    a(f"v_lshlrev_b32 v{t1}, 4, v{t1}")
    a(f"v_lshl_add_u32 v{t1}, v{u8}, 8, v{t1}")
    a(f"v_add_u32 v{vXW}, s{sT}, v{t1}")
    vXR0, vXR1 = T0 + 15, T0 + 8
    a(f"v_and_b32 v{t2}, 15, v{lane}")
    a(f"v_xor_b32 v{t2}, v{t2}, v{g4}")
    a(f"v_lshlrev_b32 v{t2}, 4, v{t2}")
    a(f"v_lshl_add_u32 v{t2}, v{g4}, 8, v{t2}")
    a(f"v_add_u32 v{vXR0}, s{sT}, v{t2}")
    a(f"v_xor_b32 v{vXR1}, 64, v{vXR0}")
    a(f"s_mul_i32 s{sT+2}, s{sSL}, {SLICE}")
    a(f"s_lshl_b32 s{sT}, s{sMT}, 2")
    a(f"s_and_b32 s{sT+1}, s{sW}, 1")
    a(f"s_lshl_b32 s{sT+1}, s{sT+1}, 1")
    a(f"s_add_u32 s{sT}, s{sT}, s{sT+1}")
    a(f"s_mul_i32 s{sT}, s{sT}, 36864")
    a(f"s_add_u32 s{sT+2}, s{sT+2}, s{sT}")
    a(f"s_lshr_b32 s{sT}, s{sW}, 1")
    a(f"s_lshl_b32 s{sT}, s{sT}, 10")
    a(f"s_add_u32 s{sT+2}, s{sT+2}, s{sT}")
    a(f"v_add_u32 v{vST}, s{sT+2}, v{vL16}")
    a(f"s_lshl_b32 s{sT}, s{sMT}, 7")
    a(f"s_lshl_b32 s{sT+1}, s{sSL}, 3")
    a(f"s_add_u32 s{sT}, s{sT}, s{sT+1}")
    a(f"s_add_u32 s{sT}, s{sT}, {WS_PF}")
    a(f"s_cmp_eq_u32 s{sW}, 4")
    a(f"s_cselect_b32 s{sPFA}, s{sT}, {OOB}")

    A_, C_ = TM + 8, TM + 10
    def ln_stats(rho):
        o = []
        R = RAW[rho]
        s0, s1, q0, q1 = TM, TM + 1, TM + 2, TM + 3
        o += [f"v_mov_b32 v{s0}, 0", f"v_mov_b32 v{s1}, 0", f"v_mov_b32 v{q0}, 0", f"v_mov_b32 v{q1}, 0"]
        for j in range(9):
            for k in range(4):
                r = R + 4 * j + k
                o.append(dict(i=f"v_dot2c_f32_bf16 v{(s0, s1)[k & 1]}, s{sONES}, v{r}", needv=[("x", rho, j)]))
                o.append(f"v_dot2c_f32_bf16 v{(q0, q1)[k & 1]}, v{r}, v{r}")
        o += ["s_nop 2", f"v_add_f32 v{s0}, v{s0}, v{s1}", f"v_add_f32 v{q0}, v{q0}, v{q1}", "s_nop 0"]
        for dpp in ("quad_perm:[1,0,3,2]", "quad_perm:[2,3,0,1]", "row_half_mirror"):
            o += [f"v_add_f32_dpp v{s1}, v{s0}, v{s0} {dpp} row_mask:0xf bank_mask:0xf",
                  f"v_add_f32_dpp v{q1}, v{q0}, v{q0} {dpp} row_mask:0xf bank_mask:0xf", "s_nop 0"]
            s0, s1, q0, q1 = s1, s0, q1, q0
        mean, var, mb, rs = TM + 4, TM + 5, TM + 6, TM + 7
        o += stats_math(s0, q0, mean, var, mb, rs)
        o += [f"v_mul_f32 v{A_}, {f32(LOG2E)}, v{rs}", f"v_mul_f32 v{C_}, v{mb}, v{A_}"]
        return o
    def ln_norm(rho):
        o = []
        R = RAW[rho]
        tp = [T0 + 10, T0 + 12]
        for j in range(9):
            for k in range(0, 4, 2):
                for kk in range(2):
                    r = R + 4 * j + k + kk; t = tp[kk]
                    o += [f"v_lshlrev_b32 v{t}, 16, v{r}", f"v_and_b32 v{t+1}, 0xffff0000, v{r}"]
                for kk in range(2):
                    t = tp[kk]
                    o.append(f"v_pk_fma_f32 {v(t,2)}, {v(t,2)}, {v(A_,2)}, {v(C_,2)} op_sel_hi:[1,0,0] neg_lo:[0,0,1] neg_hi:[0,0,1]")
                for kk in range(2):
                    r = R + 4 * j + k + kk; t = tp[kk]
                    o.append(f"v_cvt_pk_bf16_f32 v{r}, v{t}, v{t+1}")
            o.append(dict(i=f"ds_write_b128 v{vXW}, {v(R+4*j,4)} offset:{j*2048}", lds="xw"))
        return o
    def xn_read(rho, ks):
        return dict(i=f"ds_read_b128 {v(XF(rho,ks),4)}, v{(vXR0, vXR1)[ks & 1]} offset:{ks*1024}", lds=("xf", rho, ks))
    NT = 6; NS1 = 3 * NT; NU = 9 * NT; NG = 18 * NT
    def w1_unit(U, hi):
        T, gam = divmod(U, 9)
        return [f"s_add_u32 m0, s{sM0G}, {RING + gam * 8192 + hi * 4096}",
                f"s_add_u32 s{sOFF}, s{sFB2}, {(gam * 64 + hi * 32) * 9216 + T * 128}",
                dict(i=f"buffer_load_dwordx4 v{vW1}, {s(sW1,4)}, s{sOFF} offen lds", vm=("w1", (U - 1) // 3))]
    def units_of(sg): return range(max(0, 3 * sg + 1), min(NU, 3 * sg + 4))
    def frag(g, aa): return FR + ((g % 4) * 2 + aa) * 4
    def greads(g):
        if g >= NG: return []
        T, ks = divmod(g, 18)
        o = []
        for aa in range(2):
            f = frag(g, aa); hi = ks >= 8
            off = RING + ks * 4096 - (0x8000 if hi else 0)
            for nu in range(2):
                o.append(dict(i=f"ds_read_b64_tr_b16 {v(f+2*nu,2)}, v{RA[aa + 2*hi]} offset:{off + nu*512}", lds=("A", g, aa)))
        return o
    def bias_reads(T):
        return [dict(i=f"ds_read_b128 {v(BI+4*aa,4)}, v{vBIAS} offset:{T*256 + aa*64}", lds=("B", T)) for aa in range(2)]
    vACTH, vAR, vARH = 243, 240, 241
    def mish_tile(T, ph):
        o = []
        p = POS(2 * T + ph)
        for mt16 in range(2):
            for aa in range(2):
                o += mish_group(PEND + (aa * 2 + mt16) * 4, AO + mt16 * 4 + aa * 2, TM)
            o.append(dict(i=f"ds_write_b128 v{vACTH if p >= 4 else vACTW}, {v(AO+mt16*4,4)} offset:{mt16*1024 + (p - 4 if p >= 4 else p)*8192}", lds="aw"))
        return o
    def cost(x):
        t = x if isinstance(x, str) else x.get("i", "")
        return 2 if t.startswith(("v_exp", "v_rcp")) else 1 if t.startswith("v_") else 0
    def take(q, budget):
        out = []
        while q and budget > 0:
            budget -= cost(q[0]); out.append(q.pop(0))
        while q and cost(q[0]) == 0: out.append(q.pop(0))
        return out
    def w2_dma(st, ph):
        o = []
        for n in range(6):
            q = 24 * ph + 4 * n
            o.append([f"s_add_u32 m0, s{sM0G}, {(st % 3) * SLOT + q * 1024}",
                      f"s_add_u32 s{sOFF}, s{sW2A}, {q * 8 * 1152 + st * 128}",
                      dict(i=f"buffer_load_dwordx4 v{vW2}, {s(sW2,4)}, s{sOFF} offen lds", vm=("w2", st))])
        return o
    vRBs = [vRB, 228, 229]
    PD2 = 3
    def frag2(g): return FR2 + (g % 5) * 4
    def b_reads(st, i):
        f = frag2(12 * st + i)
        return [dict(i=f"ds_read_b64_tr_b16 {v(f+2*nu,2)}, v{vRBs[st % 3]} offset:{i*4096 + nu*2048}", lds=("W", st, i)) for nu in range(2)]
    def act_reads(kap):
        p = POS(kap)
        return [dict(i=f"ds_read_b128 {v(AFR(mu,kap),4)}, v{vARH if p >= 4 else vAR} offset:{mu*1024 + (p - 4 if p >= 4 else p)*8192}", lds=("act", kap)) for mu in range(4)]
    def epi_valu():
        o = []
        for pr in range(2):
            p = AO + pr * 4
            for mu in range(2):
                src = ACC2 + (pr * 2 + mu) * 4
                o.append(f"v_cvt_pk_bf16_f32 v{p+2*mu}, v{src}, v{src+1}")
                o.append(f"v_cvt_pk_bf16_f32 v{p+2*mu+1}, v{src+2}, v{src+3}")
        o.append("s_nop 0")
        for pr in range(2):
            p = AO + pr * 4
            o.append(f"v_permlane16_swap_b32 v{p}, v{p+2}")
            o.append(f"v_permlane16_swap_b32 v{p+1}, v{p+3}")
        return o
    def epi_store(st):
        o = []
        for pr in range(2):
            o.append(f"s_mov_b32 s{sOFF2}, {pr * 36864 + st * 4096}")
            o.append(dict(i=f"buffer_store_dwordx4 {v(AO+pr*4,4)}, v{vST}, {s(sWS,4)}, s{sOFF2} offen sc1", vm=("st", st)))
        return o
    vFA, vFD = 230, 252
    def publish(level):
        return [f"s_add_u32 s{sT}, s{sTAG}, {level}", f"v_mov_b32 v{vFD}, s{sT}",
                dict(i=f"buffer_store_dwordx2 {v(vFD,2)}, v{vFA}, {s(sWS,4)}, 0 offen sc1", vm="pf")]

    def body(ph):
        X = Emit(a); X.lg.q = list(E.lg.q); X.vm.q = list(E.vm.q)
        n0 = ST.n; names0 = list(ST.names)
        def barrier(needl, needv, name=None):
            X.one(dict(needl=needl, needv=needv))
            a("s_barrier")
            if name: ST.stamp(name, X)
        if ph == 1: a("s_setprio 1")
        st0 = ln_stats(0)
        o = st0[:4]
        for j in range(9): o += st0[4 + 8 * j: 12 + 8 * j] + [x_load(1, j)]
        X.run(o + st0[76:])
        ST.stamp("stats0", X)
        bl = [[dict(i=f"buffer_load_ushort v{vBV}, v{vBE}, {s(sA,4)}, s{sFB2} offen", vm="bias")]]
        X.run(spread(ln_norm(0), bl + [w1_unit(U, ph) for U in range(0, 4)]))
        a(f"v_lshlrev_b32 v{vBE}, 2, v0")
        a(f"v_add_u32 v{vBE}, {BIAS}, v{vBE}")
        ST.stamp("norm0", X)
        X.run(spread(ln_stats(1), [w1_unit(U, ph) for U in range(4, 9)]))
        X.one(dict(i=f"v_lshlrev_b32 v{vBV}, 16, v{vBV}", needv=["bias"]))
        a(f"v_mul_f32 v{vBV}, {f32(LOG2E)}, v{vBV}")
        X.one(dict(i=f"ds_write_b32 v{vBE}, v{vBV}", lds="bw"))
        if opt.get("touch1", 1):
            a("v_mul_u32_u24 v1, 13108, v0")
            a("v_lshrrev_b32 v1, 16, v1")
            a("v_mul_u32_u24 v2, 5, v1")
            a("v_sub_u32 v2, v0, v2")
            a("v_mul_u32_u24 v1, 9216, v1")
            a("v_lshl_add_u32 v1, v2, 7, v1")
            a(f"v_mov_b32 v2, {OOB}")
            a("v_cmp_gt_u32 vcc, 360, v0")
            a(f"s_and_b32 s{sT}, s{sMT}, 7")
            a(f"s_mul_i32 s{sT}, s{sT}, {72*9216}")
            a("v_cndmask_b32 v1, v2, v1, vcc")
            a(f"s_add_u32 s{sT}, s{sT}, s{sFB2}")
            X.one(dict(i=f"buffer_load_dword v{vJUNK}, v1, {s(sW1,4)}, s{sT} offen offset:128", vm="t"))
        ST.stamp("stats1", X)
        a(X.lg.drain()); a("s_barrier")
        ST.stamp("barA")
        n1 = ln_norm(1)
        JS = opt.get("js", 4)
        first = [x for x in n1[:17 * JS] if isinstance(x, str)]
        wr = [x for x in n1[:17 * JS] if not isinstance(x, str)]
        X.run(spread(first[:len(first) * 3 // 4], [[xn_read(0, ks)] for ks in range(18)]) + first[len(first) * 3 // 4:])
        a(X.lg.drain()); a("s_barrier")
        X.run(spread(n1[17 * JS:], [[w] for w in wr]))
        a(f"v_add_u32 v{vACTH}, 0x8000, v{vACTW}")
        a(f"s_and_b32 s{sT}, s{sW}, 1")
        a(f"s_lshl_b32 s{sT}, s{sT}, 12")
        a(f"s_add_u32 s{sT}, s{sT}, {ACT}")
        a(f"v_add_u32 v{vAR}, s{sT}, v{vL16}")
        a(f"v_add_u32 v{vARH}, 0x8000, v{vAR}")
        ST.stamp("norm1", X)
        barrier(["xw"], [("w1", -1)], "Bx")
        def burst1(st, bar, extra=()):
            T, t = divmod(st, 3)
            mfs = []
            for kl in range(6):
                ks = 6 * t + kl; g = 18 * T + ks
                for aa in range(2):
                    for mt16 in range(2):
                        acc = ACC + (aa * 2 + mt16) * 4
                        src = v(BI + 4 * aa, 4) if ks == 0 else v(acc, 4)
                        dst = acc if ks < 17 else PEND + (aa * 2 + mt16) * 4
                        nl = [("A", g, 0), ("A", g, 1)]
                        if ks == 0: nl.append(("B", T))
                        if T == 0: nl.append(("xf", mt16, ks))
                        mfs.append((kl, dict(i=f"{M16} {v(dst,4)}, {v(frag(g,aa),4)}, {v(XF(mt16,ks),4)}, {src}", needl=nl)))
            rd = [(kl, r) for kl in range(6) for r in greads(6 * st + 2 + kl)]
            extra = list(extra)
            n = len(mfs)
            nb = opt.get("nb", 2) if ph == 0 else 0
            last = n if ph == 0 else n - opt.get("tail", 3)
            a("s_setprio 0")
            for mi, (kl, m) in enumerate(mfs):
                X.one(m)
                if ph == 0 and mi == nb - 1 and bar: bar()
                if ph == 1 and mi == opt.get("prio_at", 12): a("s_setprio 1")
                if mi >= nb - 1:
                    left = max(1, last - mi)
                    cnt = -(-len(rd) // left)
                    is_last_of_k = (mi + 1 == n) or mfs[mi + 1][0] != kl
                    for _ in range(min(cnt, 2)):
                        if rd and (rd[0][0] - 2 < kl or (rd[0][0] - 2 == kl and is_last_of_k)):
                            X.one(rd.pop(0)[1])
                if extra: X.one(extra.pop(0))
            X.run([r for _, r in rd])
            X.run(extra)
            a(f"s_setprio {opt.get('vprio', 2) if ph == 0 else max(1, opt.get('vprio', 2))}")
        def valu1(items, dmas):
            X.run(spread(items, dmas) if items else flat(dmas))
        xr1 = [xn_read(1, ks) for ks in range(18)]
        X.run(xr1[:3] + bias_reads(0) + greads(0) + greads(1))
        mq = []
        LS = NS1 - 1
        def lastl(sg):
            g = min(NG - 1, 6 * sg + 7)
            return [("A", g, 0), ("A", g, 1), ("xf", 1, 17)] + (["aw", ("act", 2)] if sg == LS - 1 else [])
        for st in range(NS1):
            T, t = divmod(st, 3)
            nm = f"B{st}" if t == 0 else None
            us = [9] if st == 0 else list(units_of(st + 2))
            dm = [w1_unit(U, ph) for U in us]
            bar = lambda: barrier(lastl(st - 1) if st else [("A", 1, 1)], [("w1", st)], nm)
            br = [[r] for r in bias_reads(T + 1)] if (t == 1 and T < NT - 1) else []
            q = st - (LS - 2) - ph
            if 0 <= q < 2: br = br + [[r] for kap in range(3 * q, 3 * q + 3) for r in act_reads(kap)]
            if ph == 1 and st == 1:
                br = br + [[f"v_mov_b32 v{TM}, 0", dict(i=f"buffer_load_dwordx2 {v(vFD,2)}, v{TM}, {s(sDBG,4)}, 0 offen sc1", vm="tg")]]
            if ph == 0:
                burst1(st, bar, xr1[3:] if st == 0 else ())
                if st == LS: break
                fresh = (t == 2)
                if fresh: mq.extend(mish_tile(T, 0))
                items = take(mq, 10 ** 6 if t == 1 else opt.get("bf", 40))
                if fresh and items:
                    for g in dm[:2]: X.run(g)
                    a("s_nop 1" if len(dm) >= 2 else "s_nop 7")
                    dm = dm[2:]
                valu1(items, dm + br)
            else:
                fresh = (t == 0 and st > 0)
                if fresh: mq.extend(mish_tile(T - 1, 1))
                items = take(mq, 10 ** 6 if t == 2 else opt.get("bf", 40))
                if st == 0: items = xr1[3:]
                if fresh and items: a("s_nop 7")
                k = opt.get("k1", 4) if st else 0
                X.run(items[:k])
                bar()
                if st == LS: dm = w2_dma(0, 1)
                valu1(items[k:], dm + br)
                burst1(st, None)
        assert not mq
        for k in (1, 2): a(f"v_add_u32 v{vRBs[k]}, {k*SLOT}, v{vRB}")
        a(f"v_mov_b32 v{vFA}, {OOB}")
        a(f"v_writelane_b32 v{vFA}, s{sPFA}, 0")
        if ph == 1:
            Lt = a.newlabel("Ltg")
            cond = [f"v_readfirstlane_b32 s{sTAG+1}, v{vFD+1}", f"v_readfirstlane_b32 s{sTAG}, v{vFD}", f"s_cmp_lg_u32 s{sTAG+1}, 0"]
            X.one(dict(needv=["tg"]))
            X.run(cond); a(f"s_cbranch_scc1 {Lt}")
            a(f"v_mov_b32 v{TM}, 0")
            poll(a, [f"buffer_load_dwordx2 {v(vFD,2)}, v{TM}, {s(sDBG,4)}, 0 offen sc1"], cond, "i")
            a.label(Lt)
        a("s_nop 3")
        early = [[r] for kap in range(6, 9) for r in act_reads(kap)]
        if ph == 0: early = w2_dma(0, 0) + early
        mt = mish_tile(NT - 1, ph)
        X.run(spread(mt[:70], early) + mt[70:])
        a(X.lg.drain())
        barrier([], [("w2", 0)], "G2 start")
        late = [r for kap in range(9, 12) for r in act_reads(kap)]
        def burst2(st, embed_barrier, extra=(), xbar=None):
            extra = list(extra)
            a("s_setprio 0")
            for i in range(12):
                nxt = b_reads(st, i + PD2) if i + PD2 < 12 else []
                for mu in range(4):
                    acc = ACC2 + mu * 4
                    src = "0" if i == 0 else v(acc, 4)
                    nl = [("W", st, i)] + ([("act", i)] if st == 0 else [])
                    X.one(dict(i=f"{M16} {v(acc,4)}, {v(frag2(12*st+i),4)}, {v(AFR(mu,i),4)}, {src}", needl=nl))
                    if nxt and mu % 2 == 0: X.one(nxt.pop(0))
                    elif extra: X.one(extra.pop(0))
                    if xbar and i == 7 and mu == 3: xbar()
                    if embed_barrier and i == 12 - PD2 + 1 and mu == 0:
                        a("s_setprio 1")
                        embed_barrier()
            a("s_setprio 2")
            assert not extra
        def pre2(st): return [r for i in range(PD2) for r in b_reads(st, i)]
        LAG = opt.get("lag", 1)
        for st in range(9):
            nxtv = ([("w2", st + 1)] if st < 8 else []) + [("st", st - LAG - 1 + 0)]
            lastw = [("W", st, 11)]
            dm = w2_dma(st + 2, ph) if st + 2 <= 8 else []
            nm = f"G2 B{st+1}" if st % 2 == 1 else None
            def vphase(est):
                d = list(dm)
                for g in d[:2]: X.run(g)
                if len(d) < 2: a("s_nop 7")
                valu1(epi_valu(), d[2:])
                X.run(epi_store(est))
            xb = lambda: barrier([("act", 11)], [])
            if ph == 0:
                X.run(pre2(st))
                if st == 0: X.run(flat(w2_dma(1, 0)))
                burst2(st, None, late if st == 0 else (), xb if st == 0 else None)
                vphase(st)
                if st < 8: barrier(lastw, nxtv, nm)
            else:
                if st == 0:
                    valu1(late, w2_dma(1, 1))
                    xb()
                    X.run(flat(dm))
                else:
                    lvl = st - 1 - LAG
                    if lvl >= 1: X.run(publish(lvl))
                    vphase(st - 1)
                X.run(pre2(st))
                burst2(st, (lambda: barrier(lastw, nxtv, nm)) if st < 8 else None)
        if ph == 1:
            dm = []
            vphase(8)
        ST.stamp("G2 end", X)
        a("s_waitcnt vmcnt(0)")
        a("s_barrier")
        if ph == 1: X.run(publish(9))
        ST.stamp("end"); ST.cyc(1)
        ST.flush(sWS, sW)
        a("s_endpgm")
        ST.n = n0; ST.names = names0
    Lp1 = a.newlabel("Lph1")
    a(f"s_cmp_lg_u32 s{sPH}, 0")
    a(f"s_cbranch_scc1 {Lp1}")
    body(0)
    a.label(Lp1)
    body(1)
    a.label(Lhelp)
    k7h.helper(a, opt, Lend)
    a.label(Lend)
    a("s_endpgm")
```

```python
from common import *
from k_mlp import Emit, M16

KB = 0; KCH = 8448; KC1 = 4096 + 128
UB = 9 * 8448; UCH = 9216; UCP = 4576
STB = 159744
WS_UF = WS_ZF + 1536
sX, sK, sV, sWS, sSK, sKF, sDD, sOUT, sDBG = 8, 12, 16, 20, 24, 40, 44, 48, 52
sH, sW, sMG, sPH, sQ, sKC, sZO, sI = 28, 30, 31, 32, 33, 34, 35, 36
sT = 56; sEX = 60; sOFF = 62
sCNT, sTAG = 5, 6
OOB = "0x7ffffff0"
vL16, vLN, vT16 = 239, 241, 238
NSL = 12

def flag_cond(regs, level):
    lv = level if isinstance(level, str) else str(level)
    o = [f"s_add_u32 s{sT+3}, s{sTAG}, {lv}"]
    for r in regs:
        o += [f"v_subrev_u32 v{r}, s{sT+3}, v{r}", f"v_xor_b32 v{r+1}, s{sTAG+1}, v{r+1}", f"v_lshrrev_b32 v{r}, 4, v{r}", f"v_or_b32 v{r}, v{r}, v{r+1}"]
    for r in regs[1:]: o.append(f"v_or_b32 v{regs[0]}, v{regs[0]}, v{r}")
    return o + [f"v_cmp_ne_u32 vcc, 0, v{regs[0]}", "s_cmp_eq_u64 vcc, 0"]

def helper(a, opt, Lend):
    from k7 import srd2, poll, stats_math
    ST = Stamps(a, opt.get("stamps"), 1)
    ST.n = 1; ST.names = ["start"]
    for d, off in ((sX, 0), (sK, 8), (sV, 16), (sSK, 24), (sKF, 32), (sDD, 40), (sOUT, 80), (sDBG, 88), (sWS, 96)):
        a(f"s_load_dwordx2 s[{d}:{d+1}], s[0:1], {off}")
    a("v_lshrrev_b32 v1, 6, v0")
    a(f"v_and_b32 v{vLN}, 63, v0")
    a(f"v_readfirstlane_b32 s{sW}, v1")
    a(f"s_sub_u32 s{sH}, s2, 192")
    a(f"v_lshlrev_b32 v{vL16}, 4, v{vLN}")
    a(f"v_lshlrev_b32 v{vT16}, 4, v0")
    a(f"s_and_b32 s{sMG}, s{sW}, 3")
    a(f"s_lshr_b32 s{sPH}, s{sW}, 2")
    a("s_waitcnt lgkmcnt(0)")
    srd2(a, sDBG, 256); srd2(a, sK, XBYTES); srd2(a, sV, XBYTES); srd2(a, sX, XBYTES); srd2(a, sWS, WS_END)
    srd2(a, sSK, 576 * 8); srd2(a, sKF, XBYTES); srd2(a, sDD, 576 * 2); srd2(a, sOUT, XBYTES)
    def one_lane_flag(addr_sgpr, level=0):
        a(f"v_mov_b32 v1, {OOB}")
        a(f"s_add_u32 s{sT+3}, s{sTAG}, {level}")
        a(f"v_mov_b32 v2, s{sT+3}")
        a(f"v_mov_b32 v3, s{sTAG+1}")
        a(f"v_writelane_b32 v1, s{addr_sgpr}, 0")
        a(f"buffer_store_dwordx2 v[2:3], v1, {s(sWS,4)}, 0 offen sc1")
    Lr = a.newlabel("Ltag")
    a(f"s_lshl_b32 s{sT}, s{sH}, 3")
    a(f"s_add_u32 s{sT}, s{sT}, s{sW}")
    a(f"s_cmp_lg_u32 s{sT}, 7")
    a(f"s_cbranch_scc1 {Lr}")
    a(f"s_memrealtime s[{sT}:{sT+1}]")
    a(f"v_mov_b32 v1, {OOB}")
    a("v_writelane_b32 v1, 0, 0")
    a("s_waitcnt lgkmcnt(0)")
    a(f"s_lshl_b64 s[{sT}:{sT+1}], s[{sT}:{sT+1}], 4")
    a(f"s_bitset1_b32 s{sT+1}, 31")
    a(f"v_mov_b32 v2, s{sT}")
    a(f"v_mov_b32 v3, s{sT+1}")
    a(f"buffer_store_dwordx2 v[2:3], v1, {s(sDBG,4)}, 0 offen sc1")
    a.label(Lr)
    if opt.get("ctouch", 1):
        Lc = a.newlabel("Lct")
        a(f"s_cmp_lg_u32 s{sW}, 6")
        a(f"s_cbranch_scc1 {Lc}")
        a(f"s_getpc_b64 s[{sT}:{sT+1}]")
        Lh = a.newlabel("Lhere"); a.label(Lh)
        a(f"s_sub_u32 s{sT}, s{sT}, {Lh}-{opt['kname']}")
        a(f"s_subb_u32 s{sT+1}, s{sT+1}, 0")
        a(f"s_lshr_b32 s{sT+2}, s{sH}, 3")
        a(f"s_lshl_b32 s{sT+2}, s{sT+2}, 13")
        a(f"v_lshl_add_u32 v4, v{vLN}, 7, s{sT+2}")
        a(f"v_add_u32 v5, 0x10000, v4")
        a(f"v_min_u32 v4, {Lend}-{opt['kname']}, v4")
        a(f"v_min_u32 v5, {Lend}-{opt['kname']}, v5")
        a(f"global_load_dword v140, v4, s[{sT}:{sT+1}]")
        a(f"global_load_dword v140, v5, s[{sT}:{sT+1}]")
        a.label(Lc)
    KL, VL, BN = 0, 49152, 98304
    a(f"s_mul_i32 s{sT}, s{sH}, 36864")
    a(f"s_sub_u32 s{sT+1}, s{sT}, 4608")
    a(f"v_add_u32 v4, s{sT+1}, v{vT16}")
    a(f"s_sub_u32 s{sT+1}, s{sT}, 1152")
    a(f"v_add_u32 v5, s{sT+1}, v{vT16}")
    a(f"s_lshl_b32 s{sT+2}, s{sW}, 10")
    for i in range(6):
        a(f"s_add_u32 m0, s{sT+2}, {KL + i * 8192}")
        a("s_nop 0")
        a(f"buffer_load_dwordx4 v4, {s(sK,4)}, 0 offen lds")
        a("v_add_u32 v4, 8192, v4")
        if i < 5:
            a(f"s_add_u32 m0, s{sT+2}, {VL + i * 8192}")
            a("s_nop 0")
            a(f"buffer_load_dwordx4 v5, {s(sV,4)}, 0 offen lds")
            a("v_add_u32 v5, 8192, v5")
    SL_ = 90112
    a(f"s_add_u32 m0, s{sT+2}, {SL_}")
    a("s_nop 0")
    a(f"buffer_load_dwordx4 v{vT16}, {s(sSK,4)}, 0 offen lds")
    a("v_mov_b32 v4, 0")
    a(f"buffer_load_dwordx2 v[6:7], v4, {s(sDBG,4)}, 0 offen sc1")
    KR, VR, KU, WU, UU, OUT, SKR = 12, 24, 34, 58, 66, 84, 8
    vKA, vBW, vBR, vSA, vID = 116, 117, 118, 119, 120
    a(f"s_lshl_b32 s{sT}, s{sW}, 12")
    a(f"s_add_u32 s{sT+1}, s{sT}, {BN}")
    a(f"v_lshl_add_u32 v{vBW}, v{vL16}, 2, s{sT+1}")
    a(f"v_add_u32 v{vBR}, s{sT+1}, v{vL16}")
    a(f"s_lshl_b32 s{sT+1}, s{sH}, 2")
    a(f"s_sub_u32 s{sT+1}, 252, s{sT+1}")
    a(f"s_mul_i32 s{sT+1}, s{sT+1}, 18432")
    a(f"s_add_u32 s{sOFF}, s{sT}, s{sT+1}")
    a(f"s_add_u32 s{sOFF}, s{sOFF}, {WS_U}")
    a(f"v_mov_b32 v{vID}, v0")
    a(f"s_mov_b32 s{sI}, s{sW}")
    a("s_movk_i32 s63, 3641")
    a("s_waitcnt vmcnt(0)")
    a("s_barrier")
    ST.stamp("in landed")
    Lp = a.newlabel("Lprep"); a.label(Lp)
    a(f"v_mul_u32_u24 v2, s63, v{vID}")
    a("v_lshrrev_b32 v2, 20, v2")
    a("v_mul_u32_u24 v3, 288, v2")
    a(f"v_sub_u32 v3, v{vID}, v3")
    a("v_sub_u32 v2, 3, v2")
    a(f"v_mul_u32_u24 v{vKA}, 9216, v2")
    a(f"v_lshl_add_u32 v{vKA}, v3, 2, v{vKA}")
    a(f"v_lshlrev_b32 v{vSA}, 4, v3")
    a(f"v_add_u32 v{vSA}, {SL_}, v{vSA}")
    a(f"ds_read_b128 {v(SKR,4)}, v{vSA}")
    for r in range(12): a(f"ds_read_b32 v{KR+r}, v{vKA} offset:{KL + r*1152}")
    a("s_waitcnt lgkmcnt(6)")
    for r in range(9): a(f"ds_read_b32 v{VR+r}, v{vKA} offset:{VL + r*1152}")
    for j in range(4):
        for h in range(2):
            src = SKR + 2 * h + (j >> 1)
            a(f"v_lshlrev_b32 v{WU+2*j+h}, 16, v{src}" if j % 2 == 0 else f"v_and_b32 v{WU+2*j+h}, 0xffff0000, v{src}")
    a("s_waitcnt lgkmcnt(9)")
    for r in range(12):
        a(f"v_lshlrev_b32 v{KU+2*r}, 16, v{KR+r}")
        a(f"v_and_b32 v{KU+2*r+1}, 0xffff0000, v{KR+r}")
    for r in range(9): a(f"v_pk_mul_f32 {v(UU+2*r,2)}, {v(KU+2*r,2)}, {v(WU+6,2)}")
    for j in range(1, 4):
        for r in range(9): a(f"v_pk_fma_f32 {v(UU+2*r,2)}, {v(KU+2*(r+j),2)}, {v(WU+2*(3-j),2)}, {v(UU+2*r,2)}")
    a("s_waitcnt lgkmcnt(0)")
    for r in range(9):
        a(f"v_lshlrev_b32 v{KU+2*r}, 16, v{VR+r}")
        a(f"v_and_b32 v{KU+2*r+1}, 0xffff0000, v{VR+r}")
    for r in range(9): a(f"v_pk_mul_f32 {v(UU+2*r,2)}, {v(UU+2*r,2)}, {v(KU+2*r,2)}")
    for h in range(2):
        for cp in range(2):
            o = OUT + (h * 2 + cp) * 4
            for i in range(4):
                top = 7 + cp - 2 * i
                a(f"v_cvt_pk_bf16_f32 v{o+i}, v{UU+2*top+h}, v{UU+2*(top-1)+h}")
            a(f"ds_write_b128 v{vBW}, {v(o,4)} offset:{(h*2+cp)*16}")
    for k in range(4): a(f"ds_read_b128 {v(100+4*k,4)}, v{vBR} offset:{k*1024}")
    a(f"v_add_u32 v{vID}, 512, v{vID}")
    for k in range(4):
        a(f"s_waitcnt lgkmcnt({3-k})")
        a(f"buffer_store_dwordx4 {v(100+4*k,4)}, v{vL16}, {s(sWS,4)}, s{sOFF} offen offset:{k*1024} sc1")
    a(f"s_add_u32 s{sOFF}, s{sOFF}, 32768")
    a(f"s_add_u32 s{sI}, s{sI}, 8")
    a(f"s_cmp_lt_u32 s{sI}, 18")
    a(f"s_cbranch_scc1 {Lp}")
    ST.stamp("prep done")
    tcond = [f"v_readfirstlane_b32 s{sTAG+1}, v7", f"v_readfirstlane_b32 s{sTAG}, v6", f"s_cmp_lg_u32 s{sTAG+1}, 0"]
    Ltg = a.newlabel("Ltg")
    for l in tcond: a(l)
    a(f"s_cbranch_scc1 {Ltg}")
    poll(a, [f"buffer_load_dwordx2 v[6:7], v4, {s(sDBG,4)}, 0 offen sc1"], tcond, "t")
    a.label(Ltg)
    a("s_waitcnt vmcnt(0)")
    a(f"s_load_dwordx2 s[{sK}:{sK+1}], s[0:1], 72")
    a("s_waitcnt lgkmcnt(0)")
    a("s_barrier")
    srd2(a, sK, WBYTES)
    L1 = a.newlabel("Lf")
    a(f"s_cmp_lg_u32 s{sW}, 0")
    a(f"s_cbranch_scc1 {L1}")
    a(f"s_lshl_b32 s{sT}, s{sH}, 3")
    a(f"s_add_u32 s{sT}, s{sT}, {WS_UF}")
    one_lane_flag(sT)
    a.label(L1)
    ST.stamp("U published")
    CA = 0
    QUADS = list(range(32, 160, 4))
    UL = 160
    vA, vB, vZS, vD0, AD, vS0, vUW, vUS, vDV = 220, 221, 222, 223, 224, 228, 234, 240, 242
    vN, vG, t1_, t2_, t3_, t4_ = 243, 244, 2, 3, 4, 5
    XR = 200; vXO, vXO4, vSB, SS = 236, 237, 235, 232
    a(f"s_mul_i32 s{sKC}, s{sW}, {KCH}")
    a(f"s_lshl_b32 s{sQ}, s{sH}, 3")
    a(f"s_add_u32 s{sQ}, s{sQ}, s{sW}")
    a(f"s_lshl_b32 s{sT}, s{sQ}, 12")
    for c in range(2):
        a(f"s_add_u32 m0, s{sKC}, {KB + c * KC1}")
        a(f"s_add_u32 s{sOFF}, s{sT}, {4 * c}")
        for pc in range(4): a(f"buffer_load_dwordx4 v{vL16}, {s(sKF,4)}, s{sOFF} offen offset:{pc*1024} lds")
    a(f"s_mul_i32 s{sT}, s{sPH}, {KC1}")
    a(f"s_lshl_b32 s{sT+1}, s{sMG}, 10")
    a(f"s_add_u32 s{sT}, s{sT}, s{sT+1}")
    a(f"s_add_u32 m0, s{sT}, {KB + 8 * KCH}")
    a(f"s_lshl_b32 s{sT}, s{sH}, 12")
    a(f"s_add_u32 s{sT}, s{sT}, s{sT+1}")
    a(f"s_lshl_b32 s{sT+1}, s{sPH}, 2")
    a(f"s_add_u32 s{sT}, s{sT}, s{sT+1}")
    a(f"s_add_u32 s{sT}, s{sT}, {512 * 4096}")
    a(f"buffer_load_dwordx4 v{vL16}, {s(sKF,4)}, s{sT} offen lds")
    a(f"s_lshl_b32 s{sT}, s{sQ}, 1")
    a(f"v_mov_b32 v6, s{sT}")
    a(f"buffer_load_ushort v{vDV}, v6, {s(sDD,4)}, 0 offen")
    a(f"s_lshl_b32 s{sT}, s{sH}, 1")
    a(f"v_mov_b32 v7, s{sT}")
    a(f"buffer_load_ushort v245, v7, {s(sDD,4)}, 0 offen offset:1024")
    a(f"v_and_b32 v{vN}, 15, v{vLN}")
    a(f"v_lshrrev_b32 v{vG}, 4, v{vLN}")
    a(f"v_add_u32 v{t1_}, 1, v{vN}")
    a(f"v_and_b32 v{t2_}, 1, v{t1_}")
    a(f"v_lshrrev_b32 v{t1_}, 1, v{t1_}")
    a(f"v_lshlrev_b32 v{t3_}, 1, v{vG}")
    a(f"v_sub_u32 v{t1_}, v{t1_}, v{t3_}")
    a(f"v_lshlrev_b32 v{t1_}, 3, v{t1_}")
    a(f"v_mul_u32_u24 v{t3_}, {KC1}, v{t2_}")
    a(f"v_add_u32 v{t1_}, v{t1_}, v{t3_}")
    a(f"s_add_u32 s{sT+1}, s{sKC}, {KB + 48}")
    a(f"v_add_u32 v{vA}, s{sT+1}, v{t1_}")
    a(f"v_and_b32 v{t4_}, 1, v{vN}")
    a(f"v_mul_u32_u24 v{t1_}, {UCP}, v{t4_}")
    a(f"v_lshrrev_b32 v{t2_}, 1, v{vN}")
    a(f"v_lshl_add_u32 v{t3_}, v{t2_}, 2, v{vG}")
    a(f"v_lshlrev_b32 v{vZS}, 4, v{t3_}")
    a(f"v_lshl_add_u32 v{vZS}, v{t4_}, 3, v{vZS}")
    a(f"v_sub_u32 v{t3_}, 31, v{t3_}")
    a(f"v_lshl_add_u32 v{t1_}, v{t3_}, 4, v{t1_}")
    a(f"s_mul_i32 s{sT+1}, s{sW}, {UCH}")
    a(f"s_add_u32 s{sT+1}, s{sT+1}, {UB}")
    a(f"v_add_u32 v{vB}, s{sT+1}, v{t1_}")
    a(f"v_lshlrev_b32 v{t1_}, 2, v{vG}")
    a(f"v_sub_u32 v{t1_}, v{vN}, v{t1_}")
    a(f"v_subrev_u32 v{vD0}, 3, v{t1_}")
    a(f"v_lshrrev_b32 v{t1_}, 8, v{vT16}")
    a(f"v_mul_u32_u24 v{vUS}, 18432, v{t1_}")
    a(f"v_and_b32 v{t2_}, 0xf0, v{vT16}")
    a(f"v_add_u32 v{vUS}, v{vUS}, v{t2_}")
    a(f"v_bfe_u32 v{t2_}, v{vT16}, 5, 3")
    a(f"v_mul_u32_u24 v{vUW}, {UCH}, v{t2_}")
    a(f"v_bfe_u32 v{t2_}, v{vT16}, 4, 1")
    a(f"v_mul_u32_u24 v{t2_}, {UCP}, v{t2_}")
    a(f"v_add_u32 v{vUW}, v{vUW}, v{t2_}")
    a(f"v_lshl_add_u32 v{vUW}, v{t1_}, 4, v{vUW}")
    a(f"v_add_u32 v{vUW}, {UB}, v{vUW}")
    a(f"v_lshrrev_b32 v{t1_}, 5, v{vT16}")
    a(f"v_mul_u32_u24 v246, 18432, v{t1_}")
    a(f"v_and_b32 v{t3_}, 16, v{vT16}")
    a(f"v_add_u32 v246, v246, v{t3_}")
    a(f"v_lshl_add_u32 v247, v{t1_}, 4, v{t2_}")
    a(f"v_add_u32 v247, {UB + 8 * UCH}, v247")
    for k in range(4): a(f"v_mov_b32 v{8+k}, 0")
    a(f"v_cmp_gt_u32 vcc, {448*16}, v{vT16}")
    a(f"s_and_saveexec_b64 s[{sEX}:{sEX+1}], vcc")
    a(f"ds_write_b128 v{vUW}, v[8:11] offset:4096")
    a(f"s_mov_b64 exec, s[{sEX}:{sEX+1}]")
    a(f"v_cmp_gt_u32 vcc, {56*16}, v{vT16}")
    a(f"s_and_saveexec_b64 s[{sEX}:{sEX+1}], vcc")
    a(f"ds_write_b128 v247, v[8:11] offset:4096")
    a(f"s_mov_b64 exec, s[{sEX}:{sEX+1}]")
    a(f"v_and_b32 v6, 31, v{vLN}")
    a(f"v_lshlrev_b32 v{vSB}, 3, v6")
    a(f"v_add_u32 v{vSB}, {STB}, v{vSB}")
    a(f"ds_write_b64 v{vSB}, v[8:9]")
    a(f"v_mul_u32_u24 v{vXO}, 1152, v6")
    a(f"v_lshrrev_b32 v7, 5, v{vLN}")
    a(f"v_lshl_add_u32 v{vXO}, v7, 7, v{vXO}")
    a(f"s_mul_i32 s{sT}, s{sH}, 36864")
    a(f"s_lshl_b32 s{sT+1}, s{sW}, 4")
    a(f"s_add_u32 s{sT}, s{sT}, s{sT+1}")
    a(f"v_add_u32 v{vXO}, s{sT}, v{vXO}")
    a(f"v_mov_b32 v7, {OOB}")
    a(f"v_cmp_gt_u32 vcc, 32, v{vLN}")
    a(f"s_lshr_b32 s{sT}, s{sH}, 3")
    a(f"s_and_b32 s{sT+1}, s{sH}, 3")
    a(f"v_cndmask_b32 v{vXO4}, v7, v{vXO}, vcc")
    a(f"s_mul_i32 s{sT+1}, s{sT+1}, {1152*1152}")
    a(f"s_mul_i32 s{sT}, s{sT}, {144*1152}")
    a(f"s_add_u32 s39, s{sT}, s{sT+1}")
    a(f"v_lshlrev_b32 v248, 3, v{vT16}")
    a(f"v_cmp_gt_u32 vcc, {272*128}, v248")
    a(f"s_add_u32 s38, s39, {512*128}")
    a(f"s_add_u32 s37, s39, {1024*128}")
    a("v_cndmask_b32 v249, v7, v248, vcc")
    L2 = a.newlabel("Lf")
    a(f"s_cmp_lg_u32 s{sW}, 0")
    a(f"s_cbranch_scc1 {L2}")
    a(f"v_lshrrev_b32 v4, 1, v{vL16}")
    a(f"v_add_u32 v4, {WS_UF}, v4")
    poll(a, [f"buffer_load_dwordx2 v[2:3], v4, {s(sWS,4)}, 0 offen sc1"], flag_cond([2], 0), "u", 2)
    a.label(L2)
    a("s_barrier")
    ST.stamp("U seen")
    a(f"s_lshl_b32 s{sT}, s{sH}, 8")
    a(f"s_add_u32 s{sT}, s{sT}, {WS_U}")
    for it in range(8):
        a(f"buffer_load_dwordx4 {v(UL+4*it,4)}, v{vUS}, {s(sWS,4)}, s{sT} offen sc1")
        if it < 7: a(f"s_add_u32 s{sT}, s{sT}, {32*18432}")
    a(f"s_lshl_b32 s{sT}, s{sH}, 5")
    a(f"s_add_u32 s{sT}, s{sT}, {WS_U + 128*128}")
    a(f"buffer_load_dwordx4 {v(UL+32,4)}, v246, {s(sWS,4)}, s{sT} offen sc1")
    def a0_setup(dv, sbase):
        for i in range(4):
            a(f"v_add_u32 v250, {i}, v{vD0}")
            a(f"v_cmp_eq_u32 vcc, 0, v250")
            a(f"v_max_i32 v251, 0, v250")
            a(f"v_lshl_add_u32 v{vS0+i}, v251, 2, s{sbase}")
            a(f"v_cndmask_b32 v{AD+i}, 0, v{dv}, vcc")
    a("s_waitcnt vmcnt(9)")
    a0_setup(vDV, sKC)
    for it in range(8):
        a(f"s_waitcnt vmcnt({8-it})")
        a(f"ds_write_b128 v{vUW}, {v(UL+4*it,4)} offset:{it*512}")
    a(f"s_lshl_b32 s{sZO}, s{sQ}, 12")
    a(f"s_add_u32 s{sZO}, s{sZO}, {WS_Z}")
    a("s_waitcnt lgkmcnt(0)")
    a("s_barrier")
    ST.stamp("conv start")
    pairs = []
    for aa in range(8):
        for n in range(7, aa - 1, -1): pairs.append((aa, n - aa))
    def conv_pass(nb, vq):
        X = Emit(a)
        ops = [(b, aa, mu) for b in range(nb) for (aa, mu) in pairs]
        need = [("A", 0, 0)] + [("B", 0, n) for n in range(7, -1, -1)]
        last = {}
        for idx, (b, aa, mu) in enumerate(ops):
            for key in (("A", b, aa), ("B", b, mu)):
                if key not in need: need.append(key)
                last[key] = idx
        free = list(QUADS); where = {}
        def issue():
            key = need.pop(0); q = free.pop(0); where[key] = q
            kind, b, i = key
            if key == ("A", 0, 0):
                for k in range(4): X.one(dict(i=f"ds_read_b32 v{q+k}, v{vS0+k}", lds=key))
            elif kind == "A":
                for hh in range(2): X.one(dict(i=f"ds_read_b64 {v(q+2*hh,2)}, v{vA} offset:{b*64 + i*512 - 64 + 8*hh}", lds=key))
            else: X.one(dict(i=f"ds_read_b128 {v(q,4)}, v{vB} offset:{b*64 + (7-i)*512}", lds=key))
        for _ in range(9): issue()
        q0 = where[("A", 0, 0)]
        for k in range(4):
            a(f"v_add_u32 v250, {k}, v{vD0}")
            a(f"v_cmp_le_i32 vcc, 0, v250")
            a("s_nop 1")
            X.one(dict(i=f"v_cndmask_b32 v{q0+k}, 0, v{q0+k}, vcc", needl=[("A", 0, 0)]))
        for n in range(7, -1, -1):
            X.one(dict(i=f"{M16} {v(CA+4*n,4)}, {v(AD,4)}, {v(where[('B',0,n)],4)}, 0", needl=[("B", 0, n)]))
            if need and len(X.lg.q) < 12: issue()
        for idx, (b, aa, mu) in enumerate(ops):
            ka, kb = ("A", b, aa), ("B", b, mu)
            while ka not in where or kb not in where: issue()
            d = CA + 4 * (aa + mu)
            X.one(dict(i=f"{M16} {v(d,4)}, {v(where[ka],4)}, {v(where[kb],4)}, {v(d,4)}", needl=[ka, kb]))
            for key in (ka, kb):
                if last[key] == idx: free.append(where[key])
            if need and free and len(X.lg.q) < 12 and need[0][1] <= b + 1 and idx % 2 == 0: issue()
            if idx % 24 == 12 and vq: X.one(vq.pop(0))
        assert not need and not vq
        a("s_nop 7")
    vq = [dict(i=f"s_waitcnt vmcnt(0)"), dict(i=f"ds_write_b128 v247, {v(UL+32,4)}", lds="x")]
    vq += [f"buffer_load_dwordx4 {v(XR+4*q,4)}, v{vXO4 if q == 4 else vXO}, {s(sX,4)}, 0 offen offset:{q*256}" for q in range(5)]
    if opt.get("touch", 1):
        vq = vq[:2] + [f"buffer_load_dword v252, v248, {s(sK,4)}, s39 offen", f"buffer_load_dword v252, v248, {s(sK,4)}, s38 offen", f"buffer_load_dword v252, v249, {s(sK,4)}, s37 offen"] + vq[2:]
    conv_pass(8, vq)
    for n in range(8):
        a(f"v_cvt_pk_bf16_f32 v{UL+2*n}, v{CA+4*n}, v{CA+4*n+1}")
        a(f"v_cvt_pk_bf16_f32 v{UL+2*n+1}, v{CA+4*n+2}, v{CA+4*n+3}")
        a(f"buffer_store_dwordx2 {v(UL+2*n,2)}, v{vZS}, {s(sWS,4)}, s{sZO} offen offset:{n*512} sc1")
    ST.stamp("conv main")
    a(f"s_sub_u32 s{sT}, 8, s{sW}")
    a(f"s_mul_i32 s{sT+1}, s{sT}, {KCH}")
    a(f"s_lshl_b32 s{sT+2}, s{sW}, 6")
    a(f"s_add_u32 s{sT+1}, s{sT+1}, s{sT+2}")
    a(f"v_add_u32 v{vA}, s{sT+1}, v{vA}")
    a(f"s_mul_i32 s{sT+1}, s{sT}, {UCH}")
    a(f"s_add_u32 s{sT+1}, s{sT+1}, s{sT+2}")
    a(f"v_add_u32 v{vB}, s{sT+1}, v{vB}")
    a(f"s_lshl_b32 s{sT+2}, s{sW}, 4")
    a(f"v_add_u32 v{vD0}, s{sT+2}, v{vD0}")
    a(f"s_mov_b32 s{sKC}, {KB + 8 * KCH}")
    a0_setup(245, sKC)
    a("s_waitcnt lgkmcnt(0)")
    a("s_barrier")
    conv_pass(1, [])
    a(f"s_lshl_b32 s{sT}, s{sW}, 13")
    a(f"v_add_u32 v250, s{sT}, v{vL16}")
    for n in range(8): a(f"ds_write_b128 v250, {v(CA+4*n,4)} offset:{n*1024}")
    a("s_mov_b32 s63, 0x3f803f80")
    a("v_mov_b32 v32, 0"); a("v_mov_b32 v33, 0")
    a("s_waitcnt vmcnt(8)")
    for k in range(20):
        a(f"v_dot2c_f32_bf16 v32, s63, v{XR+k}")
        a(f"v_dot2c_f32_bf16 v33, v{XR+k}, v{XR+k}")
    a("s_nop 2")
    a(f"ds_add_f32 v{vSB}, v32")
    a(f"ds_add_f32 v{vSB}, v33 offset:4")
    a("s_waitcnt lgkmcnt(0)")
    a("s_barrier")
    for k in range(8): a(f"ds_read_b128 {v(36+4*k,4)}, v{vT16} offset:{k*8192}")
    a(f"ds_read_b64 v[30:31], v{vSB}")
    a(f"s_lshl_b32 s{sZO}, s{sH}, 12")
    a(f"s_lshl_b32 s{sT}, s{sW}, 9")
    a(f"s_add_u32 s{sZO}, s{sZO}, s{sT}")
    a(f"s_add_u32 s{sZO}, s{sZO}, {WS_Z + 512*4096}")
    a("s_waitcnt lgkmcnt(0)")
    for k in range(1, 8):
        for r in range(4): a(f"v_add_f32 v{36+r}, v{36+r}, v{36+4*k+r}")
    a("v_cvt_pk_bf16_f32 v34, v36, v37")
    a("v_cvt_pk_bf16_f32 v35, v38, v39")
    a(f"buffer_store_dwordx2 v[34:35], v{vZS}, {s(sWS,4)}, s{sZO} offen sc1")
    for l in stats_math(30, 31, 32, 33, SS, SS + 1): a(l)
    a("s_waitcnt vmcnt(0)")
    a("s_barrier")
    ST.stamp("conv done")
    L4 = a.newlabel("Lf")
    a(f"s_cmp_lg_u32 s{sW}, 0")
    a(f"s_cbranch_scc1 {L4}")
    a(f"s_lshl_b32 s{sT}, s{sH}, 3")
    a(f"s_add_u32 s{sT}, s{sT}, {WS_UF}")
    one_lane_flag(sT, 1)
    a(f"v_lshrrev_b32 v4, 1, v{vL16}")
    a(f"v_add_u32 v4, {WS_UF}, v4")
    poll(a, [f"buffer_load_dwordx2 v[12:13], v4, {s(sWS,4)}, 0 offen sc1"], flag_cond([12], 1), "z", 4)
    a.label(L4)
    a("s_barrier")
    ST.stamp("z seen")
    ZP = 80
    a("v_lshrrev_b32 v2, 2, v0") if False else None
    a(f"v_lshrrev_b32 v2, 6, v{vT16}")
    a(f"v_and_b32 v3, 48, v{vT16}")
    a("v_lshl_add_u32 v4, v2, 12, v3")
    a(f"v_mul_u32_u24 v5, {ZP}, v2")
    a("v_add_u32 v5, v5, v3")
    a(f"s_lshl_b32 s{sT}, s{sH}, 6")
    a(f"s_add_u32 s{sT}, s{sT}, {WS_Z}")
    a(f"v_mov_b32 v6, {OOB}")
    a(f"v_cmp_gt_u32 vcc, 4096, v{vT16}")
    a("s_nop 1")
    a("v_cndmask_b32 v6, v6, v4, vcc")
    for i in range(5):
        a(f"buffer_load_dwordx4 {v(8+4*i,4)}, v{6 if i == 4 else 4}, {s(sWS,4)}, s{sT} offen sc1")
        if i < 4: a(f"s_add_u32 s{sT}, s{sT}, {128*4096}")
    vRL, vPF = 220, 221
    a(f"v_lshrrev_b32 v2, 5, v{vLN}")
    a(f"v_mul_u32_u24 v{vRL}, {SLICE - 512}, v2")
    a(f"v_add_u32 v{vRL}, v{vRL}, v{vL16}")
    a(f"s_mul_i32 s{sT}, s{sH}, 36864")
    a(f"s_lshl_b32 s{sT+1}, s{sW}, 9")
    a(f"s_add_u32 s{sT}, s{sT}, s{sT+1}")
    a(f"v_add_u32 v{vRL}, s{sT}, v{vRL}")
    a(f"v_min_u32 v3, {NSL-1}, v{vLN}")
    a(f"s_lshr_b32 s{sT}, s{sH}, 2")
    a(f"s_lshl_b32 s{sT}, s{sT}, 7")
    a(f"s_add_u32 s{sT}, s{sT}, {WS_PF}")
    a(f"v_lshl_add_u32 v{vPF}, v3, 3, s{sT}")
    a(f"v_mul_u32_u24 v7, {64*ZP}, v2")
    a(f"v_and_b32 v3, 24, v{vLN}")
    a("v_lshl_add_u32 v7, v3, 1, v7")
    a(f"v_and_b32 v3, 1, v{vLN}")
    a("v_lshl_add_u32 v7, v3, 3, v7")
    a(f"v_and_b32 v3, 6, v{vLN}")
    a("v_add_u32 v7, v7, v3")
    a(f"s_mul_i32 s{sT}, s{sW}, {8*ZP}")
    a(f"v_add_u32 v7, s{sT}, v7")
    BASE = 160
    ZR = 112
    for k in range(40): a(f"v_mov_b32 v{ZR+k}, 0")
    for i in range(5):
        a(f"s_waitcnt vmcnt({4-i})")
        a(f"ds_write_b128 v5, {v(8+4*i,4)} offset:{i*128*ZP}")
    a("s_waitcnt lgkmcnt(0)")
    a("s_barrier")
    for q in range(5):
        for j in range(8): a(f"ds_read_u16_d16_hi v{ZR+8*q+j}, v7 offset:{q*128*ZP + j*ZP}")
        for k in range(4):
            a(f"v_lshlrev_b32 v{BASE+8*q+2*k}, 16, v{XR+4*q+k}")
            a(f"v_and_b32 v{BASE+8*q+2*k+1}, 0xffff0000, v{XR+4*q+k}")
        a("s_waitcnt lgkmcnt(0)")
        for j in range(8):
            a(f"v_sub_f32 v2, v{BASE+8*q+j}, v{SS}")
            a(f"v_mul_f32 v2, v2, v{SS+1}")
            a(f"v_fmac_f32 v{BASE+8*q+j}, v2, v{ZR+8*q+j}")
    ST.stamp("base")
    a("s_mov_b32 s63, 0x00003f80")
    a("s_mov_b32 s64, 0x3f800000")
    a(f"s_mov_b32 s65, {f32(LN2)}")
    a(f"s_mov_b32 s{sI}, 0")
    RB = lambda st: (st % 4) * 24
    AC = lambda st: 96 + (st & 1) * 8
    def ensure(level):
        Lk = a.newlabel("Lk")
        a(f"s_cmp_ge_u32 s{sI}, {level}")
        a(f"s_cbranch_scc1 {Lk}")
        cond = [f"v_subrev_u32 v222, s{sTAG}, v222", f"v_xor_b32 v223, s{sTAG+1}, v223", "v_lshrrev_b32 v224, 4, v222", "v_or_b32 v223, v223, v224",
                "v_cmp_eq_u32 vcc, 0, v223", "s_nop 1", "v_cndmask_b32 v222, 0, v222, vcc", "s_nop 1",
                "v_min_u32_dpp v222, v222, v222 row_ror:8 row_mask:0xf bank_mask:0xf", "s_nop 1",
                "v_min_u32_dpp v222, v222, v222 row_ror:4 row_mask:0xf bank_mask:0xf", "s_nop 1",
                "v_min_u32_dpp v222, v222, v222 row_ror:2 row_mask:0xf bank_mask:0xf", "s_nop 1",
                "v_min_u32_dpp v222, v222, v222 row_ror:1 row_mask:0xf bank_mask:0xf", "s_nop 0",
                f"v_readfirstlane_b32 s{sI}, v222", "s_nop 0", f"s_cmp_ge_u32 s{sI}, {level}"]
        poll(a, [f"buffer_load_dwordx2 v[222:223], v{vPF}, {s(sWS,4)}, 0 offen sc1"], cond, "p", 4)
        a.label(Lk)
    def loads(st):
        ensure(st + 1)
        for i in range(6):
            a(f"s_mov_b32 s{sOFF}, {2 * i * SLICE + st * 4096}")
            a(f"buffer_load_dwordx4 {v(RB(st)+4*i,4)}, v{vRL}, {s(sWS,4)}, s{sOFF} offen sc1")
    DEPTH = opt.get("rdepth", 3)
    issued = 0; nst = []
    for st in range(9):
        while issued < min(9, st + DEPTH):
            loads(issued); nst += [("L", issued)] * 6; issued += 1
        for k in range(8): a(f"v_mov_b32 v{AC(st)+k}, 0")
        for i in range(6):
            idx = [j for j, e in enumerate(nst) if e == ("L", st)][i]
            a(f"s_waitcnt vmcnt({len(nst) - 1 - idx})")
            for k in range(4):
                a(f"v_dot2c_f32_bf16 v{AC(st)+2*k}, s63, v{RB(st)+4*i+k}")
                a(f"v_dot2c_f32_bf16 v{AC(st)+2*k+1}, s64, v{RB(st)+4*i+k}")
        if st % 2 == 1 or st == 8:
            q = st >> 1
            a("s_nop 2")
            for k in range(8): a(f"v_permlane32_swap_b32 v{96+k}, v{104+k}")
            for k in range(8): a(f"v_add_f32 v{96+k}, v{96+k}, v{104+k}")
            for k in range(8): a(f"v_fmac_f32 v{BASE+8*q+k}, s65, v{96+k}")
            for k in range(4): a(f"v_cvt_pk_bf16_f32 v{XR+4*q+k}, v{BASE+8*q+2*k}, v{BASE+8*q+2*k+1}")
            a(f"buffer_store_dwordx4 {v(XR+4*q,4)}, v{vXO4 if q == 4 else vXO}, {s(sOUT,4)}, 0 offen offset:{q*256}")
            nst.append(("S", q))
            if st in (1, 5): ST.stamp(f"red {st}")
    if opt.get("stamps"): a("s_waitcnt vmcnt(0)")
    ST.stamp("end"); ST.cyc(1)
    ST.flush(sWS, sW)
```

```python
import sys
from gen import *
import k7
NAME = "parallel_sum__ssm_conv_h3__dense_activation_mish__prompt_kernel"
def build1(opt, out):
    opt = dict(opt); opt["kname"] = NAME
    head = [l for l in open(REF).read().split("\n") if l.startswith(";") and "@launch" not in l]
    txt = "\n".join(head) + f"\n; @launch grid=(256,1,1) block=(512,1,1) lds={k7.LDS_ALL}\n"
    txt += '.amdgcn_target "amdgcn-amd-amdhsa--gfx950"\n.text\n'
    a = Asm()
    a.lines.append(kernel_header(NAME).rstrip())
    k7.gen(a, opt)
    txt += a.text() + '.section .rodata,"a"\n' + kernel_desc(NAME, 256)
    open(out, "w").write(txt)
if __name__ == "__main__":
    build1({}, "v7.s")
    build1({"stamps": 1}, "v7s.s")
    build1({"stamps": 2}, "v7c.s")
```

```python
from common import *
from k_mlp import Emit, M16, mish_group
import k7h

NSL = 12
RING = 0
ACT = 73728
BIAS = 155648
LDS_ALL = 163840
SLOT = 49152
def POS(k): return {0: 7, 1: 8, 9: 9, 10: 7, 11: 8}.get(k, k - 2)

def XF(mt16, ks): return mt16 * 72 + ks * 4
def AFR(mu, kap):
    q, r = divmod(kap, 3); n = mu * 3 + r
    return 144 + n * 4 if q == 3 else XF(n // 6, 6 * q + n % 6)
ACC = 144; PEND = 160; FR = 176; BI = 208; TM = 216; AO = 244
ACC2 = 192; FR2 = 208
RA = [228, 229, 230, 231]
vW1, vW2, vJUNK, vACTW, vBIAS, vST, vRB, vL16 = 232, 233, 234, 235, 236, 237, 238, 239
T0 = 240
sX, sW1, sW2, sWS, sA, sDBG = 8, 12, 16, 20, 24, 52
sMT, sSL, sW, sMG, sPH, sFB2, sW2A = 28, 29, 30, 31, 32, 33, 34
sPFA = 35
sT = 56; sEX = 60
sOFF, sONES, sM0G, sOFF2 = 62, 63, 64, 65
sXR1, sCNT, sTAG = 3, 5, 6
OOB = "0x7ffffff0"

def spread(main, side):
    out = []; k = 0; n = len(main)
    for i, m in enumerate(main):
        out.append(m)
        want = (i + 1) * len(side) // n
        while k < want:
            out.extend(side[k]); k += 1
    for g in side[k:]: out.extend(g)
    return out
def flat(groups): return [x for g in groups for x in g]
def srd2(a, d, nbytes):
    a(f"s_and_b32 s{d+1}, s{d+1}, 0xffff")
    a(f"s_mov_b32 s{d+2}, {nbytes}")
    a(f"s_mov_b32 s{d+3}, 0x00020000")
def poll(a, load, cond_lines, tag, sleep=8):
    L, Ld = a.newlabel("Lpoll" + tag), a.newlabel("Lpd" + tag)
    a.label(L)
    for l in load: a(l)
    a("s_waitcnt vmcnt(0)")
    for l in cond_lines: a(l)
    a(f"s_cbranch_scc1 {Ld}")
    a(f"s_sleep {sleep}")
    a(f"s_sub_u32 s{sCNT}, s{sCNT}, 1")
    a(f"s_cbranch_scc0 {L}")
    a(f"s_mov_b32 s{sCNT}, 0")
    a.label(Ld)
def stats_math(s0, q0, mean, var, mb, rs):
    return [f"v_mul_f32 v{mean}, {f32(1.0/576)}, v{s0}",
            f"v_mul_f32 v{var}, {f32(1.0/576)}, v{q0}",
            f"v_fma_f32 v{var}, -v{mean}, v{mean}, v{var}",
            f"v_max_f32 v{var}, 0, v{var}",
            f"v_cvt_pk_bf16_f32 v{mb}, v{mean}, v{var}",
            f"v_and_b32 v{var}, 0xffff0000, v{mb}",
            f"v_lshlrev_b32 v{mb}, 16, v{mb}",
            f"v_add_f32 v{var}, {f32(1e-5)}, v{var}",
            f"v_cvt_pk_bf16_f32 v{var}, v{var}, v{var}",
            f"v_lshlrev_b32 v{var}, 16, v{var}",
            f"v_sqrt_f32 v{var}, v{var}",
            "s_nop 0",
            f"v_cvt_pk_bf16_f32 v{var}, v{var}, v{var}",
            f"v_lshlrev_b32 v{var}, 16, v{var}",
            f"v_rcp_f32 v{rs}, v{var}",
            "s_nop 0"]

def gen(a, opt=None):
    opt = opt or {}
    E = Emit(a)
    Lend, Lhelp = a.newlabel("Lend"), a.newlabel("Lhelp")
    a("s_cmp_ge_u32 s2, 256")
    a(f"s_cbranch_scc1 {Lend}")
    ST = Stamps(a, opt.get("stamps"), 0)
    ST.stamp("start"); ST.cyc(0)
    a(f"s_mov_b32 s{sCNT}, 0x80000")
    a("s_cmp_ge_u32 s2, 192")
    a(f"s_cbranch_scc1 {Lhelp}")
    for d, off in ((sX, 0), (sW1, 56), (sA, 64), (sW2, 72), (sWS, 96), (sDBG, 88)):
        a(f"s_load_dwordx2 s[{d}:{d+1}], s[0:1], {off}")
    lane, r8, u8 = T0 + 1, T0 + 2, T0 + 3
    a(f"v_lshrrev_b32 v{T0}, 6, v0")
    a(f"v_and_b32 v{lane}, 63, v0")
    a(f"v_readfirstlane_b32 s{sW}, v{T0}")
    a(f"s_lshr_b32 s{sT}, s2, 3")
    a(f"s_mul_i32 s{sT+1}, s{sT}, 11")
    a(f"s_lshr_b32 s{sT+1}, s{sT+1}, 5")
    a(f"s_mul_i32 s{sT+2}, s{sT+1}, 3")
    a(f"s_sub_u32 s{sT}, s{sT}, s{sT+2}")
    a(f"s_and_b32 s{sT+2}, s2, 3")
    a(f"s_mul_i32 s{sT+2}, s{sT+2}, 3")
    a(f"s_add_u32 s{sSL}, s{sT}, s{sT+2}")
    a(f"s_bfe_u32 s{sT}, s2, 0x10002")
    a(f"s_lshl_b32 s{sT}, s{sT}, 3")
    a(f"s_add_u32 s{sMT}, s{sT}, s{sT+1}")
    a(f"s_and_b32 s{sMG}, s{sW}, 3")
    a(f"s_lshr_b32 s{sPH}, s{sW}, 2")
    a(f"v_lshrrev_b32 v{r8}, 3, v{lane}")
    a(f"v_and_b32 v{u8}, 7, v{lane}")
    a(f"s_lshl_b32 s{sT+1}, s{sMG}, 5")
    a(f"s_lshl_b32 s{sT+2}, s{sPH}, 3")
    a(f"s_add_u32 s{sT+1}, s{sT+1}, s{sT+2}")
    a(f"s_lshl_b32 s{sT}, s{sMT}, 7")
    a(f"s_add_u32 s{sT}, s{sT}, s{sT+1}")
    vXO = T0 + 5
    a(f"v_add_u32 v{vXO}, s{sT}, v{r8}")
    a(f"v_mul_u32_u24 v{vXO}, 1152, v{vXO}")
    a(f"v_lshl_add_u32 v{vXO}, v{u8}, 4, v{vXO}")
    a(f"s_movk_i32 s{sXR1}, 18432")
    a("s_waitcnt lgkmcnt(0)")
    srd2(a, sX, XBYTES)
    RAW = [144, 180]
    def x_load(rho, j):
        so = "0" if rho == 0 else f"s{sXR1}"
        return dict(i=f"buffer_load_dwordx4 {v(RAW[rho]+4*j,4)}, v{vXO}, {s(sX,4)}, {so} offen offset:{128*j}", vm=("x", rho, j))
    for j in range(9): E.one(x_load(0, j))
    ST.stamp("x0 issued")
    srd2(a, sW1, WBYTES); srd2(a, sA, F * 2); srd2(a, sW2, WBYTES); srd2(a, sWS, WS_END); srd2(a, sDBG, 256)
    a(f"s_mul_i32 s{sFB2}, s{sSL}, 768")
    a(f"s_mul_i32 s{sW2A}, s{sSL}, {384*1152}")
    a(f"s_lshl_b32 s{sM0G}, s{sMG}, 10")
    a(f"s_mov_b32 s{sONES}, 0x3f803f80")
    a(f"v_lshlrev_b32 v{vL16}, 4, v{lane}")
    t1, t2 = T0 + 8, T0 + 9
    a(f"s_lshl_b32 s{sT}, s{sMG}, 3")
    a(f"v_add_u32 v{t2}, s{sT}, v{r8}")
    a(f"v_mul_u32_u24 v{vW1}, 9216, v{t2}")
    a(f"v_bfe_u32 v{t1}, v{r8}, 1, 1")
    a(f"s_and_b32 s{sT}, s{sW}, 1")
    a(f"s_lshl_b32 s{sT}, s{sT}, 1")
    a(f"v_or_b32 v{t1}, s{sT}, v{t1}")
    a(f"v_lshlrev_b32 v{t1}, 1, v{t1}")
    a(f"v_xor_b32 v{t1}, v{t1}, v{u8}")
    a(f"v_lshl_add_u32 v{vW1}, v{t1}, 4, v{vW1}")
    a(f"v_mul_u32_u24 v{vW2}, 1152, v{t2}")
    a(f"v_and_b32 v{t1}, 6, v{r8}")
    a(f"v_xor_b32 v{t1}, v{t1}, v{u8}")
    a(f"v_lshl_add_u32 v{vW2}, v{t1}, 4, v{vW2}")
    vBE, vBV = T0 + 6, T0 + 7
    a(f"v_lshlrev_b32 v{vBE}, 1, v0")
    g4, rp, c4, fsw = T0 + 10, T0 + 11, T0 + 12, T0 + 13
    a(f"v_lshrrev_b32 v{g4}, 4, v{lane}")
    a(f"v_bfe_u32 v{rp}, v{lane}, 2, 2")
    a(f"v_and_b32 v{c4}, 3, v{lane}")
    a(f"v_lshrrev_b32 v{t1}, 1, v{rp}")
    a(f"v_and_b32 v{t2}, 1, v{g4}")
    a(f"v_lshl_or_b32 v{fsw}, v{t2}, 1, v{t1}")
    a(f"s_lshl_b32 s{sT}, s{sPH}, 1")
    a(f"v_xor_b32 v{t1}, s{sT}, v{fsw}")
    a(f"v_lshlrev_b32 v{t1}, 5, v{t1}")
    a(f"v_lshl_add_u32 v{t1}, v{g4}, 10, v{t1}")
    a(f"v_lshl_add_u32 v{t1}, v{rp}, 7, v{t1}")
    a(f"v_lshl_add_u32 v{RA[0]}, v{c4}, 3, v{t1}")
    a(f"v_xor_b32 v{RA[1]}, 32, v{RA[0]}")
    a(f"v_add_u32 v{RA[3]}, 0x8000, v{RA[1]}")
    a(f"v_add_u32 v{RA[2]}, 0x8000, v{RA[0]}")
    a(f"s_lshr_b32 s{sT}, s{sW}, 1")
    a(f"v_xor_b32 v{t1}, s{sT}, v{fsw}")
    a(f"v_lshlrev_b32 v{t1}, 5, v{t1}")
    a(f"v_lshl_add_u32 v{t1}, v{g4}, 9, v{t1}")
    a(f"v_lshl_add_u32 v{t1}, v{rp}, 7, v{t1}")
    a(f"v_lshl_add_u32 v{vRB}, v{c4}, 3, v{t1}")
    a(f"s_lshl_b32 s{sT}, s{sPH}, 7")
    a(f"s_add_u32 s{sT}, s{sT}, {BIAS}")
    a(f"v_lshl_add_u32 v{vBIAS}, v{g4}, 4, s{sT}")
    a(f"s_lshl_b32 s{sT}, s{sMG}, 11")
    a(f"s_add_u32 s{sT}, s{sT}, {ACT}")
    a(f"v_add_u32 v{vACTW}, s{sT}, v{vL16}")
    a(f"s_mul_i32 s{sT}, s{sMG}, 18432")
    a(f"s_add_u32 s{sT}, s{sT}, {ACT}")
    vXW = T0 + 14
    a(f"s_lshl_b32 s{sT+1}, s{sPH}, 3")
    a(f"v_add_u32 v{t1}, s{sT+1}, v{r8}")
    a(f"v_xor_b32 v{t1}, v{t1}, v{u8}")
    a(f"v_lshlrev_b32 v{t1}, 4, v{t1}")
    a(f"v_lshl_add_u32 v{t1}, v{u8}, 8, v{t1}")
    a(f"v_add_u32 v{vXW}, s{sT}, v{t1}")
    vXR0, vXR1 = T0 + 15, T0 + 8
    a(f"v_and_b32 v{t2}, 15, v{lane}")
    a(f"v_xor_b32 v{t2}, v{t2}, v{g4}")
    a(f"v_lshlrev_b32 v{t2}, 4, v{t2}")
    a(f"v_lshl_add_u32 v{t2}, v{g4}, 8, v{t2}")
    a(f"v_add_u32 v{vXR0}, s{sT}, v{t2}")
    a(f"v_xor_b32 v{vXR1}, 64, v{vXR0}")
    a(f"s_mul_i32 s{sT+2}, s{sSL}, {SLICE}")
    a(f"s_lshl_b32 s{sT}, s{sMT}, 2")
    a(f"s_and_b32 s{sT+1}, s{sW}, 1")
    a(f"s_lshl_b32 s{sT+1}, s{sT+1}, 1")
    a(f"s_add_u32 s{sT}, s{sT}, s{sT+1}")
    a(f"s_mul_i32 s{sT}, s{sT}, 36864")
    a(f"s_add_u32 s{sT+2}, s{sT+2}, s{sT}")
    a(f"s_lshr_b32 s{sT}, s{sW}, 1")
    a(f"s_lshl_b32 s{sT}, s{sT}, 10")
    a(f"s_add_u32 s{sT+2}, s{sT+2}, s{sT}")
    a(f"v_add_u32 v{vST}, s{sT+2}, v{vL16}")
    a(f"s_lshl_b32 s{sT}, s{sMT}, 9")
    a(f"s_lshl_b32 s{sT+1}, s{sSL}, 3")
    a(f"s_add_u32 s{sT}, s{sT}, s{sT+1}")
    a(f"s_add_u32 s{sT}, s{sT}, {WS_PF2}")
    a(f"s_cmp_eq_u32 s{sW}, 4")
    a(f"s_cselect_b32 s{sPFA}, s{sT}, {OOB}")

    A_, C_ = TM + 8, TM + 10
    def ln_stats(rho):
        o = []
        R = RAW[rho]
        s0, s1, q0, q1 = TM, TM + 1, TM + 2, TM + 3
        o += [f"v_mov_b32 v{s0}, 0", f"v_mov_b32 v{s1}, 0", f"v_mov_b32 v{q0}, 0", f"v_mov_b32 v{q1}, 0"]
        for j in range(9):
            for k in range(4):
                r = R + 4 * j + k
                o.append(dict(i=f"v_dot2c_f32_bf16 v{(s0, s1)[k & 1]}, s{sONES}, v{r}", needv=[("x", rho, j)]))
                o.append(f"v_dot2c_f32_bf16 v{(q0, q1)[k & 1]}, v{r}, v{r}")
        o += ["s_nop 2", f"v_add_f32 v{s0}, v{s0}, v{s1}", f"v_add_f32 v{q0}, v{q0}, v{q1}", "s_nop 0"]
        for dpp in ("quad_perm:[1,0,3,2]", "quad_perm:[2,3,0,1]", "row_half_mirror"):
            o += [f"v_add_f32_dpp v{s1}, v{s0}, v{s0} {dpp} row_mask:0xf bank_mask:0xf",
                  f"v_add_f32_dpp v{q1}, v{q0}, v{q0} {dpp} row_mask:0xf bank_mask:0xf", "s_nop 0"]
            s0, s1, q0, q1 = s1, s0, q1, q0
        mean, var, mb, rs = TM + 4, TM + 5, TM + 6, TM + 7
        o += stats_math(s0, q0, mean, var, mb, rs)
        o += [f"v_mul_f32 v{A_}, {f32(LOG2E)}, v{rs}", f"v_mul_f32 v{C_}, v{mb}, v{A_}"]
        return o
    def ln_norm(rho):
        o = []
        R = RAW[rho]
        tp = [T0 + 10, T0 + 12]
        for j in range(9):
            for k in range(0, 4, 2):
                for kk in range(2):
                    r = R + 4 * j + k + kk; t = tp[kk]
                    o += [f"v_lshlrev_b32 v{t}, 16, v{r}", f"v_and_b32 v{t+1}, 0xffff0000, v{r}"]
                for kk in range(2):
                    t = tp[kk]
                    o.append(f"v_pk_fma_f32 {v(t,2)}, {v(t,2)}, {v(A_,2)}, {v(C_,2)} op_sel_hi:[1,0,0] neg_lo:[0,0,1] neg_hi:[0,0,1]")
                for kk in range(2):
                    r = R + 4 * j + k + kk; t = tp[kk]
                    o.append(f"v_cvt_pk_bf16_f32 v{r}, v{t}, v{t+1}")
            o.append(dict(i=f"ds_write_b128 v{vXW}, {v(R+4*j,4)} offset:{j*2048}", lds="xw"))
        return o
    def xn_read(rho, ks):
        return dict(i=f"ds_read_b128 {v(XF(rho,ks),4)}, v{(vXR0, vXR1)[ks & 1]} offset:{ks*1024}", lds=("xf", rho, ks))
    NT = 6; NS1 = 3 * NT; NU = 9 * NT; NG = 18 * NT
    def w1_unit(U, hi):
        T, gam = divmod(U, 9)
        return [f"s_add_u32 m0, s{sM0G}, {RING + gam * 8192 + hi * 4096}",
                f"s_add_u32 s{sOFF}, s{sFB2}, {(gam * 64 + hi * 32) * 9216 + T * 128}",
                dict(i=f"buffer_load_dwordx4 v{vW1}, {s(sW1,4)}, s{sOFF} offen lds", vm=("w1", (U - 1) // 3))]
    def units_of(sg): return range(max(0, 3 * sg + 1), min(NU, 3 * sg + 4))
    def frag(g, aa): return FR + ((g % 4) * 2 + aa) * 4
    def greads(g):
        if g >= NG: return []
        T, ks = divmod(g, 18)
        o = []
        for aa in range(2):
            f = frag(g, aa); hi = ks >= 8
            off = RING + ks * 4096 - (0x8000 if hi else 0)
            for nu in range(2):
                o.append(dict(i=f"ds_read_b64_tr_b16 {v(f+2*nu,2)}, v{RA[aa + 2*hi]} offset:{off + nu*512}", lds=("A", g, aa)))
        return o
    def bias_reads(T):
        return [dict(i=f"ds_read_b128 {v(BI+4*aa,4)}, v{vBIAS} offset:{T*256 + aa*64}", lds=("B", T)) for aa in range(2)]
    vACTH, vAR, vARH = 243, 240, 241
    def mish_tile(T, ph):
        o = []
        p = POS(2 * T + ph)
        for mt16 in range(2):
            for aa in range(2):
                o += mish_group(PEND + (aa * 2 + mt16) * 4, AO + mt16 * 4 + aa * 2, TM)
            o.append(dict(i=f"ds_write_b128 v{vACTH if p >= 4 else vACTW}, {v(AO+mt16*4,4)} offset:{mt16*1024 + (p - 4 if p >= 4 else p)*8192}", lds="aw"))
        return o
    def cost(x):
        t = x if isinstance(x, str) else x.get("i", "")
        return 2 if t.startswith(("v_exp", "v_rcp")) else 1 if t.startswith("v_") else 0
    def take(q, budget):
        out = []
        while q and budget > 0:
            budget -= cost(q[0]); out.append(q.pop(0))
        while q and cost(q[0]) == 0: out.append(q.pop(0))
        return out
    def w2_dma(st, ph):
        o = []
        for n in range(6):
            q = 24 * ph + 4 * n
            o.append([f"s_add_u32 m0, s{sM0G}, {(st % 3) * SLOT + q * 1024}",
                      f"s_add_u32 s{sOFF}, s{sW2A}, {q * 8 * 1152 + st * 128}",
                      dict(i=f"buffer_load_dwordx4 v{vW2}, {s(sW2,4)}, s{sOFF} offen lds", vm=("w2", st))])
        return o
    vRBs = [vRB, 228, 229]
    PD2 = 3
    def frag2(g): return FR2 + (g % 5) * 4
    def b_reads(st, i):
        f = frag2(12 * st + i)
        return [dict(i=f"ds_read_b64_tr_b16 {v(f+2*nu,2)}, v{vRBs[st % 3]} offset:{i*4096 + nu*2048}", lds=("W", st, i)) for nu in range(2)]
    def act_reads(kap):
        p = POS(kap)
        return [dict(i=f"ds_read_b128 {v(AFR(mu,kap),4)}, v{vARH if p >= 4 else vAR} offset:{mu*1024 + (p - 4 if p >= 4 else p)*8192}", lds=("act", kap)) for mu in range(4)]
    def epi_valu():
        o = []
        for pr in range(2):
            p = AO + pr * 4
            for mu in range(2):
                src = ACC2 + (pr * 2 + mu) * 4
                o.append(f"v_cvt_pk_bf16_f32 v{p+2*mu}, v{src}, v{src+1}")
                o.append(f"v_cvt_pk_bf16_f32 v{p+2*mu+1}, v{src+2}, v{src+3}")
        o.append("s_nop 0")
        for pr in range(2):
            p = AO + pr * 4
            o.append(f"v_permlane16_swap_b32 v{p}, v{p+2}")
            o.append(f"v_permlane16_swap_b32 v{p+1}, v{p+3}")
        return o
    def epi_store(st):
        o = []
        for pr in range(2):
            o.append(f"s_mov_b32 s{sOFF2}, {pr * 36864 + st * 4096}")
            o.append(dict(i=f"buffer_store_dwordx4 {v(AO+pr*4,4)}, v{vST}, {s(sWS,4)}, s{sOFF2} offen sc1", vm=("st", st)))
        return o
    vFA, vFD = 230, 252
    def publish(level):
        return [f"s_add_u32 s{sT}, s{sTAG}, {level}", f"v_mov_b32 v{vFD}, s{sT}",
                dict(i=f"buffer_store_dwordx2 {v(vFD,2)}, v{vFA}, {s(sWS,4)}, 0 offen sc1", vm="pf")]

    def body(ph):
        X = Emit(a); X.lg.q = list(E.lg.q); X.vm.q = list(E.vm.q)
        n0 = ST.n; names0 = list(ST.names)
        def barrier(needl, needv, name=None):
            X.one(dict(needl=needl, needv=needv))
            a("s_barrier")
            if name: ST.stamp(name, X)
        if ph == 1: a("s_setprio 1")
        st0 = ln_stats(0)
        o = st0[:4]
        for j in range(9): o += st0[4 + 8 * j: 12 + 8 * j] + [x_load(1, j)]
        X.run(o + st0[76:])
        ST.stamp("stats0", X)
        bl = [[dict(i=f"buffer_load_ushort v{vBV}, v{vBE}, {s(sA,4)}, s{sFB2} offen", vm="bias")]]
        X.run(spread(ln_norm(0), bl + [w1_unit(U, ph) for U in range(0, 4)]))
        a(f"v_lshlrev_b32 v{vBE}, 2, v0")
        a(f"v_add_u32 v{vBE}, {BIAS}, v{vBE}")
        ST.stamp("norm0", X)
        X.run(spread(ln_stats(1), [w1_unit(U, ph) for U in range(4, 9)]))
        X.one(dict(i=f"v_lshlrev_b32 v{vBV}, 16, v{vBV}", needv=["bias"]))
        a(f"v_mul_f32 v{vBV}, {f32(LOG2E)}, v{vBV}")
        X.one(dict(i=f"ds_write_b32 v{vBE}, v{vBV}", lds="bw"))
        if opt.get("touch1", 1):
            a("v_mul_u32_u24 v1, 13108, v0")
            a("v_lshrrev_b32 v1, 16, v1")
            a("v_mul_u32_u24 v2, 5, v1")
            a("v_sub_u32 v2, v0, v2")
            a("v_mul_u32_u24 v1, 9216, v1")
            a("v_lshl_add_u32 v1, v2, 7, v1")
            a(f"v_mov_b32 v2, {OOB}")
            a("v_cmp_gt_u32 vcc, 360, v0")
            a(f"s_and_b32 s{sT}, s{sMT}, 7")
            a(f"s_mul_i32 s{sT}, s{sT}, {72*9216}")
            a("v_cndmask_b32 v1, v2, v1, vcc")
            a(f"s_add_u32 s{sT}, s{sT}, s{sFB2}")
            X.one(dict(i=f"buffer_load_dword v{vJUNK}, v1, {s(sW1,4)}, s{sT} offen offset:128", vm="t"))
        ST.stamp("stats1", X)
        a(X.lg.drain()); a("s_barrier")
        ST.stamp("barA")
        n1 = ln_norm(1)
        JS = opt.get("js", 4)
        first = [x for x in n1[:17 * JS] if isinstance(x, str)]
        wr = [x for x in n1[:17 * JS] if not isinstance(x, str)]
        X.run(spread(first[:len(first) * 3 // 4], [[xn_read(0, ks)] for ks in range(18)]) + first[len(first) * 3 // 4:])
        a(X.lg.drain()); a("s_barrier")
        X.run(spread(n1[17 * JS:], [[w] for w in wr]))
        a(f"v_add_u32 v{vACTH}, 0x8000, v{vACTW}")
        a(f"s_and_b32 s{sT}, s{sW}, 1")
        a(f"s_lshl_b32 s{sT}, s{sT}, 12")
        a(f"s_add_u32 s{sT}, s{sT}, {ACT}")
        a(f"v_add_u32 v{vAR}, s{sT}, v{vL16}")
        a(f"v_add_u32 v{vARH}, 0x8000, v{vAR}")
        ST.stamp("norm1", X)
        barrier(["xw"], [("w1", -1)], "Bx")
        def burst1(st, bar, extra=()):
            T, t = divmod(st, 3)
            mfs = []
            for kl in range(6):
                ks = 6 * t + kl; g = 18 * T + ks
                for aa in range(2):
                    for mt16 in range(2):
                        acc = ACC + (aa * 2 + mt16) * 4
                        src = v(BI + 4 * aa, 4) if ks == 0 else v(acc, 4)
                        dst = acc if ks < 17 else PEND + (aa * 2 + mt16) * 4
                        nl = [("A", g, 0), ("A", g, 1)]
                        if ks == 0: nl.append(("B", T))
                        if T == 0: nl.append(("xf", mt16, ks))
                        mfs.append((kl, dict(i=f"{M16} {v(dst,4)}, {v(frag(g,aa),4)}, {v(XF(mt16,ks),4)}, {src}", needl=nl)))
            rd = [(kl, r) for kl in range(6) for r in greads(6 * st + 2 + kl)]
            extra = list(extra)
            n = len(mfs)
            nb = opt.get("nb", 2) if ph == 0 else 0
            last = n if ph == 0 else n - opt.get("tail", 3)
            a("s_setprio 0")
            for mi, (kl, m) in enumerate(mfs):
                X.one(m)
                if ph == 0 and mi == nb - 1 and bar: bar()
                if ph == 1 and mi == opt.get("prio_at", 12): a("s_setprio 1")
                if mi >= nb - 1:
                    left = max(1, last - mi)
                    cnt = -(-len(rd) // left)
                    is_last_of_k = (mi + 1 == n) or mfs[mi + 1][0] != kl
                    for _ in range(min(cnt, 2)):
                        if rd and (rd[0][0] - 2 < kl or (rd[0][0] - 2 == kl and is_last_of_k)):
                            X.one(rd.pop(0)[1])
                if extra: X.one(extra.pop(0))
            X.run([r for _, r in rd])
            X.run(extra)
            a(f"s_setprio {opt.get('vprio', 2) if ph == 0 else max(1, opt.get('vprio', 2))}")
        def valu1(items, dmas):
            X.run(spread(items, dmas) if items else flat(dmas))
        xr1 = [xn_read(1, ks) for ks in range(18)]
        X.run(xr1[:3] + bias_reads(0) + greads(0) + greads(1))
        mq = []
        LS = NS1 - 1
        def lastl(sg):
            g = min(NG - 1, 6 * sg + 7)
            return [("A", g, 0), ("A", g, 1), ("xf", 1, 17)] + (["aw", ("act", 2)] if sg == LS - 1 else [])
        for st in range(NS1):
            T, t = divmod(st, 3)
            nm = f"B{st}" if t == 0 else None
            us = [9] if st == 0 else list(units_of(st + 2))
            dm = [w1_unit(U, ph) for U in us]
            bar = lambda: barrier(lastl(st - 1) if st else [("A", 1, 1)], [("w1", st)], nm)
            br = [[r] for r in bias_reads(T + 1)] if (t == 1 and T < NT - 1) else []
            q = st - (LS - 2) - ph
            if 0 <= q < 2: br = br + [[r] for kap in range(3 * q, 3 * q + 3) for r in act_reads(kap)]
            if ph == 1 and st == 1:
                br = br + [[f"v_mov_b32 v{TM}, 0", dict(i=f"buffer_load_dwordx2 {v(vFD,2)}, v{TM}, {s(sDBG,4)}, 0 offen sc1", vm="tg")]]
            if ph == 0:
                burst1(st, bar, xr1[3:] if st == 0 else ())
                if st == LS: break
                fresh = (t == 2)
                if fresh: mq.extend(mish_tile(T, 0))
                items = take(mq, 10 ** 6 if t == 1 else opt.get("bf", 40))
                if fresh and items:
                    for g in dm[:2]: X.run(g)
                    a("s_nop 1" if len(dm) >= 2 else "s_nop 7")
                    dm = dm[2:]
                valu1(items, dm + br)
            else:
                fresh = (t == 0 and st > 0)
                if fresh: mq.extend(mish_tile(T - 1, 1))
                items = take(mq, 10 ** 6 if t == 2 else opt.get("bf", 40))
                if st == 0: items = xr1[3:]
                if fresh and items: a("s_nop 7")
                k = opt.get("k1", 4) if st else 0
                X.run(items[:k])
                bar()
                if st == LS: dm = w2_dma(0, 1)
                valu1(items[k:], dm + br)
                burst1(st, None)
        assert not mq
        for k in (1, 2): a(f"v_add_u32 v{vRBs[k]}, {k*SLOT}, v{vRB}")
        a(f"v_mov_b32 v{vFA+1}, {OOB}")
        a(f"v_lshl_add_u32 v{vFA}, v{vL16}, 3, s{sPFA}")
        a(f"v_cmp_gt_u32 vcc, 64, v{vL16}")
        a("s_nop 1")
        a(f"v_cndmask_b32 v{vFA}, v{vFA+1}, v{vFA}, vcc")
        if ph == 1:
            Lt = a.newlabel("Ltg")
            cond = [f"v_readfirstlane_b32 s{sTAG+1}, v{vFD+1}", f"v_readfirstlane_b32 s{sTAG}, v{vFD}", f"s_cmp_lg_u32 s{sTAG+1}, 0"]
            X.one(dict(needv=["tg"]))
            X.run(cond); a(f"s_cbranch_scc1 {Lt}")
            a(f"v_mov_b32 v{TM}, 0")
            poll(a, [f"buffer_load_dwordx2 {v(vFD,2)}, v{TM}, {s(sDBG,4)}, 0 offen sc1"], cond, "i")
            a.label(Lt)
        a("s_nop 3")
        early = [[r] for kap in range(6, 9) for r in act_reads(kap)]
        if ph == 0: early = w2_dma(0, 0) + early
        mt = mish_tile(NT - 1, ph)
        X.run(spread(mt[:70], early) + mt[70:])
        a(X.lg.drain())
        barrier([], [("w2", 0)], "G2 start")
        late = [r for kap in range(9, 12) for r in act_reads(kap)]
        def burst2(st, embed_barrier, extra=(), xbar=None):
            extra = list(extra)
            a("s_setprio 0")
            for i in range(12):
                nxt = b_reads(st, i + PD2) if i + PD2 < 12 else []
                for mu in range(4):
                    acc = ACC2 + mu * 4
                    src = "0" if i == 0 else v(acc, 4)
                    nl = [("W", st, i)] + ([("act", i)] if st == 0 else [])
                    X.one(dict(i=f"{M16} {v(acc,4)}, {v(frag2(12*st+i),4)}, {v(AFR(mu,i),4)}, {src}", needl=nl))
                    if nxt and mu % 2 == 0: X.one(nxt.pop(0))
                    elif extra: X.one(extra.pop(0))
                    if xbar and i == 7 and mu == 3: xbar()
                    if embed_barrier and i == 12 - PD2 + 1 and mu == 0:
                        a("s_setprio 1")
                        embed_barrier()
            a("s_setprio 2")
            assert not extra
        def pre2(st): return [r for i in range(PD2) for r in b_reads(st, i)]
        LAG = opt.get("lag", 0)
        for st in range(9):
            nxtv = ([("w2", st + 1)] if st < 8 else []) + [("st", st - LAG - 1 + 0)]
            lastw = [("W", st, 11)]
            dm = w2_dma(st + 2, ph) if st + 2 <= 8 else []
            nm = f"G2 B{st+1}" if st % 2 == 1 else None
            def vphase(est):
                d = list(dm)
                for g in d[:2]: X.run(g)
                if len(d) < 2: a("s_nop 7")
                valu1(epi_valu(), d[2:])
                X.run(epi_store(est))
            xb = lambda: barrier([("act", 11)], [])
            if ph == 0:
                X.run(pre2(st))
                if st == 0: X.run(flat(w2_dma(1, 0)))
                burst2(st, None, late if st == 0 else (), xb if st == 0 else None)
                vphase(st)
                if st < 8: barrier(lastw, nxtv, nm)
            else:
                if st == 0:
                    valu1(late, w2_dma(1, 1))
                    xb()
                    X.run(flat(dm))
                else:
                    lvl = st - 1 - LAG
                    vphase(st - 1)
                    if lvl in opt.get("levels", (2, 4, 6)): X.run(publish(lvl))
                X.run(pre2(st))
                burst2(st, (lambda: barrier(lastw, nxtv, nm)) if st < 8 else None)
        if opt.get("l8", 1):
            barrier([], [("st", 7)])
            if ph == 1: X.run(publish(8))
        if ph == 1:
            dm = []
            vphase(8)
        ST.stamp("G2 end", X)
        a("s_waitcnt vmcnt(0)")
        a("s_barrier")
        if ph == 1: X.run(publish(9))
        ST.stamp("end"); ST.cyc(1)
        ST.flush(sWS, sW)
        a("s_endpgm")
        ST.n = n0; ST.names = names0
    Lp1 = a.newlabel("Lph1")
    a(f"s_cmp_lg_u32 s{sPH}, 0")
    a(f"s_cbranch_scc1 {Lp1}")
    body(0)
    a.label(Lp1)
    body(1)
    a.label(Lhelp)
    k7h.helper(a, opt, Lend)
    a.label(Lend)
    a("s_endpgm")
```

```python
from common import *
from k_mlp import Emit, M16

KB = 0; KCH = 8448; KC1 = 4096 + 128
UB = 9 * 8448; UCH = 9216; UCP = 4576
STB = 159744
WS_UF = WS_ZF + 1536
sX, sK, sV, sWS, sSK, sKF, sDD, sOUT, sDBG = 8, 12, 16, 20, 24, 40, 44, 48, 52
sH, sW, sMG, sPH, sQ, sKC, sZO, sI = 28, 30, 31, 32, 33, 34, 35, 36
sT = 56; sEX = 60; sOFF = 62
sCNT, sTAG = 5, 6
OOB = "0x7ffffff0"
vL16, vLN, vT16 = 239, 241, 238
NSL = 12

def flag_cond(regs, level):
    lv = level if isinstance(level, str) else str(level)
    o = [f"s_add_u32 s{sT+3}, s{sTAG}, {lv}"]
    for r in regs:
        o += [f"v_subrev_u32 v{r}, s{sT+3}, v{r}", f"v_xor_b32 v{r+1}, s{sTAG+1}, v{r+1}", f"v_lshrrev_b32 v{r}, 4, v{r}", f"v_or_b32 v{r}, v{r}, v{r+1}"]
    for r in regs[1:]: o.append(f"v_or_b32 v{regs[0]}, v{regs[0]}, v{r}")
    return o + [f"v_cmp_ne_u32 vcc, 0, v{regs[0]}", "s_cmp_eq_u64 vcc, 0"]

def helper(a, opt, Lend):
    from k7 import srd2, poll, stats_math
    ST = Stamps(a, opt.get("stamps"), 1)
    ST.n = 1; ST.names = ["start"]
    for d, off in ((sX, 0), (sK, 8), (sV, 16), (sSK, 24), (sKF, 32), (sDD, 40), (sOUT, 80), (sDBG, 88), (sWS, 96)):
        a(f"s_load_dwordx2 s[{d}:{d+1}], s[0:1], {off}")
    a("v_lshrrev_b32 v1, 6, v0")
    a(f"v_and_b32 v{vLN}, 63, v0")
    a(f"v_readfirstlane_b32 s{sW}, v1")
    a(f"s_sub_u32 s{sH}, s2, 192")
    a(f"v_lshlrev_b32 v{vL16}, 4, v{vLN}")
    a(f"v_lshlrev_b32 v{vT16}, 4, v0")
    a(f"s_and_b32 s{sMG}, s{sW}, 3")
    a(f"s_lshr_b32 s{sPH}, s{sW}, 2")
    a("s_waitcnt lgkmcnt(0)")
    srd2(a, sDBG, 256); srd2(a, sK, XBYTES); srd2(a, sV, XBYTES); srd2(a, sX, XBYTES); srd2(a, sWS, WS_END)
    srd2(a, sSK, 576 * 8); srd2(a, sKF, XBYTES); srd2(a, sDD, 576 * 2); srd2(a, sOUT, XBYTES)
    def one_lane_flag(addr_sgpr, level=0):
        a(f"v_mov_b32 v1, {OOB}")
        a(f"s_add_u32 s{sT+3}, s{sTAG}, {level}")
        a(f"v_mov_b32 v2, s{sT+3}")
        a(f"v_mov_b32 v3, s{sTAG+1}")
        a(f"v_writelane_b32 v1, s{addr_sgpr}, 0")
        a(f"buffer_store_dwordx2 v[2:3], v1, {s(sWS,4)}, 0 offen sc1")
    Lr = a.newlabel("Ltag")
    a(f"s_lshl_b32 s{sT}, s{sH}, 3")
    a(f"s_add_u32 s{sT}, s{sT}, s{sW}")
    a(f"s_cmp_lg_u32 s{sT}, 7")
    a(f"s_cbranch_scc1 {Lr}")
    a(f"s_memrealtime s[{sT}:{sT+1}]")
    a(f"v_mov_b32 v1, {OOB}")
    a("v_writelane_b32 v1, 0, 0")
    a("s_waitcnt lgkmcnt(0)")
    a(f"s_lshl_b64 s[{sT}:{sT+1}], s[{sT}:{sT+1}], 4")
    a(f"s_bitset1_b32 s{sT+1}, 31")
    a(f"v_mov_b32 v2, s{sT}")
    a(f"v_mov_b32 v3, s{sT+1}")
    a(f"buffer_store_dwordx2 v[2:3], v1, {s(sDBG,4)}, 0 offen sc1")
    a.label(Lr)
    if opt.get("ctouch", 1):
        Lc = a.newlabel("Lct")
        a(f"s_cmp_lg_u32 s{sW}, 6")
        a(f"s_cbranch_scc1 {Lc}")
        a(f"s_getpc_b64 s[{sT}:{sT+1}]")
        Lh = a.newlabel("Lhere"); a.label(Lh)
        a(f"s_sub_u32 s{sT}, s{sT}, {Lh}-{opt['kname']}")
        a(f"s_subb_u32 s{sT+1}, s{sT+1}, 0")
        a(f"s_lshr_b32 s{sT+2}, s{sH}, 3")
        a(f"s_lshl_b32 s{sT+2}, s{sT+2}, 13")
        a(f"v_lshl_add_u32 v4, v{vLN}, 7, s{sT+2}")
        a(f"v_add_u32 v5, 0x10000, v4")
        a(f"v_min_u32 v4, {Lend}-{opt['kname']}, v4")
        a(f"v_min_u32 v5, {Lend}-{opt['kname']}, v5")
        a(f"global_load_dword v140, v4, s[{sT}:{sT+1}]")
        a(f"global_load_dword v140, v5, s[{sT}:{sT+1}]")
        a.label(Lc)
    KL, VL, SL_, BN, XL = 0, 41984, 80896, 86016, 118784
    a(f"s_mul_i32 s{sT}, s{sH}, 36864")
    a(f"s_sub_u32 s{sT+1}, s{sT}, 4608")
    a(f"v_add_u32 v4, s{sT+1}, v{vT16}")
    a(f"s_sub_u32 s{sT+1}, s{sT}, 1152")
    a(f"v_add_u32 v5, s{sT+1}, v{vT16}")
    a(f"s_lshl_b32 s{sT+2}, s{sW}, 10")
    def dma(vaddr, srd_, lds, nwaves=8, so="0"):
        L = None
        if nwaves < 8:
            L = a.newlabel("Ld"); a(f"s_cmp_ge_u32 s{sW}, {nwaves}"); a(f"s_cbranch_scc1 {L}")
        a(f"s_add_u32 m0, s{sT+2}, {lds}")
        a("s_nop 0")
        a(f"buffer_load_dwordx4 v{vaddr}, {s(srd_,4)}, {so} offen lds")
        if L: a.label(L)
    for i in range(6):
        dma(4, sK, KL + i * 8192, 8 if i < 5 else 1)
        a("v_add_u32 v4, 8192, v4")
        if i < 5:
            dma(5, sV, VL + i * 8192, 8 if i < 4 else 6)
            a("v_add_u32 v5, 8192, v5")
    dma(vT16, sSK, SL_, 5)
    a("v_mov_b32 v4, 0")
    KR, VR, KU, WU, UU, OUT, SKR = 12, 24, 34, 58, 66, 84, 8
    vKA, vBW, vBR, vSA, vID = 116, 117, 118, 119, 120
    a(f"s_lshl_b32 s{sT}, s{sW}, 12")
    a(f"s_add_u32 s{sT+1}, s{sT}, {BN}")
    a(f"v_lshl_add_u32 v{vBW}, v{vL16}, 2, s{sT+1}")
    a(f"v_add_u32 v{vBR}, s{sT+1}, v{vL16}")
    a(f"s_lshl_b32 s{sT+1}, s{sH}, 2")
    a(f"s_sub_u32 s{sT+1}, 252, s{sT+1}")
    a(f"s_mul_i32 s{sT+1}, s{sT+1}, 18432")
    a(f"s_add_u32 s{sOFF}, s{sT}, s{sT+1}")
    a(f"s_add_u32 s{sOFF}, s{sOFF}, {WS_U}")
    a(f"v_mov_b32 v{vID}, v0")
    a(f"s_mov_b32 s{sI}, s{sW}")
    a("s_movk_i32 s63, 3641")
    a("s_waitcnt vmcnt(0)")
    a("s_barrier")
    ST.stamp("in landed")
    a(f"buffer_load_dwordx2 v[6:7], v4, {s(sDBG,4)}, 0 offen sc1")
    a(f"s_mul_i32 s64, s{sH}, 36864")
    a(f"s_lshl_b32 s{sT+2}, s{sW}, 10")
    for i in range(5):
        dma(vT16, sX, XL + i * 8192, 8 if i < 4 else 4, "s64")
        a("s_add_u32 s64, s64, 8192")
    if opt.get("kft", 0):
        a(f"v_lshlrev_b32 v122, 2, v{vT16}")
        a(f"s_lshl_b32 s64, s{sH}, 15")
        a(f"buffer_load_dword v123, v122, {s(sKF,4)}, s64 offen")
    a(f"v_mov_b32 v2, 0"); a("v_mov_b32 v3, 0")
    a(f"v_lshrrev_b32 v121, 1, v{vL16}")
    a(f"v_add_u32 v121, {STB}, v121")
    a("ds_write_b64 v121, v[2:3]")
    Lp = a.newlabel("Lprep"); a.label(Lp)
    a(f"v_mul_u32_u24 v2, s63, v{vID}")
    a("v_lshrrev_b32 v2, 20, v2")
    a("v_mul_u32_u24 v3, 288, v2")
    a(f"v_sub_u32 v3, v{vID}, v3")
    a("v_sub_u32 v2, 3, v2")
    a(f"v_mul_u32_u24 v{vKA}, 9216, v2")
    a(f"v_lshl_add_u32 v{vKA}, v3, 2, v{vKA}")
    a(f"v_lshlrev_b32 v{vSA}, 4, v3")
    a(f"v_add_u32 v{vSA}, {SL_}, v{vSA}")
    a(f"ds_read_b128 {v(SKR,4)}, v{vSA}")
    for r in range(12): a(f"ds_read_b32 v{KR+r}, v{vKA} offset:{KL + r*1152}")
    a("s_waitcnt lgkmcnt(6)")
    for r in range(9): a(f"ds_read_b32 v{VR+r}, v{vKA} offset:{VL + r*1152}")
    for j in range(4):
        for h in range(2):
            src = SKR + 2 * h + (j >> 1)
            a(f"v_lshlrev_b32 v{WU+2*j+h}, 16, v{src}" if j % 2 == 0 else f"v_and_b32 v{WU+2*j+h}, 0xffff0000, v{src}")
    a("s_waitcnt lgkmcnt(9)")
    for r in range(12):
        a(f"v_lshlrev_b32 v{KU+2*r}, 16, v{KR+r}")
        a(f"v_and_b32 v{KU+2*r+1}, 0xffff0000, v{KR+r}")
    for r in range(9): a(f"v_pk_mul_f32 {v(UU+2*r,2)}, {v(KU+2*r,2)}, {v(WU+6,2)}")
    for j in range(1, 4):
        for r in range(9): a(f"v_pk_fma_f32 {v(UU+2*r,2)}, {v(KU+2*(r+j),2)}, {v(WU+2*(3-j),2)}, {v(UU+2*r,2)}")
    a("s_waitcnt lgkmcnt(0)")
    for r in range(9):
        a(f"v_lshlrev_b32 v{KU+2*r}, 16, v{VR+r}")
        a(f"v_and_b32 v{KU+2*r+1}, 0xffff0000, v{VR+r}")
    for r in range(9): a(f"v_pk_mul_f32 {v(UU+2*r,2)}, {v(UU+2*r,2)}, {v(KU+2*r,2)}")
    for h in range(2):
        for cp in range(2):
            o = OUT + (h * 2 + cp) * 4
            for i in range(4):
                top = 7 + cp - 2 * i
                a(f"v_cvt_pk_bf16_f32 v{o+i}, v{UU+2*top+h}, v{UU+2*(top-1)+h}")
            a(f"ds_write_b128 v{vBW}, {v(o,4)} offset:{(h*2+cp)*16}")
    for k in range(4): a(f"ds_read_b128 {v(100+4*k,4)}, v{vBR} offset:{k*1024}")
    a(f"v_add_u32 v{vID}, 512, v{vID}")
    for k in range(4):
        a(f"s_waitcnt lgkmcnt({3-k})")
        a(f"buffer_store_dwordx4 {v(100+4*k,4)}, v{vL16}, {s(sWS,4)}, s{sOFF} offen offset:{k*1024} sc1")
    a(f"s_add_u32 s{sOFF}, s{sOFF}, 32768")
    a(f"s_add_u32 s{sI}, s{sI}, 8")
    a(f"s_cmp_lt_u32 s{sI}, 18")
    a(f"s_cbranch_scc1 {Lp}")
    ST.stamp("prep done")
    tcond = [f"v_readfirstlane_b32 s{sTAG+1}, v7", f"v_readfirstlane_b32 s{sTAG}, v6", f"s_cmp_lg_u32 s{sTAG+1}, 0"]
    Ltg = a.newlabel("Ltg")
    a("s_waitcnt vmcnt(0)")
    for l in tcond: a(l)
    a(f"s_cbranch_scc1 {Ltg}")
    poll(a, [f"buffer_load_dwordx2 v[6:7], v4, {s(sDBG,4)}, 0 offen sc1"], tcond, "t")
    a.label(Ltg)
    a("s_waitcnt vmcnt(0)")
    a(f"s_load_dwordx2 s[{sK}:{sK+1}], s[0:1], 72")
    a("s_waitcnt lgkmcnt(0)")
    a("s_barrier")
    srd2(a, sK, WBYTES)
    L1 = a.newlabel("Lf")
    a(f"s_cmp_lg_u32 s{sW}, 0")
    a(f"s_cbranch_scc1 {L1}")
    a(f"s_lshl_b32 s{sT}, s{sH}, 3")
    a(f"s_add_u32 s{sT}, s{sT}, {WS_UF}")
    one_lane_flag(sT)
    a.label(L1)
    ST.stamp("U published")
    XR = 200; vXO, vXO4, vSB, SS = 236, 237, 235, 232
    a(f"v_and_b32 v6, 7, v{vLN}")
    a(f"s_lshl_b32 s{sT}, s{sMG}, 3")
    a(f"v_add_u32 v6, s{sT}, v6")
    a(f"v_lshlrev_b32 v{vSB}, 3, v6")
    a(f"v_add_u32 v{vSB}, {STB}, v{vSB}")
    a(f"v_mul_u32_u24 v{vXO}, 1152, v6")
    a(f"v_lshrrev_b32 v7, 3, v{vLN}")
    a(f"v_lshl_add_u32 v{vXO}, v7, 4, v{vXO}")
    a(f"s_lshl_b32 s{sT}, s{sPH}, 7")
    a(f"v_add_u32 v{vXO}, s{sT}, v{vXO}")
    a(f"v_add_u32 v8, {XL}, v{vXO}")
    for q in range(5): a(f"ds_read_b128 {v(XR+4*q,4)}, v8 offset:{q*256}")
    a(f"s_mul_i32 s{sT}, s{sH}, 36864")
    a(f"v_add_u32 v{vXO}, s{sT}, v{vXO}")
    a(f"s_cmp_eq_u32 s{sPH}, 0")
    a(f"s_cselect_b32 s{sT}, 0, {OOB}")
    a(f"s_cselect_b32 s{sT+1}, -1, 0")
    a(f"v_or_b32 v{vXO4}, s{sT}, v{vXO}")
    a("s_mov_b32 s66, 0x3f803f80")
    for k in range(4): a(f"v_mov_b32 v{12+k}, 0")
    a("s_waitcnt lgkmcnt(0)")
    a("s_barrier")
    for k in range(4): a(f"v_and_b32 v{XR+16+k}, s{sT+1}, v{XR+16+k}")
    CA = 0
    QUADS = list(range(32, 160, 4))
    UL = 160
    vA, vB, vZS, vD0, AD, vS0, vUW, vUS, vDV = 220, 221, 222, 223, 224, 228, 234, 240, 242
    vN, vG, t1_, t2_, t3_, t4_ = 243, 244, 2, 3, 4, 5
    a(f"s_mul_i32 s{sKC}, s{sW}, {KCH}")
    a(f"s_lshl_b32 s{sQ}, s{sH}, 3")
    a(f"s_add_u32 s{sQ}, s{sQ}, s{sW}")
    a(f"s_lshl_b32 s{sT}, s{sQ}, 12")
    for c in range(2):
        a(f"s_add_u32 m0, s{sKC}, {KB + c * KC1}")
        a(f"s_add_u32 s{sOFF}, s{sT}, {4 * c}")
        for pc in range(4): a(f"buffer_load_dwordx4 v{vL16}, {s(sKF,4)}, s{sOFF} offen offset:{pc*1024} lds")
    a(f"s_mul_i32 s{sT}, s{sPH}, {KC1}")
    a(f"s_lshl_b32 s{sT+1}, s{sMG}, 10")
    a(f"s_add_u32 s{sT}, s{sT}, s{sT+1}")
    a(f"s_add_u32 m0, s{sT}, {KB + 8 * KCH}")
    a(f"s_lshl_b32 s{sT}, s{sH}, 12")
    a(f"s_add_u32 s{sT}, s{sT}, s{sT+1}")
    a(f"s_lshl_b32 s{sT+1}, s{sPH}, 2")
    a(f"s_add_u32 s{sT}, s{sT}, s{sT+1}")
    a(f"s_add_u32 s{sT}, s{sT}, {512 * 4096}")
    a(f"buffer_load_dwordx4 v{vL16}, {s(sKF,4)}, s{sT} offen lds")
    a(f"s_lshl_b32 s{sT}, s{sQ}, 1")
    a(f"v_mov_b32 v6, s{sT}")
    a(f"buffer_load_ushort v{vDV}, v6, {s(sDD,4)}, 0 offen")
    a(f"s_lshl_b32 s{sT}, s{sH}, 1")
    a(f"v_mov_b32 v7, s{sT}")
    a(f"buffer_load_ushort v245, v7, {s(sDD,4)}, 0 offen offset:1024")
    a(f"v_and_b32 v{vN}, 15, v{vLN}")
    a(f"v_lshrrev_b32 v{vG}, 4, v{vLN}")
    a(f"v_add_u32 v{t1_}, 1, v{vN}")
    a(f"v_and_b32 v{t2_}, 1, v{t1_}")
    a(f"v_lshrrev_b32 v{t1_}, 1, v{t1_}")
    a(f"v_lshlrev_b32 v{t3_}, 1, v{vG}")
    a(f"v_sub_u32 v{t1_}, v{t1_}, v{t3_}")
    a(f"v_lshlrev_b32 v{t1_}, 3, v{t1_}")
    a(f"v_mul_u32_u24 v{t3_}, {KC1}, v{t2_}")
    a(f"v_add_u32 v{t1_}, v{t1_}, v{t3_}")
    a(f"s_add_u32 s{sT+1}, s{sKC}, {KB + 48}")
    a(f"v_add_u32 v{vA}, s{sT+1}, v{t1_}")
    a(f"v_and_b32 v{t4_}, 1, v{vN}")
    a(f"v_mul_u32_u24 v{t1_}, {UCP}, v{t4_}")
    a(f"v_lshrrev_b32 v{t2_}, 1, v{vN}")
    a(f"v_lshl_add_u32 v{t3_}, v{t2_}, 2, v{vG}")
    a(f"v_lshlrev_b32 v{vZS}, 4, v{t3_}")
    a(f"v_lshl_add_u32 v{vZS}, v{t4_}, 3, v{vZS}")
    a(f"v_sub_u32 v{t3_}, 31, v{t3_}")
    a(f"v_lshl_add_u32 v{t1_}, v{t3_}, 4, v{t1_}")
    a(f"s_mul_i32 s{sT+1}, s{sW}, {UCH}")
    a(f"s_add_u32 s{sT+1}, s{sT+1}, {UB}")
    a(f"v_add_u32 v{vB}, s{sT+1}, v{t1_}")
    a(f"v_lshlrev_b32 v{t1_}, 2, v{vG}")
    a(f"v_sub_u32 v{t1_}, v{vN}, v{t1_}")
    a(f"v_subrev_u32 v{vD0}, 3, v{t1_}")
    a(f"v_lshrrev_b32 v{t1_}, 8, v{vT16}")
    a(f"v_mul_u32_u24 v{vUS}, 18432, v{t1_}")
    a(f"v_and_b32 v{t2_}, 0xf0, v{vT16}")
    a(f"v_add_u32 v{vUS}, v{vUS}, v{t2_}")
    a(f"v_bfe_u32 v{t2_}, v{vT16}, 5, 3")
    a(f"v_mul_u32_u24 v{vUW}, {UCH}, v{t2_}")
    a(f"v_bfe_u32 v{t2_}, v{vT16}, 4, 1")
    a(f"v_mul_u32_u24 v{t2_}, {UCP}, v{t2_}")
    a(f"v_add_u32 v{vUW}, v{vUW}, v{t2_}")
    a(f"v_lshl_add_u32 v{vUW}, v{t1_}, 4, v{vUW}")
    a(f"v_add_u32 v{vUW}, {UB}, v{vUW}")
    a(f"v_lshrrev_b32 v{t1_}, 5, v{vT16}")
    a(f"v_mul_u32_u24 v246, 18432, v{t1_}")
    a(f"v_and_b32 v{t3_}, 16, v{vT16}")
    a(f"v_add_u32 v246, v246, v{t3_}")
    a(f"v_lshl_add_u32 v247, v{t1_}, 4, v{t2_}")
    a(f"v_add_u32 v247, {UB + 8 * UCH}, v247")
    for k in range(4): a(f"v_mov_b32 v{8+k}, 0")
    a(f"v_cmp_gt_u32 vcc, {448*16}, v{vT16}")
    a(f"s_and_saveexec_b64 s[{sEX}:{sEX+1}], vcc")
    a(f"ds_write_b128 v{vUW}, v[8:11] offset:4096")
    a(f"s_mov_b64 exec, s[{sEX}:{sEX+1}]")
    a(f"v_cmp_gt_u32 vcc, {56*16}, v{vT16}")
    a(f"s_and_saveexec_b64 s[{sEX}:{sEX+1}], vcc")
    a(f"ds_write_b128 v247, v[8:11] offset:4096")
    a(f"s_mov_b64 exec, s[{sEX}:{sEX+1}]")
    for k in range(20):
        a(f"v_dot2c_f32_bf16 v{12+2*(k&1)}, s66, v{XR+k}")
        a(f"v_dot2c_f32_bf16 v{13+2*(k&1)}, v{XR+k}, v{XR+k}")
    a("s_nop 2")
    a("v_add_f32 v12, v12, v14")
    a("v_add_f32 v13, v13, v15")
    a("s_nop 1")
    a("v_add_f32_dpp v12, v12, v12 row_ror:8 row_mask:0xf bank_mask:0xf")
    a("v_add_f32_dpp v13, v13, v13 row_ror:8 row_mask:0xf bank_mask:0xf")
    for op in ("v_permlane16_swap_b32", "v_permlane32_swap_b32"):
        a("v_mov_b32 v14, v12"); a("v_mov_b32 v15, v13"); a("s_nop 1")
        a(f"{op} v12, v14"); a(f"{op} v13, v15")
        a("v_add_f32 v12, v12, v14"); a("v_add_f32 v13, v13, v15")
    a("s_mov_b64 exec, 0xff")
    a(f"ds_add_f32 v{vSB}, v12")
    a(f"ds_add_f32 v{vSB}, v13 offset:4")
    a("s_mov_b64 exec, -1")
    a(f"v_mov_b32 v7, {OOB}")
    a(f"s_lshr_b32 s{sT}, s{sH}, 3")
    a(f"s_and_b32 s{sT+1}, s{sH}, 3")
    a(f"s_mul_i32 s{sT+1}, s{sT+1}, {1152*1152}")
    a(f"s_mul_i32 s{sT}, s{sT}, {144*1152}")
    a(f"s_add_u32 s39, s{sT}, s{sT+1}")
    a(f"s_lshl_b32 s{sT}, s{sW}, 11")
    a(f"v_lshl_add_u32 v248, v{vLN}, 7, s{sT}")
    a(f"v_cmp_gt_u32 vcc, 16, v{vLN}")
    a("s_nop 1")
    a("v_cndmask_b32 v248, v7, v248, vcc")
    L2 = a.newlabel("Lf")
    a(f"s_cmp_lg_u32 s{sW}, 0")
    a(f"s_cbranch_scc1 {L2}")
    a(f"v_lshrrev_b32 v4, 1, v{vL16}")
    a(f"v_add_u32 v4, {WS_UF}, v4")
    poll(a, [f"buffer_load_dwordx2 v[2:3], v4, {s(sWS,4)}, 0 offen sc1"], flag_cond([2], 0), "u", 2)
    a.label(L2)
    a("s_barrier")
    ST.stamp("U seen")
    a(f"s_lshl_b32 s{sT}, s{sH}, 8")
    a(f"s_add_u32 s{sT}, s{sT}, {WS_U}")
    for it in range(8):
        a(f"buffer_load_dwordx4 {v(UL+4*it,4)}, v{vUS}, {s(sWS,4)}, s{sT} offen sc1")
        if it < 7: a(f"s_add_u32 s{sT}, s{sT}, {32*18432}")
    a(f"s_lshl_b32 s{sT}, s{sH}, 5")
    a(f"s_add_u32 s{sT}, s{sT}, {WS_U + 128*128}")
    a(f"buffer_load_dwordx4 {v(UL+32,4)}, v246, {s(sWS,4)}, s{sT} offen sc1")
    def a0_setup(dv, sbase):
        for i in range(4):
            a(f"v_add_u32 v250, {i}, v{vD0}")
            a(f"v_cmp_eq_u32 vcc, 0, v250")
            a(f"v_max_i32 v251, 0, v250")
            a(f"v_lshl_add_u32 v{vS0+i}, v251, 2, s{sbase}")
            a(f"v_cndmask_b32 v{AD+i}, 0, v{dv}, vcc")
    a("s_waitcnt vmcnt(9)")
    a(f"s_sub_u32 s{sT}, 8, s{sW}")
    a(f"s_lshl_b32 s{sT+2}, s{sW}, 6")
    a(f"s_mul_i32 s64, s{sT}, {KCH}")
    a(f"s_add_u32 s64, s64, s{sT+2}")
    a(f"s_mul_i32 s65, s{sT}, {UCH}")
    a(f"s_add_u32 s65, s65, s{sT+2}")
    a(f"s_lshl_b32 s66, s{sW}, 4")
    a(f"v_add_u32 v{vA}, s64, v{vA}")
    a(f"v_add_u32 v{vB}, s65, v{vB}")
    a(f"v_add_u32 v{vD0}, s66, v{vD0}")
    a(f"s_mov_b32 s67, {KB + 8 * KCH}")
    a0_setup(245, 67)
    for it in range(8):
        a(f"s_waitcnt vmcnt({8-it})")
        a(f"ds_write_b128 v{vUW}, {v(UL+4*it,4)} offset:{it*512}")
    a("s_waitcnt vmcnt(0)")
    a(f"ds_write_b128 v247, {v(UL+32,4)}")
    a(f"s_lshl_b32 s{sZO}, s{sQ}, 12")
    a(f"s_add_u32 s{sZO}, s{sZO}, {WS_Z}")
    a("s_waitcnt lgkmcnt(0)")
    a("s_barrier")
    ST.stamp("conv start")
    pairs = []
    for aa in range(8):
        for n in range(7, aa - 1, -1): pairs.append((aa, n - aa))
    def conv_pass(nb, vq, CA):
        X = Emit(a)
        ops = [(b, aa, mu) for b in range(nb) for (aa, mu) in pairs]
        need = [("A", 0, 0)] + [("B", 0, n) for n in range(7, -1, -1)]
        last = {}
        for idx, (b, aa, mu) in enumerate(ops):
            for key in (("A", b, aa), ("B", b, mu)):
                if key not in need: need.append(key)
                last[key] = idx
        free = list(QUADS); where = {}
        def issue():
            key = need.pop(0); q = free.pop(0); where[key] = q
            kind, b, i = key
            if key == ("A", 0, 0):
                for k in range(4): X.one(dict(i=f"ds_read_b32 v{q+k}, v{vS0+k}", lds=key))
            elif kind == "A":
                for hh in range(2): X.one(dict(i=f"ds_read_b64 {v(q+2*hh,2)}, v{vA} offset:{b*64 + i*512 - 64 + 8*hh}", lds=key))
            else: X.one(dict(i=f"ds_read_b128 {v(q,4)}, v{vB} offset:{b*64 + (7-i)*512}", lds=key))
        for _ in range(9): issue()
        q0 = where[("A", 0, 0)]
        for k in range(4):
            a(f"v_add_u32 v250, {k}, v{vD0}")
            a(f"v_cmp_le_i32 vcc, 0, v250")
            a("s_nop 1")
            X.one(dict(i=f"v_cndmask_b32 v{q0+k}, 0, v{q0+k}, vcc", needl=[("A", 0, 0)]))
        for n in range(7, -1, -1):
            X.one(dict(i=f"{M16} {v(CA+4*n,4)}, {v(AD,4)}, {v(where[('B',0,n)],4)}, 0", needl=[("B", 0, n)]))
            if need and len(X.lg.q) < 12: issue()
        for idx, (b, aa, mu) in enumerate(ops):
            ka, kb = ("A", b, aa), ("B", b, mu)
            while ka not in where or kb not in where: issue()
            d = CA + 4 * (aa + mu)
            X.one(dict(i=f"{M16} {v(d,4)}, {v(where[ka],4)}, {v(where[kb],4)}, {v(d,4)}", needl=[ka, kb]))
            for key in (ka, kb):
                if last[key] == idx: free.append(where[key])
            if need and free and need[0][1] <= b + 1 and (idx % 2 == 0 or need[0][1] == b):
                if len(X.lg.q) >= 12:
                    a("s_waitcnt lgkmcnt(4)"); X.lg.q = X.lg.q[-4:]
                issue()
            if idx % 20 == 10 and vq: X.one(vq.pop(0))
        assert not need and not vq
        a("s_nop 7")
    conv_pass(1, [], UL)
    a(f"v_subrev_u32 v{vA}, s64, v{vA}")
    a(f"v_subrev_u32 v{vB}, s65, v{vB}")
    a(f"v_subrev_u32 v{vD0}, s66, v{vD0}")
    a0_setup(vDV, sKC)
    tl = [f"buffer_load_dword v252, v248, {s(sK,4)}, s39 offen\ns_add_u32 s39, s39, {128*128 if k < 9 else 16*128}" for k in range(11)] if opt.get("touch", 1) else []
    xl = []
    if opt.get("ctouch2", 1):
        a("s_getpc_b64 s[66:67]")
        Lh2 = a.newlabel("Lhere"); a.label(Lh2)
        a(f"s_sub_u32 s66, s66, {Lh2}-{opt['kname']}")
        a("s_subb_u32 s67, s67, 0")
        a(f"s_lshr_b32 s{sT}, s{sH}, 3")
        a(f"s_mul_i32 s{sT}, s{sT}, 10240")
        a(f"s_mul_i32 s{sT+1}, s{sW}, 1280")
        a(f"s_add_u32 s{sT}, s{sT}, s{sT+1}")
        a(f"v_min_u32 v249, 9, v{vLN}")
        a(f"v_lshl_add_u32 v249, v249, 7, s{sT}")
        a(f"v_min_u32 v249, {Lend}-{opt['kname']}, v249")
        xl = ["global_load_dword v252, v249, s[66:67]"]
    conv_pass(8, tl + xl, CA)
    for n in range(8):
        a(f"v_cvt_pk_bf16_f32 v{32+2*n}, v{CA+4*n}, v{CA+4*n+1}")
        a(f"v_cvt_pk_bf16_f32 v{33+2*n}, v{CA+4*n+2}, v{CA+4*n+3}")
        a(f"buffer_store_dwordx2 {v(32+2*n,2)}, v{vZS}, {s(sWS,4)}, s{sZO} offen offset:{n*512} sc1")
    ST.stamp("conv main")
    a(f"v_add_u32 v250, s{sKC}, v{vL16}")
    for n in range(8): a(f"ds_write_b128 v250, {v(UL+4*n,4)} offset:{n*1024}")
    a("s_waitcnt lgkmcnt(0)")
    a("s_barrier")
    for k in range(8): a(f"ds_read_b128 {v(52+4*k,4)}, v{vT16} offset:{k*KCH}")
    a(f"s_lshl_b32 s{sZO}, s{sH}, 12")
    a(f"s_lshl_b32 s{sT}, s{sW}, 9")
    a(f"s_add_u32 s{sZO}, s{sZO}, s{sT}")
    a(f"s_add_u32 s{sZO}, s{sZO}, {WS_Z + 512*4096}")
    a("s_waitcnt lgkmcnt(0)")
    for k in range(1, 8):
        for r in range(4): a(f"v_add_f32 v{52+r}, v{52+r}, v{52+4*k+r}")
    a("v_cvt_pk_bf16_f32 v48, v52, v53")
    a("v_cvt_pk_bf16_f32 v49, v54, v55")
    a(f"buffer_store_dwordx2 v[48:49], v{vZS}, {s(sWS,4)}, s{sZO} offen sc1")
    a("s_waitcnt vmcnt(0)")
    a("s_barrier")
    ST.stamp("conv done")
    L4 = a.newlabel("Lf")
    a(f"s_cmp_lg_u32 s{sW}, 0")
    a(f"s_cbranch_scc1 {L4}")
    a(f"s_lshl_b32 s{sT}, s{sH}, 3")
    a(f"s_add_u32 s{sT}, s{sT}, {WS_UF}")
    one_lane_flag(sT, 1)
    a.label(L4)
    vRL, vPF, vZG, vZG4, vZW, vZR, vUF, vRL4 = 220, 221, 225, 226, 227, 228, 229, 230
    a(f"ds_read_b64 v[150:151], v{vSB}")
    a(f"v_lshrrev_b32 v250, 6, v{vT16}")
    a(f"v_and_b32 v251, 48, v{vT16}")
    a(f"v_lshl_add_u32 v{vZG}, v250, 12, v251")
    a(f"v_bfe_u32 v249, v{vT16}, 9, 2")
    a(f"v_lshlrev_b32 v249, 4, v249")
    a(f"v_xor_b32 v{vZW}, v249, v{vT16}")
    a(f"s_cmp_eq_u32 s{sPH}, 0")
    a(f"s_cselect_b32 s{sT+2}, 0, {OOB}")
    a(f"v_or_b32 v{vZG4}, s{sT+2}, v{vZG}")
    a(f"v_lshrrev_b32 v250, 3, v{vLN}")
    a(f"v_and_b32 v251, 0x70, v{vL16}")
    a(f"v_lshl_add_u32 v{vRL}, v250, 9, v251")
    a(f"s_mul_i32 s{sT}, s{sH}, 36864")
    a(f"s_lshl_b32 s{sT+1}, s{sMG}, 7")
    a(f"s_add_u32 s{sT}, s{sT}, s{sT+1}")
    a(f"s_lshl_b32 s{sT+1}, s{sPH}, 12")
    a(f"s_add_u32 s{sT}, s{sT}, s{sT+1}")
    a(f"v_add_u32 v{vRL}, s{sT}, v{vRL}")
    a(f"v_or_b32 v{vRL4}, s{sT+2}, v{vRL}")
    a(f"v_min_u32 v251, {NSL-1}, v{vLN}")
    a(f"s_lshl_b32 s{sT}, s{sH}, 7")
    a(f"s_add_u32 s{sT}, s{sT}, {WS_PF2}")
    a(f"v_lshl_add_u32 v{vPF}, v251, 3, s{sT}")
    a(f"v_and_b32 v251, 3, v250")
    a(f"v_xor_b32 v251, s{sMG}, v251")
    a(f"v_lshlrev_b32 v251, 4, v251")
    a(f"v_lshl_add_u32 v{vZR}, v250, 9, v251")
    a(f"v_and_b32 v251, 1, v{vLN}")
    a(f"v_lshl_add_u32 v{vZR}, v251, 3, v{vZR}")
    a(f"v_and_b32 v251, 6, v{vLN}")
    a(f"v_add_u32 v{vZR}, v{vZR}, v251")
    a(f"v_add_u32 v{vZR}, s{sT+1}, v{vZR}")
    a(f"v_lshrrev_b32 v{vUF}, 1, v{vL16}")
    a(f"v_add_u32 v{vUF}, {WS_UF}, v{vUF}")
    BASE, ZL, ZR, XN, AC = 160, 96, 116, 48, 144
    a("s_mov_b32 s63, 0x00003f80")
    a("s_mov_b32 s64, 0x3f800000")
    a(f"s_mov_b32 s65, {f32(LN2)}")
    a(f"s_mov_b32 s{sI}, 0")
    RB = lambda q: (q % 3) * 48
    def wave_poll(addr, level, tag):
        Lk = a.newlabel("Lk")
        a(f"s_cmp_lg_u32 s{sW}, 7")
        a(f"s_cbranch_scc1 {Lk}")
        poll(a, [f"buffer_load_dwordx2 v[222:223], v{addr}, {s(sWS,4)}, 0 offen sc1"], flag_cond([222], level), tag, opt.get("psleep", 6))
        a.label(Lk)
        a("s_barrier")
    def ensure(level):
        Lk, Lq = a.newlabel("Lk"), a.newlabel("Lq")
        a(f"s_cmp_ge_u32 s{sI}, {level}")
        a(f"s_cbranch_scc1 {Lk}")
        a(f"s_cmp_lg_u32 s{sW}, 7")
        a(f"s_cbranch_scc1 {Lq}")
        cond = [f"v_subrev_u32 v222, s{sTAG}, v222", f"v_xor_b32 v223, s{sTAG+1}, v223", "v_lshrrev_b32 v224, 4, v222", "v_or_b32 v223, v223, v224",
                "v_cmp_eq_u32 vcc, 0, v223", "s_nop 1", "v_cndmask_b32 v222, 0, v222, vcc", "s_nop 1",
                "v_min_u32_dpp v222, v222, v222 row_ror:8 row_mask:0xf bank_mask:0xf", "s_nop 1",
                "v_min_u32_dpp v222, v222, v222 row_ror:4 row_mask:0xf bank_mask:0xf", "s_nop 1",
                "v_min_u32_dpp v222, v222, v222 row_ror:2 row_mask:0xf bank_mask:0xf", "s_nop 1",
                "v_min_u32_dpp v222, v222, v222 row_ror:1 row_mask:0xf bank_mask:0xf", "s_nop 0",
                f"v_readfirstlane_b32 s{sI}, v222", "s_nop 0", f"s_cmp_ge_u32 s{sI}, {level}"]
        poll(a, [f"buffer_load_dwordx2 v[222:223], v{vPF}, {s(sWS,4)}, 0 offen sc1"], cond, "p", opt.get("psleep", 6))
        a(f"v_mov_b32 v222, s{sI}")
        a(f"ds_write_b32 v231, v222 offset:{4*level}")
        a("s_waitcnt lgkmcnt(0)")
        a.label(Lq)
        a("s_barrier")
        a(f"ds_read_b32 v222, v231 offset:{4*level}")
        a("s_waitcnt lgkmcnt(0)")
        a(f"v_readfirstlane_b32 s{sI}, v222")
        a.label(Lk)
    a(f"v_mov_b32 v231, {STB + 512}")
    nst = []
    def loads(q):
        for i in range(NSL):
            a(f"s_mov_b32 s{sOFF}, {i * SLICE + q * 8192}")
            a(f"buffer_load_dwordx4 {v(RB(q)+4*i,4)}, v{vRL4 if q == 4 else vRL}, {s(sWS,4)}, s{sOFF} offen sc1")
        nst.extend([("L", q)] * NSL)
    def consume(q):
        for k in range(8): a(f"v_mov_b32 v{AC+k}, 0")
        for i in range(NSL):
            idx = [j for j, e in enumerate(nst) if e == ("L", q)][i]
            if i % 2 == 1 or i == 0: a(f"s_waitcnt vmcnt({len(nst) - 1 - (idx if i == 0 else min(idx + 1, idx + NSL - 1 - i))})")
            for k in range(4):
                a(f"v_dot2c_f32_bf16 v{AC+2*k}, s63, v{RB(q)+4*i+k}")
                a(f"v_dot2c_f32_bf16 v{AC+2*k+1}, s64, v{RB(q)+4*i+k}")
        a("s_nop 2")
        for k in range(8): a(f"v_fmac_f32 v{BASE+8*q+k}, s65, v{AC+k}")
        for k in range(4): a(f"v_cvt_pk_bf16_f32 v{XR+4*q+k}, v{BASE+8*q+2*k}, v{BASE+8*q+2*k+1}")
        a(f"buffer_store_dwordx4 {v(XR+4*q,4)}, v{vXO4 if q == 4 else vXO}, {s(sOUT,4)}, 0 offen offset:{q*256} {opt.get('omod', '')}")
        nst.append(("S", q))
    a("s_waitcnt lgkmcnt(0)")
    for l in stats_math(150, 151, 152, 153, SS, SS + 1): a(l)
    for k in range(20):
        a(f"v_lshlrev_b32 v{BASE+2*k}, 16, v{XR+k}")
        a(f"v_and_b32 v{BASE+2*k+1}, 0xffff0000, v{XR+k}")
    for k in range(16): a(f"v_mov_b32 v{ZR+k}, 0")
    a(f"v_mul_f32 v{SS}, v{SS}, v{SS+1}")
    ST.stamp("xpart")
    Lk = a.newlabel("Lk")
    a(f"s_cmp_lg_u32 s{sW}, 6")
    a(f"s_cbranch_scc1 {Lk}")
    poll(a, [f"buffer_load_dwordx2 v[222:223], v{vUF}, {s(sWS,4)}, 0 offen sc1"], flag_cond([222], 1), "z", opt.get("psleep", 6))
    a.label(Lk)
    a("s_barrier")
    ST.stamp("z seen")
    a(f"s_lshl_b32 s{sT}, s{sH}, 6")
    a(f"s_add_u32 s{sT}, s{sT}, {WS_Z}")
    for i in range(5):
        a(f"buffer_load_dwordx4 {v(ZL+4*i,4)}, v{vZG4 if i == 4 else vZG}, {s(sWS,4)}, s{sT} offen sc1")
        if i < 4: a(f"s_add_u32 s{sT}, s{sT}, {128*4096}")
    for i in range(5):
        a(f"s_waitcnt vmcnt({4 - i})")
        a(f"ds_write_b128 v{vZW}, {v(ZL+4*i,4)} offset:{i*8192}")
    a("s_waitcnt lgkmcnt(0)")
    a("s_barrier")
    rd = lambda q: [a(f"ds_read_u16_d16_hi v{ZR+8*(q&1)+j}, v{vZR} offset:{q*8192 + j*64}") for j in range(8)]
    rd(0)
    for q in range(5):
        if q < 4:
            a("s_waitcnt lgkmcnt(4)")
            rd(q + 1)
        for j in range(8): a(f"v_fma_f32 v{AC+j}, v{BASE+8*q+j}, v{SS+1}, -v{SS}")
        a(f"s_waitcnt lgkmcnt({8 if q < 4 else 0})")
        for j in range(8): a(f"v_fmac_f32 v{BASE+8*q+j}, v{AC+j}, v{ZR+8*(q&1)+j}")
    ST.stamp("base")
    ensure(2); ST.stamp("seen 2"); loads(0)
    for q in range(5):
        if q < 4:
            lv = min(9, 2 * q + 4)
            La, Lb = a.newlabel("Lr"), a.newlabel("Lr")
            save = list(nst)
            a(f"s_cmp_ge_u32 s{sI}, {lv}")
            a(f"s_cbranch_scc0 {La}")
            loads(q + 1); consume(q)
            a(f"s_branch {Lb}")
            a.label(La)
            nst[:] = save
            consume(q); ensure(lv); loads(q + 1)
            a.label(Lb)
            nst[:] = [("L", q + 1)] * NSL
            if q in (1, 3): ST.stamp(f"issued {q+1}")
        else: consume(q)
    if opt.get("stamps"): a("s_waitcnt vmcnt(0)")
    ST.stamp("end"); ST.cyc(1)
    ST.flush(sWS, sW)
```

```python
from common import *
from k_mlp import Emit, M16, mish_group
import k7h

NSL = 12
RING = 0
ACT = 73728
BIAS = 155648
LDS_ALL = 163840
SLOT = 49152
def POS(k): return {0: 7, 1: 8, 9: 9, 10: 7, 11: 8}.get(k, k - 2)

def XF(mt16, ks): return mt16 * 72 + ks * 4
def AFR(mu, kap):
    q, r = divmod(kap, 3); n = mu * 3 + r
    return 144 + n * 4 if q == 3 else XF(n // 6, 6 * q + n % 6)
ACC = 144; PEND = 160; FR = 176; BI = 208; TM = 216; AO = 244
ACC2 = 192; FR2 = 208
RA = [228, 229, 230, 231]
vW1, vW2, vJUNK, vACTW, vBIAS, vST, vRB, vL16 = 232, 233, 234, 235, 236, 237, 238, 239
T0 = 240
sX, sW1, sW2, sWS, sA, sDBG = 8, 12, 16, 20, 24, 52
sMT, sSL, sW, sMG, sPH, sFB2, sW2A = 28, 29, 30, 31, 32, 33, 34
sPFA = 35
sT = 56; sEX = 60
sOFF, sONES, sM0G, sOFF2 = 62, 63, 64, 65
sXR1, sCNT, sTAG = 3, 5, 6
sXR0 = 36
OOB = "0x7ffffff0"

def spread(main, side):
    out = []; k = 0; n = len(main)
    for i, m in enumerate(main):
        out.append(m)
        want = (i + 1) * len(side) // n
        while k < want:
            out.extend(side[k]); k += 1
    for g in side[k:]: out.extend(g)
    return out
def flat(groups): return [x for g in groups for x in g]
def srd2(a, d, nbytes):
    a(f"s_and_b32 s{d+1}, s{d+1}, 0xffff")
    a(f"s_mov_b32 s{d+2}, {nbytes}")
    a(f"s_mov_b32 s{d+3}, 0x00020000")
def poll(a, load, cond_lines, tag, sleep=8):
    L, Ld = a.newlabel("Lpoll" + tag), a.newlabel("Lpd" + tag)
    a.label(L)
    for l in load: a(l)
    a("s_waitcnt vmcnt(0)")
    for l in cond_lines: a(l)
    a(f"s_cbranch_scc1 {Ld}")
    a(f"s_sleep {sleep}")
    a(f"s_sub_u32 s{sCNT}, s{sCNT}, 1")
    a(f"s_cbranch_scc0 {L}")
    a(f"s_mov_b32 s{sCNT}, 0")
    a.label(Ld)
def stats_math(s0, q0, mean, var, mb, rs):
    return [f"v_mul_f32 v{mean}, {f32(1.0/576)}, v{s0}",
            f"v_mul_f32 v{var}, {f32(1.0/576)}, v{q0}",
            f"v_fma_f32 v{var}, -v{mean}, v{mean}, v{var}",
            f"v_max_f32 v{var}, 0, v{var}",
            f"v_cvt_pk_bf16_f32 v{mb}, v{mean}, v{var}",
            f"v_and_b32 v{var}, 0xffff0000, v{mb}",
            f"v_lshlrev_b32 v{mb}, 16, v{mb}",
            f"v_add_f32 v{var}, {f32(1e-5)}, v{var}",
            f"v_cvt_pk_bf16_f32 v{var}, v{var}, v{var}",
            f"v_lshlrev_b32 v{var}, 16, v{var}",
            f"v_sqrt_f32 v{var}, v{var}",
            "s_nop 0",
            f"v_cvt_pk_bf16_f32 v{var}, v{var}, v{var}",
            f"v_lshlrev_b32 v{var}, 16, v{var}",
            f"v_rcp_f32 v{rs}, v{var}",
            "s_nop 0"]

def gen(a, opt=None):
    opt = opt or {}
    E = Emit(a)
    Lend, Lhelp = a.newlabel("Lend"), a.newlabel("Lhelp")
    a("s_cmp_ge_u32 s2, 256")
    a(f"s_cbranch_scc1 {Lend}")
    ST = Stamps(a, opt.get("stamps"), 0)
    ST.stamp("start"); ST.cyc(0)
    a(f"s_mov_b32 s{sCNT}, 0x80000")
    a("s_cmp_ge_u32 s2, 192")
    a(f"s_cbranch_scc1 {Lhelp}")
    for d, off in ((sX, 0), (sW1, 56), (sA, 64), (sW2, 72), (sWS, 96), (sDBG, 88)):
        a(f"s_load_dwordx2 s[{d}:{d+1}], s[0:1], {off}")
    lane, r8, u8 = T0 + 1, T0 + 2, T0 + 3
    a(f"v_lshrrev_b32 v{T0}, 6, v0")
    a(f"v_and_b32 v{lane}, 63, v0")
    a(f"v_readfirstlane_b32 s{sW}, v{T0}")
    a(f"s_lshr_b32 s{sT}, s2, 3")
    a(f"s_mul_i32 s{sT+1}, s{sT}, 11")
    a(f"s_lshr_b32 s{sT+1}, s{sT+1}, 5")
    a(f"s_mul_i32 s{sT+2}, s{sT+1}, 3")
    a(f"s_sub_u32 s{sT}, s{sT}, s{sT+2}")
    a(f"s_and_b32 s{sT+2}, s2, 3")
    a(f"s_mul_i32 s{sT+2}, s{sT+2}, 3")
    a(f"s_add_u32 s{sSL}, s{sT}, s{sT+2}")
    a(f"s_bfe_u32 s{sT}, s2, 0x10002")
    a(f"s_lshl_b32 s{sT}, s{sT}, 3")
    a(f"s_add_u32 s{sMT}, s{sT}, s{sT+1}")
    a(f"s_and_b32 s{sMG}, s{sW}, 3")
    a(f"s_lshr_b32 s{sPH}, s{sW}, 2")
    a(f"v_lshrrev_b32 v{r8}, 3, v{lane}")
    a(f"v_and_b32 v{u8}, 7, v{lane}")
    a(f"s_lshl_b32 s{sT+1}, s{sMG}, 5")
    a(f"s_lshl_b32 s{sT+2}, s{sPH}, 3")
    a(f"s_add_u32 s{sT+1}, s{sT+1}, s{sT+2}")
    a(f"s_lshl_b32 s{sT}, s{sMT}, 7")
    a(f"s_add_u32 s{sT}, s{sT}, s{sT+1}")
    vXO = T0 + 5
    a(f"v_add_u32 v{vXO}, s{sT}, v{r8}")
    a(f"v_mul_u32_u24 v{vXO}, 1152, v{vXO}")
    a(f"v_lshl_add_u32 v{vXO}, v{u8}, 4, v{vXO}")
    a(f"s_and_b32 s4, s{sSL}, {1 if opt.get('flip', 1) else 0}")
    a(f"s_mul_i32 s{sXR0}, s4, 18432")
    a(f"s_sub_u32 s{sXR1}, 18432, s{sXR0}")
    a("s_waitcnt lgkmcnt(0)")
    srd2(a, sX, XBYTES)
    RAW = [144, 180]
    def x_load(rho, j):
        so = f"s{sXR0}" if rho == 0 else f"s{sXR1}"
        return dict(i=f"buffer_load_dwordx4 {v(RAW[rho]+4*j,4)}, v{vXO}, {s(sX,4)}, {so} offen offset:{128*j}", vm=("x", rho, j))
    for j in range(9): E.one(x_load(0, j))
    ST.stamp("x0 issued")
    srd2(a, sW1, WBYTES); srd2(a, sA, F * 2); srd2(a, sW2, WBYTES); srd2(a, sWS, WS_END); srd2(a, sDBG, 256)
    a(f"s_mul_i32 s{sFB2}, s{sSL}, 768")
    a(f"s_mul_i32 s{sW2A}, s{sSL}, {384*1152}")
    a(f"s_lshl_b32 s{sM0G}, s{sMG}, 10")
    a(f"s_mov_b32 s{sONES}, 0x3f803f80")
    a(f"v_lshlrev_b32 v{vL16}, 4, v{lane}")
    t1, t2 = T0 + 8, T0 + 9
    a(f"s_lshl_b32 s{sT}, s{sMG}, 3")
    a(f"v_add_u32 v{t2}, s{sT}, v{r8}")
    a(f"v_mul_u32_u24 v{vW1}, 9216, v{t2}")
    a(f"v_bfe_u32 v{t1}, v{r8}, 1, 1")
    a(f"s_and_b32 s{sT}, s{sW}, 1")
    a(f"s_lshl_b32 s{sT}, s{sT}, 1")
    a(f"v_or_b32 v{t1}, s{sT}, v{t1}")
    a(f"v_lshlrev_b32 v{t1}, 1, v{t1}")
    a(f"v_xor_b32 v{t1}, v{t1}, v{u8}")
    a(f"v_lshl_add_u32 v{vW1}, v{t1}, 4, v{vW1}")
    a(f"v_mul_u32_u24 v{vW2}, 1152, v{t2}")
    a(f"v_and_b32 v{t1}, 6, v{r8}")
    a(f"v_xor_b32 v{t1}, v{t1}, v{u8}")
    a(f"v_lshl_add_u32 v{vW2}, v{t1}, 4, v{vW2}")
    vBE, vBV = T0 + 6, T0 + 7
    a(f"v_lshlrev_b32 v{vBE}, 1, v0")
    g4, rp, c4, fsw = T0 + 10, T0 + 11, T0 + 12, T0 + 13
    a(f"v_lshrrev_b32 v{g4}, 4, v{lane}")
    a(f"v_bfe_u32 v{rp}, v{lane}, 2, 2")
    a(f"v_and_b32 v{c4}, 3, v{lane}")
    a(f"v_lshrrev_b32 v{t1}, 1, v{rp}")
    a(f"v_and_b32 v{t2}, 1, v{g4}")
    a(f"v_lshl_or_b32 v{fsw}, v{t2}, 1, v{t1}")
    a(f"s_lshl_b32 s{sT}, s{sPH}, 1")
    a(f"v_xor_b32 v{t1}, s{sT}, v{fsw}")
    a(f"v_lshlrev_b32 v{t1}, 5, v{t1}")
    a(f"v_lshl_add_u32 v{t1}, v{g4}, 10, v{t1}")
    a(f"v_lshl_add_u32 v{t1}, v{rp}, 7, v{t1}")
    a(f"v_lshl_add_u32 v{RA[0]}, v{c4}, 3, v{t1}")
    a(f"v_xor_b32 v{RA[1]}, 32, v{RA[0]}")
    a(f"v_add_u32 v{RA[3]}, 0x8000, v{RA[1]}")
    a(f"v_add_u32 v{RA[2]}, 0x8000, v{RA[0]}")
    a(f"s_lshr_b32 s{sT}, s{sW}, 1")
    a(f"v_xor_b32 v{t1}, s{sT}, v{fsw}")
    a(f"v_lshlrev_b32 v{t1}, 5, v{t1}")
    a(f"v_lshl_add_u32 v{t1}, v{g4}, 9, v{t1}")
    a(f"v_lshl_add_u32 v{t1}, v{rp}, 7, v{t1}")
    a(f"v_lshl_add_u32 v{vRB}, v{c4}, 3, v{t1}")
    a(f"s_lshl_b32 s{sT}, s{sPH}, 7")
    a(f"s_add_u32 s{sT}, s{sT}, {BIAS}")
    a(f"v_lshl_add_u32 v{vBIAS}, v{g4}, 4, s{sT}")
    a(f"s_lshl_b32 s{sT}, s{sMG}, 11")
    a(f"s_add_u32 s{sT}, s{sT}, {ACT}")
    a(f"v_add_u32 v{vACTW}, s{sT}, v{vL16}")
    a(f"s_mul_i32 s{sT}, s{sMG}, 18432")
    a(f"s_add_u32 s{sT}, s{sT}, {ACT}")
    vXW = T0 + 14
    a(f"s_lshl_b32 s{sT+1}, s{sPH}, 3")
    a(f"v_add_u32 v{t1}, s{sT+1}, v{r8}")
    a(f"v_xor_b32 v{t1}, v{t1}, v{u8}")
    a(f"v_lshlrev_b32 v{t1}, 4, v{t1}")
    a(f"v_lshl_add_u32 v{t1}, v{u8}, 8, v{t1}")
    a(f"v_add_u32 v{vXW}, s{sT}, v{t1}")
    vXR0, vXR1 = T0 + 15, T0 + 8
    a(f"v_and_b32 v{t2}, 15, v{lane}")
    a(f"v_xor_b32 v{t2}, v{t2}, v{g4}")
    a(f"v_lshlrev_b32 v{t2}, 4, v{t2}")
    a(f"v_lshl_add_u32 v{t2}, v{g4}, 8, v{t2}")
    a(f"v_add_u32 v{vXR0}, s{sT}, v{t2}")
    a(f"v_xor_b32 v{vXR1}, 64, v{vXR0}")
    a(f"s_mul_i32 s{sT+2}, s{sSL}, {PSL}")
    a(f"s_lshl_b32 s{sT}, s{sMT}, 2")
    a(f"s_and_b32 s{sT+1}, s{sW}, 1")
    a(f"s_lshl_b32 s{sT+1}, s{sT+1}, 1")
    a(f"s_add_u32 s{sT}, s{sT}, s{sT+1}")
    a(f"s_mul_i32 s{sT}, s{sT}, {PTB}")
    a(f"s_add_u32 s{sT+2}, s{sT+2}, s{sT}")
    a(f"s_lshr_b32 s{sT}, s{sW}, 1")
    a(f"s_lshl_b32 s{sT}, s{sT}, 10")
    a(f"s_add_u32 s{sT+2}, s{sT+2}, s{sT}")
    a(f"s_lshl_b32 s{sT}, s4, 8")
    a(f"v_xor_b32 v{vST}, s{sT}, v{vL16}")
    a(f"v_add_u32 v{vST}, s{sT+2}, v{vST}")
    a(f"s_lshl_b32 s{sT}, s{sMT}, 9")
    a(f"s_lshl_b32 s{sT+1}, s{sSL}, 3")
    a(f"s_add_u32 s{sT}, s{sT}, s{sT+1}")
    a(f"s_add_u32 s{sT}, s{sT}, {WS_PF2}")
    a(f"s_cmp_eq_u32 s{sW}, 4")
    a(f"s_cselect_b32 s{sPFA}, s{sT}, {OOB}")

    A_, C_ = TM + 8, TM + 10
    def ln_stats(rho):
        o = []
        R = RAW[rho]
        s0, s1, q0, q1 = TM, TM + 1, TM + 2, TM + 3
        o += [f"v_mov_b32 v{s0}, 0", f"v_mov_b32 v{s1}, 0", f"v_mov_b32 v{q0}, 0", f"v_mov_b32 v{q1}, 0"]
        for j in range(9):
            for k in range(4):
                r = R + 4 * j + k
                o.append(dict(i=f"v_dot2c_f32_bf16 v{(s0, s1)[k & 1]}, s{sONES}, v{r}", needv=[("x", rho, j)]))
                o.append(f"v_dot2c_f32_bf16 v{(q0, q1)[k & 1]}, v{r}, v{r}")
        o += ["s_nop 2", f"v_add_f32 v{s0}, v{s0}, v{s1}", f"v_add_f32 v{q0}, v{q0}, v{q1}", "s_nop 0"]
        for dpp in ("quad_perm:[1,0,3,2]", "quad_perm:[2,3,0,1]", "row_half_mirror"):
            o += [f"v_add_f32_dpp v{s1}, v{s0}, v{s0} {dpp} row_mask:0xf bank_mask:0xf",
                  f"v_add_f32_dpp v{q1}, v{q0}, v{q0} {dpp} row_mask:0xf bank_mask:0xf", "s_nop 0"]
            s0, s1, q0, q1 = s1, s0, q1, q0
        mean, var, mb, rs = TM + 4, TM + 5, TM + 6, TM + 7
        o += stats_math(s0, q0, mean, var, mb, rs)
        o += [f"v_mul_f32 v{A_}, {f32(LOG2E)}, v{rs}", f"v_mul_f32 v{C_}, v{mb}, v{A_}"]
        return o
    def ln_norm(rho):
        o = []
        R = RAW[rho]
        tp = [T0 + 10, T0 + 12]
        for j in range(9):
            for k in range(0, 4, 2):
                for kk in range(2):
                    r = R + 4 * j + k + kk; t = tp[kk]
                    o += [f"v_lshlrev_b32 v{t}, 16, v{r}", f"v_and_b32 v{t+1}, 0xffff0000, v{r}"]
                for kk in range(2):
                    t = tp[kk]
                    o.append(f"v_pk_fma_f32 {v(t,2)}, {v(t,2)}, {v(A_,2)}, {v(C_,2)} op_sel_hi:[1,0,0] neg_lo:[0,0,1] neg_hi:[0,0,1]")
                for kk in range(2):
                    r = R + 4 * j + k + kk; t = tp[kk]
                    o.append(f"v_cvt_pk_bf16_f32 v{r}, v{t}, v{t+1}")
            o.append(dict(i=f"ds_write_b128 v{vXW}, {v(R+4*j,4)} offset:{j*2048}", lds="xw"))
        return o
    def xn_read(rho, ks):
        return dict(i=f"ds_read_b128 {v(XF(rho,ks),4)}, v{(vXR0, vXR1)[ks & 1]} offset:{ks*1024}", lds=("xf", rho, ks))
    NT = 6; NS1 = 3 * NT; NU = 9 * NT; NG = 18 * NT
    def w1_unit(U, hi):
        T, gam = divmod(U, 9)
        return [f"s_add_u32 m0, s{sM0G}, {RING + gam * 8192 + hi * 4096}",
                f"s_add_u32 s{sOFF}, s{sFB2}, {(gam * 64 + hi * 32) * 9216 + T * 128}",
                dict(i=f"buffer_load_dwordx4 v{vW1}, {s(sW1,4)}, s{sOFF} offen lds", vm=("w1", (U - 1) // 3))]
    def units_of(sg): return range(max(0, 3 * sg + 1), min(NU, 3 * sg + 4))
    def frag(g, aa): return FR + ((g % 4) * 2 + aa) * 4
    def greads(g):
        if g >= NG: return []
        T, ks = divmod(g, 18)
        o = []
        for aa in range(2):
            f = frag(g, aa); hi = ks >= 8
            off = RING + ks * 4096 - (0x8000 if hi else 0)
            for nu in range(2):
                o.append(dict(i=f"ds_read_b64_tr_b16 {v(f+2*nu,2)}, v{RA[aa + 2*hi]} offset:{off + nu*512}", lds=("A", g, aa)))
        return o
    def bias_reads(T):
        return [dict(i=f"ds_read_b128 {v(BI+4*aa,4)}, v{vBIAS} offset:{T*256 + aa*64}", lds=("B", T)) for aa in range(2)]
    vACTH, vAR, vARH = 243, 240, 241
    def mish_tile(T, ph):
        o = []
        p = POS(2 * T + ph)
        for mt16 in range(2):
            for aa in range(2):
                o += mish_group(PEND + (aa * 2 + mt16) * 4, AO + mt16 * 4 + aa * 2, TM)
            o.append(dict(i=f"ds_write_b128 v{vACTH if p >= 4 else vACTW}, {v(AO+mt16*4,4)} offset:{mt16*1024 + (p - 4 if p >= 4 else p)*8192}", lds="aw"))
        return o
    def cost(x):
        t = x if isinstance(x, str) else x.get("i", "")
        return 2 if t.startswith(("v_exp", "v_rcp")) else 1 if t.startswith("v_") else 0
    def take(q, budget):
        out = []
        while q and budget > 0:
            budget -= cost(q[0]); out.append(q.pop(0))
        while q and cost(q[0]) == 0: out.append(q.pop(0))
        return out
    def w2_dma(st, ph):
        o = []
        for n in range(6):
            q = 24 * ph + 4 * n
            o.append([f"s_add_u32 m0, s{sM0G}, {(st % 3) * SLOT + q * 1024}",
                      f"s_add_u32 s{sOFF}, s{sW2A}, {q * 8 * 1152 + st * 128}",
                      dict(i=f"buffer_load_dwordx4 v{vW2}, {s(sW2,4)}, s{sOFF} offen lds", vm=("w2", st))])
        return o
    vRBs = [vRB, 228, 229]
    PD2 = 3
    def frag2(g): return FR2 + (g % 5) * 4
    def b_reads(st, i):
        f = frag2(12 * st + i)
        return [dict(i=f"ds_read_b64_tr_b16 {v(f+2*nu,2)}, v{vRBs[st % 3]} offset:{i*4096 + nu*2048}", lds=("W", st, i)) for nu in range(2)]
    def act_reads(kap):
        p = POS(kap)
        return [dict(i=f"ds_read_b128 {v(AFR(mu,kap),4)}, v{vARH if p >= 4 else vAR} offset:{mu*1024 + (p - 4 if p >= 4 else p)*8192}", lds=("act", kap)) for mu in range(4)]
    def epi_valu():
        o = []
        for pr in range(2):
            p = AO + pr * 4
            for mu in range(2):
                src = ACC2 + (pr * 2 + mu) * 4
                o.append(f"v_cvt_pk_bf16_f32 v{p+2*mu}, v{src}, v{src+1}")
                o.append(f"v_cvt_pk_bf16_f32 v{p+2*mu+1}, v{src+2}, v{src+3}")
        o.append("s_nop 0")
        for pr in range(2):
            p = AO + pr * 4
            o.append(f"v_permlane16_swap_b32 v{p}, v{p+2}")
            o.append(f"v_permlane16_swap_b32 v{p+1}, v{p+3}")
        return o
    def epi_store(st):
        o = []
        for pr in range(2):
            o.append(f"s_mov_b32 s{sOFF2}, {pr * PTB + st * 4096}")
            o.append(dict(i=f"buffer_store_dwordx4 {v(AO+pr*4,4)}, v{vST}, {s(sWS,4)}, s{sOFF2} offen sc1", vm=("st", st)))
        return o
    vFA, vFD = 230, 252
    def publish(level):
        return [f"s_add_u32 s{sT}, s{sTAG}, {level}", f"v_mov_b32 v{vFD}, s{sT}",
                dict(i=f"buffer_store_dwordx2 {v(vFD,2)}, v{vFA}, {s(sWS,4)}, 0 offen sc1", vm="pf")]

    def body(ph):
        X = Emit(a); X.lg.q = list(E.lg.q); X.vm.q = list(E.vm.q)
        n0 = ST.n; names0 = list(ST.names)
        def barrier(needl, needv, name=None):
            X.one(dict(needl=needl, needv=needv))
            a("s_barrier")
            if name: ST.stamp(name, X)
        if ph == 1: a("s_setprio 1")
        st0 = ln_stats(0)
        o = st0[:4]
        for j in range(9): o += st0[4 + 8 * j: 12 + 8 * j] + [x_load(1, j)]
        X.run(o + st0[76:])
        ST.stamp("stats0", X)
        bl = [[dict(i=f"buffer_load_ushort v{vBV}, v{vBE}, {s(sA,4)}, s{sFB2} offen", vm="bias")]]
        X.run(spread(ln_norm(0), bl + [w1_unit(U, ph) for U in range(0, 4)]))
        a(f"v_lshlrev_b32 v{vBE}, 2, v0")
        a(f"v_add_u32 v{vBE}, {BIAS}, v{vBE}")
        ST.stamp("norm0", X)
        X.run(spread(ln_stats(1), [w1_unit(U, ph) for U in range(4, 9)]))
        X.one(dict(i=f"v_lshlrev_b32 v{vBV}, 16, v{vBV}", needv=["bias"]))
        a(f"v_mul_f32 v{vBV}, {f32(LOG2E)}, v{vBV}")
        X.one(dict(i=f"ds_write_b32 v{vBE}, v{vBV}", lds="bw"))
        if opt.get("touch1", 1):
            a("v_mul_u32_u24 v1, 13108, v0")
            a("v_lshrrev_b32 v1, 16, v1")
            a("v_mul_u32_u24 v2, 5, v1")
            a("v_sub_u32 v2, v0, v2")
            a("v_mul_u32_u24 v1, 9216, v1")
            a("v_lshl_add_u32 v1, v2, 7, v1")
            a(f"v_mov_b32 v2, {OOB}")
            a("v_cmp_gt_u32 vcc, 360, v0")
            a(f"s_and_b32 s{sT}, s{sMT}, 7")
            a(f"s_mul_i32 s{sT}, s{sT}, {72*9216}")
            a("v_cndmask_b32 v1, v2, v1, vcc")
            a(f"s_add_u32 s{sT}, s{sT}, s{sFB2}")
            X.one(dict(i=f"buffer_load_dword v{vJUNK}, v1, {s(sW1,4)}, s{sT} offen offset:128", vm="t"))
        ST.stamp("stats1", X)
        a(X.lg.drain()); a("s_barrier")
        ST.stamp("barA")
        n1 = ln_norm(1)
        JS = opt.get("js", 4)
        first = [x for x in n1[:17 * JS] if isinstance(x, str)]
        wr = [x for x in n1[:17 * JS] if not isinstance(x, str)]
        X.run(spread(first[:len(first) * 3 // 4], [[xn_read(0, ks)] for ks in range(18)]) + first[len(first) * 3 // 4:])
        a(X.lg.drain()); a("s_barrier")
        X.run(spread(n1[17 * JS:], [[w] for w in wr]))
        a(f"v_add_u32 v{vACTH}, 0x8000, v{vACTW}")
        a(f"s_and_b32 s{sT}, s{sW}, 1")
        a(f"s_lshl_b32 s{sT}, s{sT}, 12")
        a(f"s_add_u32 s{sT}, s{sT}, {ACT}")
        a(f"v_add_u32 v{vAR}, s{sT}, v{vL16}")
        a(f"v_add_u32 v{vARH}, 0x8000, v{vAR}")
        ST.stamp("norm1", X)
        barrier(["xw"], [("w1", -1)], "Bx")
        def burst1(st, bar, extra=()):
            T, t = divmod(st, 3)
            mfs = []
            for kl in range(6):
                ks = 6 * t + kl; g = 18 * T + ks
                for aa in range(2):
                    for mt16 in range(2):
                        acc = ACC + (aa * 2 + mt16) * 4
                        src = v(BI + 4 * aa, 4) if ks == 0 else v(acc, 4)
                        dst = acc if ks < 17 else PEND + (aa * 2 + mt16) * 4
                        nl = [("A", g, 0), ("A", g, 1)]
                        if ks == 0: nl.append(("B", T))
                        if T == 0: nl.append(("xf", mt16, ks))
                        mfs.append((kl, dict(i=f"{M16} {v(dst,4)}, {v(frag(g,aa),4)}, {v(XF(mt16,ks),4)}, {src}", needl=nl)))
            rd = [(kl, r) for kl in range(6) for r in greads(6 * st + 2 + kl)]
            extra = list(extra)
            n = len(mfs)
            nb = opt.get("nb", 2) if ph == 0 else 0
            last = n if ph == 0 else n - opt.get("tail", 3)
            a("s_setprio 0")
            for mi, (kl, m) in enumerate(mfs):
                X.one(m)
                if ph == 0 and mi == nb - 1 and bar: bar()
                if ph == 1 and mi == opt.get("prio_at", 12): a("s_setprio 1")
                if mi >= nb - 1:
                    left = max(1, last - mi)
                    cnt = -(-len(rd) // left)
                    is_last_of_k = (mi + 1 == n) or mfs[mi + 1][0] != kl
                    for _ in range(min(cnt, 2)):
                        if rd and (rd[0][0] - 2 < kl or (rd[0][0] - 2 == kl and is_last_of_k)):
                            X.one(rd.pop(0)[1])
                if extra: X.one(extra.pop(0))
            X.run([r for _, r in rd])
            X.run(extra)
            a(f"s_setprio {opt.get('vprio', 2) if ph == 0 else max(1, opt.get('vprio', 2))}")
        def valu1(items, dmas):
            X.run(spread(items, dmas) if items else flat(dmas))
        xr1 = [xn_read(1, ks) for ks in range(18)]
        X.run(xr1[:3] + bias_reads(0) + greads(0) + greads(1))
        mq = []
        LS = NS1 - 1
        def lastl(sg):
            g = min(NG - 1, 6 * sg + 7)
            return [("A", g, 0), ("A", g, 1), ("xf", 1, 17)] + (["aw", ("act", 2)] if sg == LS - 1 else [])
        for st in range(NS1):
            T, t = divmod(st, 3)
            nm = f"B{st}" if t == 0 else None
            us = [9] if st == 0 else list(units_of(st + 2))
            dm = [w1_unit(U, ph) for U in us]
            bar = lambda: barrier(lastl(st - 1) if st else [("A", 1, 1)], [("w1", st)], nm)
            br = [[r] for r in bias_reads(T + 1)] if (t == 1 and T < NT - 1) else []
            q = st - (LS - 2) - ph
            if 0 <= q < 2: br = br + [[r] for kap in range(3 * q, 3 * q + 3) for r in act_reads(kap)]
            if ph == 1 and st == 1:
                br = br + [[f"v_mov_b32 v{TM}, 0", dict(i=f"buffer_load_dwordx2 {v(vFD,2)}, v{TM}, {s(sDBG,4)}, 0 offen sc1", vm="tg")]]
            if ph == 0:
                burst1(st, bar, xr1[3:] if st == 0 else ())
                if st == LS: break
                fresh = (t == 2)
                if fresh: mq.extend(mish_tile(T, 0))
                items = take(mq, 10 ** 6 if t == 1 else opt.get("bf", 40))
                if fresh and items:
                    for g in dm[:2]: X.run(g)
                    a("s_nop 1" if len(dm) >= 2 else "s_nop 7")
                    dm = dm[2:]
                valu1(items, dm + br)
            else:
                fresh = (t == 0 and st > 0)
                if fresh: mq.extend(mish_tile(T - 1, 1))
                items = take(mq, 10 ** 6 if t == 2 else opt.get("bf", 40))
                if st == 0: items = xr1[3:]
                if fresh and items: a("s_nop 7")
                k = opt.get("k1", 4) if st else 0
                X.run(items[:k])
                bar()
                if st == LS: dm = w2_dma(0, 1)
                valu1(items[k:], dm + br)
                burst1(st, None)
        assert not mq
        for k in (1, 2): a(f"v_add_u32 v{vRBs[k]}, {k*SLOT}, v{vRB}")
        a(f"v_mov_b32 v{vFA+1}, {OOB}")
        a(f"v_lshl_add_u32 v{vFA}, v{vL16}, 3, s{sPFA}")
        a(f"v_cmp_gt_u32 vcc, 64, v{vL16}")
        a("s_nop 1")
        a(f"v_cndmask_b32 v{vFA}, v{vFA+1}, v{vFA}, vcc")
        if ph == 1:
            Lt = a.newlabel("Ltg")
            cond = [f"v_readfirstlane_b32 s{sTAG+1}, v{vFD+1}", f"v_readfirstlane_b32 s{sTAG}, v{vFD}", f"s_cmp_lg_u32 s{sTAG+1}, 0"]
            X.one(dict(needv=["tg"]))
            X.run(cond); a(f"s_cbranch_scc1 {Lt}")
            a(f"v_mov_b32 v{TM}, 0")
            poll(a, [f"buffer_load_dwordx2 {v(vFD,2)}, v{TM}, {s(sDBG,4)}, 0 offen sc1"], cond, "i")
            a.label(Lt)
        a("s_nop 3")
        early = [[r] for kap in range(6, 9) for r in act_reads(kap)]
        if ph == 0: early = w2_dma(0, 0) + early
        mt = mish_tile(NT - 1, ph)
        X.run(spread(mt[:70], early) + mt[70:])
        a(X.lg.drain())
        barrier([], [("w2", 0)], "G2 start")
        late = [r for kap in range(9, 12) for r in act_reads(kap)]
        def burst2(st, embed_barrier, extra=(), xbar=None):
            extra = list(extra)
            a("s_setprio 0")
            for i in range(12):
                nxt = b_reads(st, i + PD2) if i + PD2 < 12 else []
                for mu in range(4):
                    acc = ACC2 + mu * 4
                    src = "0" if i == 0 else v(acc, 4)
                    nl = [("W", st, i)] + ([("act", i)] if st == 0 else [])
                    X.one(dict(i=f"{M16} {v(acc,4)}, {v(frag2(12*st+i),4)}, {v(AFR(mu,i),4)}, {src}", needl=nl))
                    if nxt and mu % 2 == 0: X.one(nxt.pop(0))
                    elif extra: X.one(extra.pop(0))
                    if xbar and i == 7 and mu == 3: xbar()
                    if embed_barrier and i == 12 - PD2 + 1 and mu == 0:
                        a("s_setprio 1")
                        embed_barrier()
            a("s_setprio 2")
            assert not extra
        def pre2(st): return [r for i in range(PD2) for r in b_reads(st, i)]
        LAG = opt.get("lag", 0)
        for st in range(9):
            nxtv = ([("w2", st + 1)] if st < 8 else []) + [("st", st - LAG - 1 + 0)]
            lastw = [("W", st, 11)]
            dm = w2_dma(st + 2, ph) if st + 2 <= 8 else []
            nm = f"G2 B{st+1}" if (st % 2 == 1 or opt.get("allg2")) else None
            def vphase(est):
                d = list(dm)
                for g in d[:2]: X.run(g)
                if len(d) < 2: a("s_nop 7")
                valu1(epi_valu(), d[2:])
                X.run(epi_store(est))
            xb = lambda: barrier([("act", 11)], [])
            if ph == 0:
                X.run(pre2(st))
                if st == 0: X.run(flat(w2_dma(1, 0)))
                burst2(st, None, late if st == 0 else (), xb if st == 0 else None)
                vphase(st)
                if st < 8: barrier(lastw, nxtv, nm)
            else:
                if st == 0:
                    valu1(late, w2_dma(1, 1))
                    xb()
                    X.run(flat(dm))
                else:
                    lvl = st - 1 - LAG
                    vphase(st - 1)
                    if lvl in opt.get("levels", (1, 2, 3, 4, 5, 6)): X.run(publish(lvl))
                X.run(pre2(st))
                burst2(st, (lambda: barrier(lastw, nxtv, nm)) if st < 8 else None)
        if ph == 1:
            dm = []
            vphase(8)
        ST.stamp("G2 end", X)
        if ph == 0: a(f"s_branch {Lfin}")
        if ph == 1: return
        ST.n = n0; ST.names = names0
    Lp1 = a.newlabel("Lph1")
    a(f"s_cmp_lg_u32 s{sPH}, 0")
    a(f"s_cbranch_scc1 {Lp1}")
    Lfin = a.newlabel("Lfin")
    body(0)
    a.label(Lp1)
    body(1)
    a.label(Lfin)
    a("s_setprio 0")
    a(f"s_load_dwordx2 s[{sW1}:{sW1+1}], s[0:1], 80")
    a(f"v_lshrrev_b32 v40, 9, v{vL16}")
    a(f"v_mul_u32_u24 v41, {PSL - 512}, v40")
    a(f"v_add_u32 v41, v41, v{vL16}")
    a(f"s_lshl_b32 s{sT}, s{sMT}, 2")
    a(f"s_add_u32 s{sT}, s{sT}, s{sMG}")
    a(f"s_mul_i32 s{sT+3}, s{sT}, {PTB}")
    a(f"s_mul_i32 s{sT}, s{sT}, 36864")
    a(f"s_lshl_b32 s{sT+1}, s{sSL}, 1")
    a(f"s_add_u32 s{sT+1}, s{sT+1}, s{sPH}")
    a(f"s_add_u32 s{sT+1}, s{sT+1}, 48")
    a(f"s_lshl_b32 s{sT+2}, s{sT+1}, 9")
    a(f"s_add_u32 s{sT+2}, s{sT+2}, s{sT+3}")
    a(f"v_add_u32 v41, s{sT+2}, v41")
    a(f"v_mov_b32 v43, {OOB}")
    a(f"v_cmp_gt_u32 vcc, 512, v{vL16}")
    a(f"v_mul_u32_u24 v44, 72, v{vL16}")
    a(f"s_lshl_b32 s{sT+1}, s{sT+1}, 4")
    a(f"s_add_u32 s{sT+1}, s{sT+1}, s{sT}")
    a(f"v_add_u32 v44, s{sT+1}, v44")
    a("v_cndmask_b32 v42, v43, v41, vcc")
    a("v_cndmask_b32 v44, v43, v44, vcc")
    a(f"s_lshl_b32 s{sT}, s{sMT}, 7")
    a(f"s_add_u32 s{sT}, s{sT}, {WS_PF}")
    a(f"v_bfe_u32 v45, v{vL16}, 4, 4")
    a(f"v_lshl_add_u32 v45, v45, 3, s{sT}")
    for k in range(8): a(f"v_mov_b32 v{48+k}, 0")
    a("s_mov_b32 s66, 0x00003f80")
    a("s_mov_b32 s67, 0x3f800000")
    a("s_waitcnt vmcnt(0) lgkmcnt(0)")
    a("s_barrier")
    srd2(a, sW1, XBYTES)
    Lq = a.newlabel("Lq")
    a(f"s_cmp_lg_u32 s{sW}, 4")
    a(f"s_cbranch_scc1 {Lq}")
    a(f"v_lshrrev_b32 v46, 4, v{vL16}")
    a(f"v_cmp_eq_u32 vcc, s{sSL}, v46")
    a(f"v_mov_b32 v{vFD}, s{sTAG}")
    a("s_nop 0")
    a("v_cndmask_b32 v46, v43, v45, vcc")
    a(f"buffer_store_dwordx2 {v(vFD,2)}, v46, {s(sWS,4)}, 0 offen sc1")
    poll(a, [f"buffer_load_dwordx2 v[46:47], v45, {s(sWS,4)}, 0 offen sc1"], k7h.flag_cond([46], 0), "f", opt.get("fsleep", 6))
    a.label(Lq)
    a("s_barrier")
    ST.stamp("all seen")
    for i in range(6):
        a(f"s_mov_b32 s{sOFF}, {2 * i * PSL}")
        a(f"buffer_load_dwordx4 {v(4*i,4)}, v41, {s(sWS,4)}, s{sOFF} offen sc1")
    a(f"s_mov_b32 s{sOFF}, {12 * PSL}")
    a(f"buffer_load_dwordx4 v[24:27], v42, {s(sWS,4)}, s{sOFF} offen sc1")
    for i in range(6):
        a(f"s_waitcnt vmcnt({6-i})")
        for k in range(4):
            a(f"v_dot2c_f32_bf16 v{48+2*k}, s66, v{4*i+k}")
            a(f"v_dot2c_f32_bf16 v{49+2*k}, s67, v{4*i+k}")
    a(f"s_mov_b32 s{sT}, {f32(LN2)}")
    a("s_nop 1")
    for k in range(8): a(f"v_mov_b32 v{56+k}, v{48+k}")
    for k in range(8): a(f"v_permlane32_swap_b32 v{48+k}, v{56+k}")
    for k in range(8): a(f"v_add_f32 v{48+k}, v{48+k}, v{56+k}")
    a("s_waitcnt vmcnt(0)")
    for k in range(4):
        a(f"v_lshlrev_b32 v{56+2*k}, 16, v{24+k}")
        a(f"v_and_b32 v{57+2*k}, 0xffff0000, v{24+k}")
    for k in range(8): a(f"v_fmac_f32 v{56+k}, s{sT}, v{48+k}")
    for k in range(4): a(f"v_cvt_pk_bf16_f32 v{28+k}, v{56+2*k}, v{57+2*k}")
    a(f"buffer_store_dwordx4 v[28:31], v44, {s(sW1,4)}, 0 offen")
    if opt.get("stamps"): a("s_waitcnt vmcnt(0)")
    ST.stamp("end"); ST.cyc(1)
    ST.flush(sWS, sW)
    a("s_endpgm")
    a.label(Lhelp)
    k7h.helper(a, opt, Lend)
    a.label(Lend)
    a("s_endpgm")
```

```python
from common import *
from k_mlp import Emit, M16

KB = 0; KCH = 8448; KC1 = 4096 + 128
UB = 9 * 8448; UCH = 9216; UCP = 4576
STB = 159744
WS_UF = WS_ZF + 1536
sX, sK, sV, sWS, sSK, sKF, sDD, sOUT, sDBG = 8, 12, 16, 20, 24, 40, 44, 48, 52
sH, sW, sMG, sPH, sQ, sKC, sZO, sI = 28, 30, 31, 32, 33, 34, 35, 36
sT = 56; sEX = 60; sOFF = 62
sCNT, sTAG = 5, 6
OOB = "0x7ffffff0"
vL16, vLN, vT16 = 239, 241, 238
NSL = 12

def flag_cond(regs, level):
    lv = level if isinstance(level, str) else str(level)
    o = [f"s_add_u32 s{sT+3}, s{sTAG}, {lv}"]
    for r in regs:
        o += [f"v_subrev_u32 v{r}, s{sT+3}, v{r}", f"v_xor_b32 v{r+1}, s{sTAG+1}, v{r+1}", f"v_lshrrev_b32 v{r}, 4, v{r}", f"v_or_b32 v{r}, v{r}, v{r+1}"]
    for r in regs[1:]: o.append(f"v_or_b32 v{regs[0]}, v{regs[0]}, v{r}")
    return o + [f"v_cmp_ne_u32 vcc, 0, v{regs[0]}", "s_cmp_eq_u64 vcc, 0"]

def helper(a, opt, Lend):
    from k7 import srd2, poll, stats_math
    ST = Stamps(a, opt.get("stamps"), 1)
    ST.n = 1; ST.names = ["start"]
    for d, off in ((sX, 0), (sK, 8), (sV, 16), (sSK, 24), (sKF, 32), (sDD, 40), (sOUT, 80), (sDBG, 88), (sWS, 96)):
        a(f"s_load_dwordx2 s[{d}:{d+1}], s[0:1], {off}")
    a("v_lshrrev_b32 v1, 6, v0")
    a(f"v_and_b32 v{vLN}, 63, v0")
    a(f"v_readfirstlane_b32 s{sW}, v1")
    a(f"s_sub_u32 s{sH}, s2, 192")
    a(f"v_lshlrev_b32 v{vL16}, 4, v{vLN}")
    a(f"v_lshlrev_b32 v{vT16}, 4, v0")
    a(f"s_and_b32 s{sMG}, s{sW}, 3")
    a(f"s_lshr_b32 s{sPH}, s{sW}, 2")
    a("s_waitcnt lgkmcnt(0)")
    srd2(a, sDBG, 256); srd2(a, sK, XBYTES); srd2(a, sV, XBYTES); srd2(a, sX, XBYTES); srd2(a, sWS, WS_END)
    srd2(a, sSK, 576 * 8); srd2(a, sKF, XBYTES); srd2(a, sDD, 576 * 2); srd2(a, sOUT, XBYTES)
    def one_lane_flag(addr_sgpr, level=0):
        a(f"v_mov_b32 v1, {OOB}")
        a(f"s_add_u32 s{sT+3}, s{sTAG}, {level}")
        a(f"v_mov_b32 v2, s{sT+3}")
        a(f"v_mov_b32 v3, s{sTAG+1}")
        a(f"v_writelane_b32 v1, s{addr_sgpr}, 0")
        a(f"buffer_store_dwordx2 v[2:3], v1, {s(sWS,4)}, 0 offen sc1")
    Lr = a.newlabel("Ltag")
    a(f"s_lshl_b32 s{sT}, s{sH}, 3")
    a(f"s_add_u32 s{sT}, s{sT}, s{sW}")
    a(f"s_cmp_lg_u32 s{sT}, 7")
    a(f"s_cbranch_scc1 {Lr}")
    a(f"s_memrealtime s[{sT}:{sT+1}]")
    a(f"v_mov_b32 v1, {OOB}")
    a("v_writelane_b32 v1, 0, 0")
    a("s_waitcnt lgkmcnt(0)")
    a(f"s_lshl_b64 s[{sT}:{sT+1}], s[{sT}:{sT+1}], 4")
    a(f"s_bitset1_b32 s{sT+1}, 31")
    a(f"v_mov_b32 v2, s{sT}")
    a(f"v_mov_b32 v3, s{sT+1}")
    a(f"buffer_store_dwordx2 v[2:3], v1, {s(sDBG,4)}, 0 offen sc1")
    a.label(Lr)
    if opt.get("ctouch", 1):
        Lc = a.newlabel("Lct")
        a(f"s_cmp_lg_u32 s{sW}, 6")
        a(f"s_cbranch_scc1 {Lc}")
        a(f"s_getpc_b64 s[{sT}:{sT+1}]")
        Lh = a.newlabel("Lhere"); a.label(Lh)
        a(f"s_sub_u32 s{sT}, s{sT}, {Lh}-{opt['kname']}")
        a(f"s_subb_u32 s{sT+1}, s{sT+1}, 0")
        a(f"s_lshr_b32 s{sT+2}, s{sH}, 3")
        a(f"s_lshl_b32 s{sT+2}, s{sT+2}, 13")
        a(f"v_lshl_add_u32 v4, v{vLN}, 7, s{sT+2}")
        a(f"v_add_u32 v5, 0x10000, v4")
        a(f"v_min_u32 v4, {Lend}-{opt['kname']}, v4")
        a(f"v_min_u32 v5, {Lend}-{opt['kname']}, v5")
        a(f"global_load_dword v140, v4, s[{sT}:{sT+1}]")
        a(f"global_load_dword v140, v5, s[{sT}:{sT+1}]")
        a.label(Lc)
    KL, VL, SL_, BN, XL = 0, 41984, 80896, 86016, 118784
    a(f"s_mul_i32 s{sT}, s{sH}, 36864")
    a(f"s_sub_u32 s{sT+1}, s{sT}, 4608")
    a(f"v_add_u32 v4, s{sT+1}, v{vT16}")
    a(f"s_sub_u32 s{sT+1}, s{sT}, 1152")
    a(f"v_add_u32 v5, s{sT+1}, v{vT16}")
    a(f"s_lshl_b32 s{sT+2}, s{sW}, 10")
    def dma(vaddr, srd_, lds, nwaves=8, so="0"):
        L = None
        if nwaves < 8:
            L = a.newlabel("Ld"); a(f"s_cmp_ge_u32 s{sW}, {nwaves}"); a(f"s_cbranch_scc1 {L}")
        a(f"s_add_u32 m0, s{sT+2}, {lds}")
        a("s_nop 0")
        a(f"buffer_load_dwordx4 v{vaddr}, {s(srd_,4)}, {so} offen lds")
        if L: a.label(L)
    for i in range(6):
        dma(4, sK, KL + i * 8192, 8 if i < 5 else 1)
        a("v_add_u32 v4, 8192, v4")
        if i < 5:
            dma(5, sV, VL + i * 8192, 8 if i < 4 else 6)
            a("v_add_u32 v5, 8192, v5")
    dma(vT16, sSK, SL_, 5)
    a("v_mov_b32 v4, 0")
    KR, VR, KU, WU, UU, OUT, SKR = 12, 24, 34, 58, 66, 84, 8
    vKA, vBW, vBR, vSA, vID = 116, 117, 118, 119, 120
    a(f"s_lshl_b32 s{sT}, s{sW}, 12")
    a(f"s_add_u32 s{sT+1}, s{sT}, {BN}")
    a(f"v_lshl_add_u32 v{vBW}, v{vL16}, 2, s{sT+1}")
    a(f"v_add_u32 v{vBR}, s{sT+1}, v{vL16}")
    a(f"s_lshl_b32 s{sT+1}, s{sH}, 2")
    a(f"s_sub_u32 s{sT+1}, 252, s{sT+1}")
    a(f"s_mul_i32 s{sT+1}, s{sT+1}, 18432")
    a(f"s_add_u32 s{sOFF}, s{sT}, s{sT+1}")
    a(f"s_add_u32 s{sOFF}, s{sOFF}, {WS_U}")
    a(f"v_mov_b32 v{vID}, v0")
    a(f"s_mov_b32 s{sI}, s{sW}")
    a("s_movk_i32 s63, 3641")
    a("s_waitcnt vmcnt(0)")
    a("s_barrier")
    ST.stamp("in landed")
    a(f"buffer_load_dwordx2 v[6:7], v4, {s(sDBG,4)}, 0 offen sc1")
    a(f"s_mul_i32 s64, s{sH}, 36864")
    a(f"s_lshl_b32 s{sT+2}, s{sW}, 10")
    for i in range(5):
        dma(vT16, sX, XL + i * 8192, 8 if i < 4 else 4, "s64")
        a("s_add_u32 s64, s64, 8192")
    if opt.get("kft", 0):
        a(f"v_lshlrev_b32 v122, 2, v{vT16}")
        a(f"s_lshl_b32 s64, s{sH}, 15")
        a(f"buffer_load_dword v123, v122, {s(sKF,4)}, s64 offen")
    a(f"v_mov_b32 v2, 0"); a("v_mov_b32 v3, 0")
    a(f"v_lshrrev_b32 v121, 1, v{vL16}")
    a(f"v_add_u32 v121, {STB}, v121")
    a("ds_write_b64 v121, v[2:3]")
    Lp = a.newlabel("Lprep"); a.label(Lp)
    a(f"v_mul_u32_u24 v2, s63, v{vID}")
    a("v_lshrrev_b32 v2, 20, v2")
    a("v_mul_u32_u24 v3, 288, v2")
    a(f"v_sub_u32 v3, v{vID}, v3")
    a("v_sub_u32 v2, 3, v2")
    a(f"v_mul_u32_u24 v{vKA}, 9216, v2")
    a(f"v_lshl_add_u32 v{vKA}, v3, 2, v{vKA}")
    a(f"v_lshlrev_b32 v{vSA}, 4, v3")
    a(f"v_add_u32 v{vSA}, {SL_}, v{vSA}")
    a(f"ds_read_b128 {v(SKR,4)}, v{vSA}")
    for r in range(12): a(f"ds_read_b32 v{KR+r}, v{vKA} offset:{KL + r*1152}")
    a("s_waitcnt lgkmcnt(6)")
    for r in range(9): a(f"ds_read_b32 v{VR+r}, v{vKA} offset:{VL + r*1152}")
    for j in range(4):
        for h in range(2):
            src = SKR + 2 * h + (j >> 1)
            a(f"v_lshlrev_b32 v{WU+2*j+h}, 16, v{src}" if j % 2 == 0 else f"v_and_b32 v{WU+2*j+h}, 0xffff0000, v{src}")
    a("s_waitcnt lgkmcnt(9)")
    for r in range(12):
        a(f"v_lshlrev_b32 v{KU+2*r}, 16, v{KR+r}")
        a(f"v_and_b32 v{KU+2*r+1}, 0xffff0000, v{KR+r}")
    for r in range(9): a(f"v_pk_mul_f32 {v(UU+2*r,2)}, {v(KU+2*r,2)}, {v(WU+6,2)}")
    for j in range(1, 4):
        for r in range(9): a(f"v_pk_fma_f32 {v(UU+2*r,2)}, {v(KU+2*(r+j),2)}, {v(WU+2*(3-j),2)}, {v(UU+2*r,2)}")
    a("s_waitcnt lgkmcnt(0)")
    for r in range(9):
        a(f"v_lshlrev_b32 v{KU+2*r}, 16, v{VR+r}")
        a(f"v_and_b32 v{KU+2*r+1}, 0xffff0000, v{VR+r}")
    for r in range(9): a(f"v_pk_mul_f32 {v(UU+2*r,2)}, {v(UU+2*r,2)}, {v(KU+2*r,2)}")
    for h in range(2):
        for cp in range(2):
            o = OUT + (h * 2 + cp) * 4
            for i in range(4):
                top = 7 + cp - 2 * i
                a(f"v_cvt_pk_bf16_f32 v{o+i}, v{UU+2*top+h}, v{UU+2*(top-1)+h}")
            a(f"ds_write_b128 v{vBW}, {v(o,4)} offset:{(h*2+cp)*16}")
    for k in range(4): a(f"ds_read_b128 {v(100+4*k,4)}, v{vBR} offset:{k*1024}")
    a(f"v_add_u32 v{vID}, 512, v{vID}")
    for k in range(4):
        a(f"s_waitcnt lgkmcnt({3-k})")
        a(f"buffer_store_dwordx4 {v(100+4*k,4)}, v{vL16}, {s(sWS,4)}, s{sOFF} offen offset:{k*1024} sc1")
    a(f"s_add_u32 s{sOFF}, s{sOFF}, 32768")
    a(f"s_add_u32 s{sI}, s{sI}, 8")
    a(f"s_cmp_lt_u32 s{sI}, 18")
    a(f"s_cbranch_scc1 {Lp}")
    ST.stamp("prep done")
    tcond = [f"v_readfirstlane_b32 s{sTAG+1}, v7", f"v_readfirstlane_b32 s{sTAG}, v6", f"s_cmp_lg_u32 s{sTAG+1}, 0"]
    Ltg = a.newlabel("Ltg")
    a("s_waitcnt vmcnt(0)")
    for l in tcond: a(l)
    a(f"s_cbranch_scc1 {Ltg}")
    poll(a, [f"buffer_load_dwordx2 v[6:7], v4, {s(sDBG,4)}, 0 offen sc1"], tcond, "t")
    a.label(Ltg)
    a("s_waitcnt vmcnt(0)")
    a(f"s_load_dwordx2 s[{sK}:{sK+1}], s[0:1], 72")
    a("s_waitcnt lgkmcnt(0)")
    a("s_barrier")
    srd2(a, sK, WBYTES)
    L1 = a.newlabel("Lf")
    a(f"s_cmp_lg_u32 s{sW}, 0")
    a(f"s_cbranch_scc1 {L1}")
    a(f"s_lshl_b32 s{sT}, s{sH}, 3")
    a(f"s_add_u32 s{sT}, s{sT}, {WS_UF}")
    one_lane_flag(sT)
    a.label(L1)
    ST.stamp("U published")
    XR = 200; vXO, vXO4, vSB, SS = 236, 237, 235, 232
    a(f"v_and_b32 v6, 7, v{vLN}")
    a(f"s_lshl_b32 s{sT}, s{sMG}, 3")
    a(f"v_add_u32 v6, s{sT}, v6")
    a(f"v_lshlrev_b32 v{vSB}, 3, v6")
    a(f"v_add_u32 v{vSB}, {STB}, v{vSB}")
    a(f"v_mul_u32_u24 v{vXO}, 1152, v6")
    a(f"v_bfe_u32 v7, v{vLN}, 3, 2")
    a(f"v_lshl_add_u32 v{vXO}, v7, 4, v{vXO}")
    a(f"v_lshrrev_b32 v7, 5, v{vLN}")
    a(f"v_lshl_add_u32 v{vXO}, v7, 7, v{vXO}")
    a(f"s_lshl_b32 s{sT}, s{sPH}, 6")
    a(f"v_add_u32 v{vXO}, s{sT}, v{vXO}")
    a(f"v_add_u32 v8, {XL}, v{vXO}")
    for q in range(5): a(f"ds_read_b128 {v(XR+4*q,4)}, v8 offset:{q*256}")
    a(f"s_mul_i32 s{sT}, s{sH}, 36864")
    a(f"v_add_u32 v9, s{sT}, v{vXO}")
    a(f"v_mov_b32 v7, {OOB}")
    a(f"v_cmp_gt_u32 vcc, 32, v{vLN}")
    a("s_mov_b32 s66, 0x3f803f80")
    for k in range(4): a(f"v_mov_b32 v{12+k}, 0")
    a(f"v_cndmask_b32 v{vXO}, v7, v9, vcc")
    a(f"v_cndmask_b32 v{vXO4}, v9, v7, vcc")
    a("s_waitcnt lgkmcnt(0)")
    a("s_barrier")
    for k in range(4): a(f"v_cndmask_b32 v{XR+16+k}, 0, v{XR+16+k}, vcc")
    CA = 0
    QUADS = list(range(32, 160, 4))
    UL = 160
    vA, vB, vZS, vD0, AD, vS0, vUW, vUS, vDV = 220, 221, 222, 223, 224, 228, 234, 240, 242
    vN, vG, t1_, t2_, t3_, t4_ = 243, 244, 2, 3, 4, 5
    a(f"s_mul_i32 s{sKC}, s{sW}, {KCH}")
    a(f"s_lshl_b32 s{sQ}, s{sH}, 3")
    a(f"s_add_u32 s{sQ}, s{sQ}, s{sW}")
    a(f"s_lshl_b32 s{sT}, s{sQ}, 12")
    for c in range(2):
        a(f"s_add_u32 m0, s{sKC}, {KB + c * KC1}")
        a(f"s_add_u32 s{sOFF}, s{sT}, {4 * c}")
        for pc in range(4): a(f"buffer_load_dwordx4 v{vL16}, {s(sKF,4)}, s{sOFF} offen offset:{pc*1024} lds")
    a(f"s_mul_i32 s{sT}, s{sPH}, {KC1}")
    a(f"s_lshl_b32 s{sT+1}, s{sMG}, 10")
    a(f"s_add_u32 s{sT}, s{sT}, s{sT+1}")
    a(f"s_add_u32 m0, s{sT}, {KB + 8 * KCH}")
    a(f"s_lshl_b32 s{sT}, s{sH}, 12")
    a(f"s_add_u32 s{sT}, s{sT}, s{sT+1}")
    a(f"s_lshl_b32 s{sT+1}, s{sPH}, 2")
    a(f"s_add_u32 s{sT}, s{sT}, s{sT+1}")
    a(f"s_add_u32 s{sT}, s{sT}, {512 * 4096}")
    a(f"buffer_load_dwordx4 v{vL16}, {s(sKF,4)}, s{sT} offen lds")
    a(f"s_lshl_b32 s{sT}, s{sQ}, 1")
    a(f"v_mov_b32 v6, s{sT}")
    a(f"buffer_load_ushort v{vDV}, v6, {s(sDD,4)}, 0 offen")
    a(f"s_lshl_b32 s{sT}, s{sH}, 1")
    a(f"v_mov_b32 v7, s{sT}")
    a(f"buffer_load_ushort v245, v7, {s(sDD,4)}, 0 offen offset:1024")
    a(f"v_and_b32 v{vN}, 15, v{vLN}")
    a(f"v_lshrrev_b32 v{vG}, 4, v{vLN}")
    a(f"v_add_u32 v{t1_}, 1, v{vN}")
    a(f"v_and_b32 v{t2_}, 1, v{t1_}")
    a(f"v_lshrrev_b32 v{t1_}, 1, v{t1_}")
    a(f"v_lshlrev_b32 v{t3_}, 1, v{vG}")
    a(f"v_sub_u32 v{t1_}, v{t1_}, v{t3_}")
    a(f"v_lshlrev_b32 v{t1_}, 3, v{t1_}")
    a(f"v_mul_u32_u24 v{t3_}, {KC1}, v{t2_}")
    a(f"v_add_u32 v{t1_}, v{t1_}, v{t3_}")
    a(f"s_add_u32 s{sT+1}, s{sKC}, {KB + 48}")
    a(f"v_add_u32 v{vA}, s{sT+1}, v{t1_}")
    a(f"v_and_b32 v{t4_}, 1, v{vN}")
    a(f"v_mul_u32_u24 v{t1_}, {UCP}, v{t4_}")
    a(f"v_lshrrev_b32 v{t2_}, 1, v{vN}")
    a(f"v_lshl_add_u32 v{t3_}, v{t2_}, 2, v{vG}")
    a(f"v_lshlrev_b32 v{vZS}, 4, v{t3_}")
    a(f"v_lshl_add_u32 v{vZS}, v{t4_}, 3, v{vZS}")
    a(f"v_sub_u32 v{t3_}, 31, v{t3_}")
    a(f"v_lshl_add_u32 v{t1_}, v{t3_}, 4, v{t1_}")
    a(f"s_mul_i32 s{sT+1}, s{sW}, {UCH}")
    a(f"s_add_u32 s{sT+1}, s{sT+1}, {UB}")
    a(f"v_add_u32 v{vB}, s{sT+1}, v{t1_}")
    a(f"v_lshlrev_b32 v{t1_}, 2, v{vG}")
    a(f"v_sub_u32 v{t1_}, v{vN}, v{t1_}")
    a(f"v_subrev_u32 v{vD0}, 3, v{t1_}")
    a(f"v_lshrrev_b32 v{t1_}, 8, v{vT16}")
    a(f"v_mul_u32_u24 v{vUS}, 18432, v{t1_}")
    a(f"v_and_b32 v{t2_}, 0xf0, v{vT16}")
    a(f"v_add_u32 v{vUS}, v{vUS}, v{t2_}")
    a(f"v_bfe_u32 v{t2_}, v{vT16}, 5, 3")
    a(f"v_mul_u32_u24 v{vUW}, {UCH}, v{t2_}")
    a(f"v_bfe_u32 v{t2_}, v{vT16}, 4, 1")
    a(f"v_mul_u32_u24 v{t2_}, {UCP}, v{t2_}")
    a(f"v_add_u32 v{vUW}, v{vUW}, v{t2_}")
    a(f"v_lshl_add_u32 v{vUW}, v{t1_}, 4, v{vUW}")
    a(f"v_add_u32 v{vUW}, {UB}, v{vUW}")
    a(f"v_lshrrev_b32 v{t1_}, 5, v{vT16}")
    a(f"v_mul_u32_u24 v246, 18432, v{t1_}")
    a(f"v_and_b32 v{t3_}, 16, v{vT16}")
    a(f"v_add_u32 v246, v246, v{t3_}")
    a(f"v_lshl_add_u32 v247, v{t1_}, 4, v{t2_}")
    a(f"v_add_u32 v247, {UB + 8 * UCH}, v247")
    for k in range(4): a(f"v_mov_b32 v{8+k}, 0")
    a(f"v_cmp_gt_u32 vcc, {448*16}, v{vT16}")
    a(f"s_and_saveexec_b64 s[{sEX}:{sEX+1}], vcc")
    a(f"ds_write_b128 v{vUW}, v[8:11] offset:4096")
    a(f"s_mov_b64 exec, s[{sEX}:{sEX+1}]")
    a(f"v_cmp_gt_u32 vcc, {56*16}, v{vT16}")
    a(f"s_and_saveexec_b64 s[{sEX}:{sEX+1}], vcc")
    a(f"ds_write_b128 v247, v[8:11] offset:4096")
    a(f"s_mov_b64 exec, s[{sEX}:{sEX+1}]")
    for k in range(20):
        a(f"v_dot2c_f32_bf16 v{12+2*(k&1)}, s66, v{XR+k}")
        a(f"v_dot2c_f32_bf16 v{13+2*(k&1)}, v{XR+k}, v{XR+k}")
    a("s_nop 2")
    a("v_add_f32 v12, v12, v14")
    a("v_add_f32 v13, v13, v15")
    a("s_nop 1")
    a("v_add_f32_dpp v12, v12, v12 row_ror:8 row_mask:0xf bank_mask:0xf")
    a("v_add_f32_dpp v13, v13, v13 row_ror:8 row_mask:0xf bank_mask:0xf")
    for op in ("v_permlane16_swap_b32", "v_permlane32_swap_b32"):
        a("v_mov_b32 v14, v12"); a("v_mov_b32 v15, v13"); a("s_nop 1")
        a(f"{op} v12, v14"); a(f"{op} v13, v15")
        a("v_add_f32 v12, v12, v14"); a("v_add_f32 v13, v13, v15")
    a("s_mov_b64 exec, 0xff")
    a(f"ds_add_f32 v{vSB}, v12")
    a(f"ds_add_f32 v{vSB}, v13 offset:4")
    a("s_mov_b64 exec, -1")
    a(f"v_mov_b32 v7, {OOB}")
    a(f"s_lshr_b32 s{sT}, s{sH}, 3")
    a(f"s_and_b32 s{sT+1}, s{sH}, 3")
    a(f"s_mul_i32 s{sT+1}, s{sT+1}, {1152*1152}")
    a(f"s_mul_i32 s{sT}, s{sT}, {144*1152}")
    a(f"s_add_u32 s39, s{sT}, s{sT+1}")
    a(f"s_lshl_b32 s{sT}, s{sW}, 11")
    a(f"v_lshl_add_u32 v248, v{vLN}, 7, s{sT}")
    a(f"v_cmp_gt_u32 vcc, 16, v{vLN}")
    a("s_nop 1")
    a("v_cndmask_b32 v248, v7, v248, vcc")
    L2 = a.newlabel("Lf")
    a(f"s_cmp_lg_u32 s{sW}, 0")
    a(f"s_cbranch_scc1 {L2}")
    a(f"v_lshrrev_b32 v4, 1, v{vL16}")
    a(f"v_add_u32 v4, {WS_UF}, v4")
    poll(a, [f"buffer_load_dwordx2 v[2:3], v4, {s(sWS,4)}, 0 offen sc1"], flag_cond([2], 0), "u", 2)
    a.label(L2)
    a("s_barrier")
    ST.stamp("U seen")
    a(f"s_lshl_b32 s{sT}, s{sH}, 8")
    a(f"s_add_u32 s{sT}, s{sT}, {WS_U}")
    for it in range(8):
        a(f"buffer_load_dwordx4 {v(UL+4*it,4)}, v{vUS}, {s(sWS,4)}, s{sT} offen sc1")
        if it < 7: a(f"s_add_u32 s{sT}, s{sT}, {32*18432}")
    a(f"s_lshl_b32 s{sT}, s{sH}, 5")
    a(f"s_add_u32 s{sT}, s{sT}, {WS_U + 128*128}")
    a(f"buffer_load_dwordx4 {v(UL+32,4)}, v246, {s(sWS,4)}, s{sT} offen sc1")
    def a0_setup(dv, sbase):
        for i in range(4):
            a(f"v_add_u32 v250, {i}, v{vD0}")
            a(f"v_cmp_eq_u32 vcc, 0, v250")
            a(f"v_max_i32 v251, 0, v250")
            a(f"v_lshl_add_u32 v{vS0+i}, v251, 2, s{sbase}")
            a(f"v_cndmask_b32 v{AD+i}, 0, v{dv}, vcc")
    a("s_waitcnt vmcnt(9)")
    a(f"s_sub_u32 s{sT}, 8, s{sW}")
    a(f"s_lshl_b32 s{sT+2}, s{sW}, 6")
    a(f"s_mul_i32 s64, s{sT}, {KCH}")
    a(f"s_add_u32 s64, s64, s{sT+2}")
    a(f"s_mul_i32 s65, s{sT}, {UCH}")
    a(f"s_add_u32 s65, s65, s{sT+2}")
    a(f"s_lshl_b32 s66, s{sW}, 4")
    a(f"v_add_u32 v{vA}, s64, v{vA}")
    a(f"v_add_u32 v{vB}, s65, v{vB}")
    a(f"v_add_u32 v{vD0}, s66, v{vD0}")
    a(f"s_mov_b32 s67, {KB + 8 * KCH}")
    a0_setup(245, 67)
    for it in range(8):
        a(f"s_waitcnt vmcnt({8-it})")
        a(f"ds_write_b128 v{vUW}, {v(UL+4*it,4)} offset:{it*512}")
    a("s_waitcnt vmcnt(0)")
    a(f"ds_write_b128 v247, {v(UL+32,4)}")
    a(f"s_lshl_b32 s{sZO}, s{sQ}, 12")
    a(f"s_add_u32 s{sZO}, s{sZO}, {WS_Z}")
    a("s_waitcnt lgkmcnt(0)")
    a("s_barrier")
    ST.stamp("conv start")
    pairs = []
    for aa in range(8):
        for n in range(7, aa - 1, -1): pairs.append((aa, n - aa))
    def conv_pass(nb, vq, CA):
        X = Emit(a)
        ops = [(b, aa, mu) for b in range(nb) for (aa, mu) in pairs]
        need = [("A", 0, 0)] + [("B", 0, n) for n in range(7, -1, -1)]
        last = {}
        for idx, (b, aa, mu) in enumerate(ops):
            for key in (("A", b, aa), ("B", b, mu)):
                if key not in need: need.append(key)
                last[key] = idx
        free = list(QUADS); where = {}
        def issue():
            key = need.pop(0); q = free.pop(0); where[key] = q
            kind, b, i = key
            if key == ("A", 0, 0):
                for k in range(4): X.one(dict(i=f"ds_read_b32 v{q+k}, v{vS0+k}", lds=key))
            elif kind == "A":
                for hh in range(2): X.one(dict(i=f"ds_read_b64 {v(q+2*hh,2)}, v{vA} offset:{b*64 + i*512 - 64 + 8*hh}", lds=key))
            else: X.one(dict(i=f"ds_read_b128 {v(q,4)}, v{vB} offset:{b*64 + (7-i)*512}", lds=key))
        for _ in range(9): issue()
        q0 = where[("A", 0, 0)]
        for k in range(4):
            a(f"v_add_u32 v250, {k}, v{vD0}")
            a(f"v_cmp_le_i32 vcc, 0, v250")
            a("s_nop 1")
            X.one(dict(i=f"v_cndmask_b32 v{q0+k}, 0, v{q0+k}, vcc", needl=[("A", 0, 0)]))
        for n in range(7, -1, -1):
            X.one(dict(i=f"{M16} {v(CA+4*n,4)}, {v(AD,4)}, {v(where[('B',0,n)],4)}, 0", needl=[("B", 0, n)]))
            if need and len(X.lg.q) < 12: issue()
        for idx, (b, aa, mu) in enumerate(ops):
            ka, kb = ("A", b, aa), ("B", b, mu)
            while ka not in where or kb not in where: issue()
            d = CA + 4 * (aa + mu)
            X.one(dict(i=f"{M16} {v(d,4)}, {v(where[ka],4)}, {v(where[kb],4)}, {v(d,4)}", needl=[ka, kb]))
            for key in (ka, kb):
                if last[key] == idx: free.append(where[key])
            if need and free and need[0][1] <= b + 1 and (idx % 2 == 0 or need[0][1] == b):
                if len(X.lg.q) >= 12:
                    a("s_waitcnt lgkmcnt(4)"); X.lg.q = X.lg.q[-4:]
                issue()
            if idx % 20 == 10 and vq: X.one(vq.pop(0))
        assert not need and not vq
        a("s_nop 7")
    conv_pass(1, [], UL)
    a(f"v_subrev_u32 v{vA}, s64, v{vA}")
    a(f"v_subrev_u32 v{vB}, s65, v{vB}")
    a(f"v_subrev_u32 v{vD0}, s66, v{vD0}")
    a0_setup(vDV, sKC)
    tl = [f"buffer_load_dword v252, v248, {s(sK,4)}, s39 offen\ns_add_u32 s39, s39, {128*128 if k < 9 else 16*128}" for k in range(11)] if opt.get("touch", 1) else []
    xl = []
    if opt.get("ctouch2", 1):
        a("s_getpc_b64 s[66:67]")
        Lh2 = a.newlabel("Lhere"); a.label(Lh2)
        a(f"s_sub_u32 s66, s66, {Lh2}-{opt['kname']}")
        a("s_subb_u32 s67, s67, 0")
        a(f"s_lshr_b32 s{sT}, s{sH}, 3")
        a(f"s_mul_i32 s{sT}, s{sT}, 10240")
        a(f"s_mul_i32 s{sT+1}, s{sW}, 1280")
        a(f"s_add_u32 s{sT}, s{sT}, s{sT+1}")
        a(f"v_min_u32 v249, 9, v{vLN}")
        a(f"v_lshl_add_u32 v249, v249, 7, s{sT}")
        a(f"v_min_u32 v249, {Lend}-{opt['kname']}, v249")
        xl = ["global_load_dword v252, v249, s[66:67]"]
    conv_pass(8, tl + xl, CA)
    for n in range(8):
        a(f"v_cvt_pk_bf16_f32 v{32+2*n}, v{CA+4*n}, v{CA+4*n+1}")
        a(f"v_cvt_pk_bf16_f32 v{33+2*n}, v{CA+4*n+2}, v{CA+4*n+3}")
        a(f"buffer_store_dwordx2 {v(32+2*n,2)}, v{vZS}, {s(sWS,4)}, s{sZO} offen offset:{n*512} sc1")
    ST.stamp("conv main")
    a(f"v_add_u32 v250, s{sKC}, v{vL16}")
    for n in range(8): a(f"ds_write_b128 v250, {v(UL+4*n,4)} offset:{n*1024}")
    a("s_waitcnt lgkmcnt(0)")
    a("s_barrier")
    for k in range(8): a(f"ds_read_b128 {v(52+4*k,4)}, v{vT16} offset:{k*KCH}")
    a(f"s_lshl_b32 s{sZO}, s{sH}, 12")
    a(f"s_lshl_b32 s{sT}, s{sW}, 9")
    a(f"s_add_u32 s{sZO}, s{sZO}, s{sT}")
    a(f"s_add_u32 s{sZO}, s{sZO}, {WS_Z + 512*4096}")
    a("s_waitcnt lgkmcnt(0)")
    for k in range(1, 8):
        for r in range(4): a(f"v_add_f32 v{52+r}, v{52+r}, v{52+4*k+r}")
    a("v_cvt_pk_bf16_f32 v48, v52, v53")
    a("v_cvt_pk_bf16_f32 v49, v54, v55")
    a(f"buffer_store_dwordx2 v[48:49], v{vZS}, {s(sWS,4)}, s{sZO} offen sc1")
    a("s_waitcnt vmcnt(0)")
    a("s_barrier")
    ST.stamp("conv done")
    L4 = a.newlabel("Lf")
    a(f"s_cmp_lg_u32 s{sW}, 0")
    a(f"s_cbranch_scc1 {L4}")
    a(f"s_lshl_b32 s{sT}, s{sH}, 3")
    a(f"s_add_u32 s{sT}, s{sT}, {WS_UF}")
    one_lane_flag(sT, 1)
    a.label(L4)
    vRL, vPF, vZG, vZG4, vZW, vZR, vUF, vRL4 = 220, 221, 225, 226, 227, 228, 229, 230
    a(f"ds_read_b64 v[150:151], v{vSB}")
    a(f"v_lshrrev_b32 v250, 6, v{vT16}")
    a(f"v_and_b32 v251, 48, v{vT16}")
    a(f"v_lshl_add_u32 v{vZG}, v250, 12, v251")
    a(f"v_bfe_u32 v249, v{vT16}, 9, 2")
    a(f"v_lshlrev_b32 v249, 4, v249")
    a(f"v_xor_b32 v{vZW}, v249, v{vT16}")
    a(f"s_cmp_eq_u32 s{sPH}, 0")
    a(f"s_cselect_b32 s{sT+2}, 0, {OOB}")
    a(f"v_or_b32 v{vZG4}, s{sT+2}, v{vZG}")
    a(f"v_bfe_u32 v250, v{vLN}, 3, 2")
    a(f"v_lshrrev_b32 v249, 5, v{vLN}")
    a(f"v_and_b32 v251, 0x70, v{vL16}")
    a(f"v_lshl_add_u32 v251, v250, 9, v251")
    a(f"v_mul_u32_u24 v{vRL}, {PSL}, v249")
    a(f"v_add_u32 v{vRL}, v{vRL}, v251")
    a(f"s_mul_i32 s{sT}, s{sH}, {PTB}")
    a(f"s_lshl_b32 s{sT+1}, s{sMG}, 7")
    a(f"s_add_u32 s{sT}, s{sT}, s{sT+1}")
    a(f"s_lshl_b32 s{sT+1}, s{sPH}, 11")
    a(f"s_add_u32 s{sT}, s{sT}, s{sT+1}")
    a(f"v_add_u32 v{vRL}, s{sT}, v{vRL}")
    a(f"v_min_u32 v251, {NSL-1}, v{vLN}")
    a(f"s_lshl_b32 s{sT}, s{sH}, 7")
    a(f"s_add_u32 s{sT}, s{sT}, {WS_PF2}")
    a(f"v_lshl_add_u32 v{vPF}, v251, 3, s{sT}")
    a(f"v_xor_b32 v251, s{sMG}, v250")
    a(f"v_lshlrev_b32 v251, 4, v251")
    a(f"v_lshl_add_u32 v{vZR}, v250, 9, v251")
    a(f"v_lshl_add_u32 v{vZR}, v249, 12, v{vZR}")
    a(f"v_and_b32 v251, 1, v{vLN}")
    a(f"v_lshl_add_u32 v{vZR}, v251, 3, v{vZR}")
    a(f"v_and_b32 v251, 6, v{vLN}")
    a(f"v_add_u32 v{vZR}, v{vZR}, v251")
    a(f"v_add_u32 v{vZR}, s{sT+1}, v{vZR}")
    a(f"v_lshrrev_b32 v{vUF}, 1, v{vL16}")
    a(f"v_add_u32 v{vUF}, {WS_UF}, v{vUF}")
    BASE, ZL, ZR, XN, AC = 160, 96, 116, 48, 144
    a("s_mov_b32 s63, 0x00003f80")
    a("s_mov_b32 s64, 0x3f800000")
    a(f"s_mov_b32 s65, {f32(LN2)}")
    a(f"s_mov_b32 s{sI}, 0")
    RB = lambda st: (st % 4) * 24
    def wave_poll(addr, level, tag):
        Lk = a.newlabel("Lk")
        a(f"s_cmp_lg_u32 s{sW}, 7")
        a(f"s_cbranch_scc1 {Lk}")
        poll(a, [f"buffer_load_dwordx2 v[222:223], v{addr}, {s(sWS,4)}, 0 offen sc1"], flag_cond([222], level), tag, opt.get("psleep", 6))
        a.label(Lk)
        a("s_barrier")
    def ensure(level):
        Lk, Lq = a.newlabel("Lk"), a.newlabel("Lq")
        a(f"s_cmp_ge_u32 s{sI}, {level}")
        a(f"s_cbranch_scc1 {Lk}")
        a(f"s_cmp_lg_u32 s{sW}, 7")
        a(f"s_cbranch_scc1 {Lq}")
        cond = [f"v_subrev_u32 v222, s{sTAG}, v222", f"v_xor_b32 v223, s{sTAG+1}, v223", "v_lshrrev_b32 v224, 4, v222", "v_or_b32 v223, v223, v224",
                "v_cmp_eq_u32 vcc, 0, v223", "s_nop 1", "v_cndmask_b32 v222, 0, v222, vcc", "s_nop 1",
                "v_min_u32_dpp v222, v222, v222 row_ror:8 row_mask:0xf bank_mask:0xf", "s_nop 1",
                "v_min_u32_dpp v222, v222, v222 row_ror:4 row_mask:0xf bank_mask:0xf", "s_nop 1",
                "v_min_u32_dpp v222, v222, v222 row_ror:2 row_mask:0xf bank_mask:0xf", "s_nop 1",
                "v_min_u32_dpp v222, v222, v222 row_ror:1 row_mask:0xf bank_mask:0xf", "s_nop 0",
                f"v_readfirstlane_b32 s{sI}, v222", "s_nop 0", f"s_cmp_ge_u32 s{sI}, {level}"]
        poll(a, [f"buffer_load_dwordx2 v[222:223], v{vPF}, {s(sWS,4)}, 0 offen sc1"], cond, "p", opt.get("psleep", 6))
        a(f"v_mov_b32 v222, s{sI}")
        a(f"ds_write_b32 v231, v222 offset:{4*level}")
        a("s_waitcnt lgkmcnt(0)")
        a.label(Lq)
        a("s_barrier")
        a(f"ds_read_b32 v222, v231 offset:{4*level}")
        a("s_waitcnt lgkmcnt(0)")
        a(f"v_readfirstlane_b32 s{sI}, v222")
        a.label(Lk)
    a(f"v_mov_b32 v231, {STB + 512}")
    nst = []
    NL = NSL // 2
    def loads(st):
        for i in range(NL):
            a(f"s_mov_b32 s{sOFF}, {2 * i * PSL + st * 4096}")
            a(f"buffer_load_dwordx4 {v(RB(st)+4*i,4)}, v{vRL}, {s(sWS,4)}, s{sOFF} offen sc1")
        nst.extend([("L", st)] * NL)
    def consume(st):
        q = st >> 1
        for k in range(8): a(f"v_mov_b32 v{AC+k}, 0")
        for i in range(NL):
            idx = [j for j, e in enumerate(nst) if e == ("L", st)][i]
            a(f"s_waitcnt vmcnt({len(nst) - 1 - idx})")
            for k in range(4):
                a(f"v_dot2c_f32_bf16 v{AC+2*k}, s63, v{RB(st)+4*i+k}")
                a(f"v_dot2c_f32_bf16 v{AC+2*k+1}, s64, v{RB(st)+4*i+k}")
        a("s_nop 2")
        for k in range(8): a(f"v_mov_b32 v{AC+8+k}, v{AC+k}")
        for k in range(8): a(f"v_permlane32_swap_b32 v{AC+k}, v{AC+8+k}")
        for k in range(8): a(f"v_add_f32 v{AC+k}, v{AC+k}, v{AC+8+k}")
        for k in range(8): a(f"v_fma_f32 v{AC+k}, s65, v{AC+k}, v{BASE+8*q+k}")
        o = 96 + 4 * (st % 4)
        for k in range(4): a(f"v_cvt_pk_bf16_f32 v{o+k}, v{AC+2*k}, v{AC+2*k+1}")
        a(f"buffer_store_dwordx4 {v(o,4)}, v{vXO4 if st & 1 else vXO}, {s(sOUT,4)}, 0 offen offset:{q*256} {opt.get('omod', '')}")
        nst.append(("S", st))
    a("s_waitcnt lgkmcnt(0)")
    for l in stats_math(150, 151, 152, 153, SS, SS + 1): a(l)
    for k in range(20):
        a(f"v_lshlrev_b32 v{BASE+2*k}, 16, v{XR+k}")
        a(f"v_and_b32 v{BASE+2*k+1}, 0xffff0000, v{XR+k}")
    for k in range(16): a(f"v_mov_b32 v{ZR+k}, 0")
    a(f"v_mul_f32 v{SS}, v{SS}, v{SS+1}")
    ST.stamp("xpart")
    Lk = a.newlabel("Lk")
    a(f"s_cmp_lg_u32 s{sW}, 6")
    a(f"s_cbranch_scc1 {Lk}")
    poll(a, [f"buffer_load_dwordx2 v[222:223], v{vUF}, {s(sWS,4)}, 0 offen sc1"], flag_cond([222], 1), "z", opt.get("psleep", 6))
    a.label(Lk)
    a("s_barrier")
    ST.stamp("z seen")
    a(f"s_lshl_b32 s{sT}, s{sH}, 6")
    a(f"s_add_u32 s{sT}, s{sT}, {WS_Z}")
    for i in range(5):
        a(f"buffer_load_dwordx4 {v(ZL+4*i,4)}, v{vZG4 if i == 4 else vZG}, {s(sWS,4)}, s{sT} offen sc1")
        if i < 4: a(f"s_add_u32 s{sT}, s{sT}, {128*4096}")
    for i in range(5):
        a(f"s_waitcnt vmcnt({4 - i})")
        a(f"ds_write_b128 v{vZW}, {v(ZL+4*i,4)} offset:{i*8192}")
    a("s_waitcnt lgkmcnt(0)")
    ensure(1)
    ST.stamp("seen 1")
    loads(0)
    rd = lambda q: [a(f"ds_read_u16_d16_hi v{ZR+8*(q&1)+j}, v{vZR} offset:{q*8192 + j*64}") for j in range(8)]
    rd(0)
    for q in range(5):
        if q < 4:
            a("s_waitcnt lgkmcnt(4)")
            rd(q + 1)
        for j in range(8): a(f"v_fma_f32 v{AC+j}, v{BASE+8*q+j}, v{SS+1}, -v{SS}")
        a(f"s_waitcnt lgkmcnt({8 if q < 4 else 0})")
        for j in range(8): a(f"v_fmac_f32 v{BASE+8*q+j}, v{AC+j}, v{ZR+8*(q&1)+j}")
    a(f"v_lshrrev_b32 v249, 5, v{vLN}")
    a(f"v_mul_u32_u24 v249, {PSL - 4096}, v249")
    a(f"v_sub_u32 v249, v{vRL}, v249")
    a(f"v_mov_b32 v250, {OOB}")
    a(f"v_cmp_gt_u32 vcc, 32, v{vLN}")
    for q in (3, 4):
        for k in range(4): a(f"v_cvt_pk_bf16_f32 v{XR+4*q+k}, v{BASE+8*q+2*k}, v{BASE+8*q+2*k+1}")
    a("v_cndmask_b32 v250, v250, v249, vcc")
    for q in (3, 4):
        a(f"s_mov_b32 s{sOFF}, {12 * PSL + q * 8192}")
        a(f"buffer_store_dwordx4 {v(XR+4*q,4)}, v{249 if q == 3 else 250}, {s(sWS,4)}, s{sOFF} offen sc1")
    nst.extend([("B", 0)] * 2)
    ST.stamp("base")
    ensure(2)
    loads(1)
    NR = 6
    for st in range(NR):
        if st < NR - 2:
            lv = st + 3
            La, Lb = a.newlabel("Lr"), a.newlabel("Lr")
            save = list(nst)
            a(f"s_cmp_ge_u32 s{sI}, {lv}")
            a(f"s_cbranch_scc0 {La}")
            loads(st + 2); consume(st)
            a(f"s_branch {Lb}")
            a.label(La)
            nst[:] = save
            consume(st); ensure(lv); loads(st + 2)
            a.label(Lb)
            nst[:] = [("L", st + 1)] * NL + [("L", st + 2)] * NL
            if st in (1, 3): ST.stamp(f"issued {st+2}")
        else: consume(st)
        if st == 0:
            a(f"s_waitcnt vmcnt({2*NL})")
            a("s_barrier")
            Lf = a.newlabel("Lf")
            a(f"s_cmp_lg_u32 s{sW}, 0")
            a(f"s_cbranch_scc1 {Lf}")
            a(f"s_lshr_b32 s{sT}, s{sH}, 2")
            a(f"s_lshl_b32 s{sT}, s{sT}, 7")
            a(f"s_and_b32 s{sT+1}, s{sH}, 3")
            a(f"s_lshl_b32 s{sT+1}, s{sT+1}, 3")
            a(f"s_add_u32 s{sT}, s{sT}, s{sT+1}")
            a(f"s_add_u32 s{sT}, s{sT}, {WS_PF + 96}")
            a(f"v_mov_b32 v248, {OOB}")
            a(f"v_mov_b32 v250, s{sTAG}")
            a(f"v_mov_b32 v251, s{sTAG+1}")
            a(f"v_writelane_b32 v248, s{sT}, 0")
            a(f"buffer_store_dwordx2 v[250:251], v248, {s(sWS,4)}, 0 offen sc1")
            a.label(Lf)
    if opt.get("stamps"): a("s_waitcnt vmcnt(0)")
    ST.stamp("end"); ST.cyc(1)
    ST.flush(sWS, sW)
```

```python
from common import *
from k_mlp import Emit, M16, mish_group
import k7h

NSL = 12
RING = 0
ACT = 73728
BIAS = 155648
LDS_ALL = 163840
SLOT = 49152
def POS(k): return {0: 7, 1: 8, 9: 9, 10: 7, 11: 8}.get(k, k - 2)

def XF(mt16, ks): return mt16 * 72 + ks * 4
def AFR(mu, kap):
    q, r = divmod(kap, 3); n = mu * 3 + r
    return 144 + n * 4 if q == 3 else XF(n // 6, 6 * q + n % 6)
ACC = 144; PEND = 160; FR = 176; BI = 208; TM = 216; AO = 244
ACC2 = 192; FR2 = 208
RA = [228, 229, 230, 231]
vW1, vW2, vJUNK, vACTW, vBIAS, vST, vRB, vL16 = 232, 233, 234, 235, 236, 237, 238, 239
T0 = 240
sX, sW1, sW2, sWS, sA, sDBG = 8, 12, 16, 20, 24, 52
sMT, sSL, sW, sMG, sPH, sFB2, sW2A = 28, 29, 30, 31, 32, 33, 34
sPFA = 35
sT = 56; sEX = 60
sOFF, sONES, sM0G, sOFF2 = 62, 63, 64, 65
sXR1, sCNT, sTAG = 3, 5, 6
sXR0 = 36
OOB = "0x7ffffff0"

def spread(main, side):
    out = []; k = 0; n = len(main)
    for i, m in enumerate(main):
        out.append(m)
        want = (i + 1) * len(side) // n
        while k < want:
            out.extend(side[k]); k += 1
    for g in side[k:]: out.extend(g)
    return out
def flat(groups): return [x for g in groups for x in g]
def srd2(a, d, nbytes):
    a(f"s_and_b32 s{d+1}, s{d+1}, 0xffff")
    a(f"s_mov_b32 s{d+2}, {nbytes}")
    a(f"s_mov_b32 s{d+3}, 0x00020000")
def poll(a, load, cond_lines, tag, sleep=8):
    L, Ld = a.newlabel("Lpoll" + tag), a.newlabel("Lpd" + tag)
    a.label(L)
    for l in load: a(l)
    a("s_waitcnt vmcnt(0)")
    for l in cond_lines: a(l)
    a(f"s_cbranch_scc1 {Ld}")
    a(f"s_sleep {sleep}")
    a(f"s_sub_u32 s{sCNT}, s{sCNT}, 1")
    a(f"s_cbranch_scc0 {L}")
    a(f"s_mov_b32 s{sCNT}, 0")
    a.label(Ld)
def stats_math(s0, q0, mean, var, mb, rs):
    return [f"v_mul_f32 v{mean}, {f32(1.0/576)}, v{s0}",
            f"v_mul_f32 v{var}, {f32(1.0/576)}, v{q0}",
            f"v_fma_f32 v{var}, -v{mean}, v{mean}, v{var}",
            f"v_max_f32 v{var}, 0, v{var}",
            f"v_cvt_pk_bf16_f32 v{mb}, v{mean}, v{var}",
            f"v_and_b32 v{var}, 0xffff0000, v{mb}",
            f"v_lshlrev_b32 v{mb}, 16, v{mb}",
            f"v_add_f32 v{var}, {f32(1e-5)}, v{var}",
            f"v_cvt_pk_bf16_f32 v{var}, v{var}, v{var}",
            f"v_lshlrev_b32 v{var}, 16, v{var}",
            f"v_sqrt_f32 v{var}, v{var}",
            "s_nop 0",
            f"v_cvt_pk_bf16_f32 v{var}, v{var}, v{var}",
            f"v_lshlrev_b32 v{var}, 16, v{var}",
            f"v_rcp_f32 v{rs}, v{var}",
            "s_nop 0"]

def gen(a, opt=None):
    opt = opt or {}
    E = Emit(a)
    Lend, Lhelp = a.newlabel("Lend"), a.newlabel("Lhelp")
    a("s_cmp_ge_u32 s2, 256")
    a(f"s_cbranch_scc1 {Lend}")
    ST = Stamps(a, opt.get("stamps"), 0)
    ST.stamp("start"); ST.cyc(0)
    a(f"s_mov_b32 s{sCNT}, 0x80000")
    a("s_cmp_ge_u32 s2, 192")
    a(f"s_cbranch_scc1 {Lhelp}")
    for d, off in ((sX, 0), (sW1, 56), (sA, 64), (sW2, 72), (sWS, 96), (sDBG, 88)):
        a(f"s_load_dwordx2 s[{d}:{d+1}], s[0:1], {off}")
    lane, r8, u8 = T0 + 1, T0 + 2, T0 + 3
    a(f"v_lshrrev_b32 v{T0}, 6, v0")
    a(f"v_and_b32 v{lane}, 63, v0")
    a(f"v_readfirstlane_b32 s{sW}, v{T0}")
    a(f"s_lshr_b32 s{sT}, s2, 3")
    a(f"s_mul_i32 s{sT+1}, s{sT}, 11")
    a(f"s_lshr_b32 s{sT+1}, s{sT+1}, 5")
    a(f"s_mul_i32 s{sT+2}, s{sT+1}, 3")
    a(f"s_sub_u32 s{sT}, s{sT}, s{sT+2}")
    a(f"s_and_b32 s{sT+2}, s2, 3")
    a(f"s_mul_i32 s{sT+2}, s{sT+2}, 3")
    a(f"s_add_u32 s{sSL}, s{sT}, s{sT+2}")
    a(f"s_bfe_u32 s{sT}, s2, 0x10002")
    a(f"s_lshl_b32 s{sT}, s{sT}, 3")
    a(f"s_add_u32 s{sMT}, s{sT}, s{sT+1}")
    a(f"s_and_b32 s{sMG}, s{sW}, 3")
    a(f"s_lshr_b32 s{sPH}, s{sW}, 2")
    a(f"v_lshrrev_b32 v{r8}, 3, v{lane}")
    a(f"v_and_b32 v{u8}, 7, v{lane}")
    a(f"s_lshl_b32 s{sT+1}, s{sMG}, 5")
    a(f"s_lshl_b32 s{sT+2}, s{sPH}, 3")
    a(f"s_add_u32 s{sT+1}, s{sT+1}, s{sT+2}")
    a(f"s_lshl_b32 s{sT}, s{sMT}, 7")
    a(f"s_add_u32 s{sT}, s{sT}, s{sT+1}")
    vXO = T0 + 5
    a(f"v_add_u32 v{vXO}, s{sT}, v{r8}")
    a(f"v_mul_u32_u24 v{vXO}, 1152, v{vXO}")
    a(f"v_lshl_add_u32 v{vXO}, v{u8}, 4, v{vXO}")
    a(f"s_and_b32 s4, s{sSL}, {1 if opt.get('flip', 1) else 0}")
    a(f"s_mul_i32 s{sXR0}, s4, 18432")
    a(f"s_sub_u32 s{sXR1}, 18432, s{sXR0}")
    a("s_waitcnt lgkmcnt(0)")
    srd2(a, sX, XBYTES)
    RAW = [144, 180]
    def x_load(rho, j):
        so = f"s{sXR0}" if rho == 0 else f"s{sXR1}"
        return dict(i=f"buffer_load_dwordx4 {v(RAW[rho]+4*j,4)}, v{vXO}, {s(sX,4)}, {so} offen offset:{128*j}", vm=("x", rho, j))
    for j in range(9): E.one(x_load(0, j))
    ST.stamp("x0 issued")
    srd2(a, sW1, WBYTES); srd2(a, sA, F * 2); srd2(a, sW2, WBYTES); srd2(a, sWS, WS_END); srd2(a, sDBG, 256)
    a(f"s_mul_i32 s{sFB2}, s{sSL}, 768")
    a(f"s_mul_i32 s{sW2A}, s{sSL}, {384*1152}")
    a(f"s_lshl_b32 s{sM0G}, s{sMG}, 10")
    a(f"s_mov_b32 s{sONES}, 0x3f803f80")
    a(f"v_lshlrev_b32 v{vL16}, 4, v{lane}")
    t1, t2 = T0 + 8, T0 + 9
    a(f"s_lshl_b32 s{sT}, s{sMG}, 3")
    a(f"v_add_u32 v{t2}, s{sT}, v{r8}")
    a(f"v_mul_u32_u24 v{vW1}, 9216, v{t2}")
    a(f"v_bfe_u32 v{t1}, v{r8}, 1, 1")
    a(f"s_and_b32 s{sT}, s{sW}, 1")
    a(f"s_lshl_b32 s{sT}, s{sT}, 1")
    a(f"v_or_b32 v{t1}, s{sT}, v{t1}")
    a(f"v_lshlrev_b32 v{t1}, 1, v{t1}")
    a(f"v_xor_b32 v{t1}, v{t1}, v{u8}")
    a(f"v_lshl_add_u32 v{vW1}, v{t1}, 4, v{vW1}")
    a(f"v_mul_u32_u24 v{vW2}, 1152, v{t2}")
    a(f"v_and_b32 v{t1}, 6, v{r8}")
    a(f"v_xor_b32 v{t1}, v{t1}, v{u8}")
    a(f"v_lshl_add_u32 v{vW2}, v{t1}, 4, v{vW2}")
    vBE, vBV = T0 + 6, T0 + 7
    a(f"v_lshlrev_b32 v{vBE}, 1, v0")
    g4, rp, c4, fsw = T0 + 10, T0 + 11, T0 + 12, T0 + 13
    a(f"v_lshrrev_b32 v{g4}, 4, v{lane}")
    a(f"v_bfe_u32 v{rp}, v{lane}, 2, 2")
    a(f"v_and_b32 v{c4}, 3, v{lane}")
    a(f"v_lshrrev_b32 v{t1}, 1, v{rp}")
    a(f"v_and_b32 v{t2}, 1, v{g4}")
    a(f"v_lshl_or_b32 v{fsw}, v{t2}, 1, v{t1}")
    a(f"s_lshl_b32 s{sT}, s{sPH}, 1")
    a(f"v_xor_b32 v{t1}, s{sT}, v{fsw}")
    a(f"v_lshlrev_b32 v{t1}, 5, v{t1}")
    a(f"v_lshl_add_u32 v{t1}, v{g4}, 10, v{t1}")
    a(f"v_lshl_add_u32 v{t1}, v{rp}, 7, v{t1}")
    a(f"v_lshl_add_u32 v{RA[0]}, v{c4}, 3, v{t1}")
    a(f"v_xor_b32 v{RA[1]}, 32, v{RA[0]}")
    a(f"v_add_u32 v{RA[3]}, 0x8000, v{RA[1]}")
    a(f"v_add_u32 v{RA[2]}, 0x8000, v{RA[0]}")
    a(f"s_lshr_b32 s{sT}, s{sW}, 1")
    a(f"v_xor_b32 v{t1}, s{sT}, v{fsw}")
    a(f"v_lshlrev_b32 v{t1}, 5, v{t1}")
    a(f"v_lshl_add_u32 v{t1}, v{g4}, 9, v{t1}")
    a(f"v_lshl_add_u32 v{t1}, v{rp}, 7, v{t1}")
    a(f"v_lshl_add_u32 v{vRB}, v{c4}, 3, v{t1}")
    a(f"s_lshl_b32 s{sT}, s{sPH}, 7")
    a(f"s_add_u32 s{sT}, s{sT}, {BIAS}")
    a(f"v_lshl_add_u32 v{vBIAS}, v{g4}, 4, s{sT}")
    a(f"s_lshl_b32 s{sT}, s{sMG}, 11")
    a(f"s_add_u32 s{sT}, s{sT}, {ACT}")
    a(f"v_add_u32 v{vACTW}, s{sT}, v{vL16}")
    a(f"s_mul_i32 s{sT}, s{sMG}, 18432")
    a(f"s_add_u32 s{sT}, s{sT}, {ACT}")
    vXW = T0 + 14
    a(f"s_lshl_b32 s{sT+1}, s{sPH}, 3")
    a(f"v_add_u32 v{t1}, s{sT+1}, v{r8}")
    a(f"v_xor_b32 v{t1}, v{t1}, v{u8}")
    a(f"v_lshlrev_b32 v{t1}, 4, v{t1}")
    a(f"v_lshl_add_u32 v{t1}, v{u8}, 8, v{t1}")
    a(f"v_add_u32 v{vXW}, s{sT}, v{t1}")
    vXR0, vXR1 = T0 + 15, T0 + 8
    a(f"v_and_b32 v{t2}, 15, v{lane}")
    a(f"v_xor_b32 v{t2}, v{t2}, v{g4}")
    a(f"v_lshlrev_b32 v{t2}, 4, v{t2}")
    a(f"v_lshl_add_u32 v{t2}, v{g4}, 8, v{t2}")
    a(f"v_add_u32 v{vXR0}, s{sT}, v{t2}")
    a(f"v_xor_b32 v{vXR1}, 64, v{vXR0}")
    a(f"s_mul_i32 s{sT+2}, s{sSL}, {PSL}")
    a(f"s_lshl_b32 s{sT}, s{sMT}, 2")
    a(f"s_and_b32 s{sT+1}, s{sW}, 1")
    a(f"s_lshl_b32 s{sT+1}, s{sT+1}, 1")
    a(f"s_add_u32 s{sT}, s{sT}, s{sT+1}")
    a(f"s_mul_i32 s{sT}, s{sT}, {PTB}")
    a(f"s_add_u32 s{sT+2}, s{sT+2}, s{sT}")
    a(f"s_lshr_b32 s{sT}, s{sW}, 1")
    a(f"s_lshl_b32 s{sT}, s{sT}, 10")
    a(f"s_add_u32 s{sT+2}, s{sT+2}, s{sT}")
    a(f"s_lshl_b32 s{sT}, s4, 8")
    a(f"v_xor_b32 v{vST}, s{sT}, v{vL16}")
    a(f"v_add_u32 v{vST}, s{sT+2}, v{vST}")
    a(f"s_lshl_b32 s{sT}, s{sMT}, 9")
    a(f"s_lshl_b32 s{sT+1}, s{sSL}, 3")
    a(f"s_add_u32 s{sT}, s{sT}, s{sT+1}")
    a(f"s_add_u32 s{sT}, s{sT}, {WS_PF2}")
    a(f"s_cmp_eq_u32 s{sW}, 4")
    a(f"s_cselect_b32 s{sPFA}, s{sT}, {OOB}")

    A_, C_ = TM + 8, TM + 10
    def ln_stats(rho):
        o = []
        R = RAW[rho]
        s0, s1, q0, q1 = TM, TM + 1, TM + 2, TM + 3
        o += [f"v_mov_b32 v{s0}, 0", f"v_mov_b32 v{s1}, 0", f"v_mov_b32 v{q0}, 0", f"v_mov_b32 v{q1}, 0"]
        for j in range(9):
            for k in range(4):
                r = R + 4 * j + k
                o.append(dict(i=f"v_dot2c_f32_bf16 v{(s0, s1)[k & 1]}, s{sONES}, v{r}", needv=[("x", rho, j)]))
                o.append(f"v_dot2c_f32_bf16 v{(q0, q1)[k & 1]}, v{r}, v{r}")
        o += ["s_nop 2", f"v_add_f32 v{s0}, v{s0}, v{s1}", f"v_add_f32 v{q0}, v{q0}, v{q1}", "s_nop 0"]
        for dpp in ("quad_perm:[1,0,3,2]", "quad_perm:[2,3,0,1]", "row_half_mirror"):
            o += [f"v_add_f32_dpp v{s1}, v{s0}, v{s0} {dpp} row_mask:0xf bank_mask:0xf",
                  f"v_add_f32_dpp v{q1}, v{q0}, v{q0} {dpp} row_mask:0xf bank_mask:0xf", "s_nop 0"]
            s0, s1, q0, q1 = s1, s0, q1, q0
        mean, var, mb, rs = TM + 4, TM + 5, TM + 6, TM + 7
        o += stats_math(s0, q0, mean, var, mb, rs)
        o += [f"v_mul_f32 v{A_}, {f32(LOG2E)}, v{rs}", f"v_mul_f32 v{C_}, v{mb}, v{A_}"]
        return o
    def ln_norm(rho):
        o = []
        R = RAW[rho]
        tp = [T0 + 10, T0 + 12]
        for j in range(9):
            for k in range(0, 4, 2):
                for kk in range(2):
                    r = R + 4 * j + k + kk; t = tp[kk]
                    o += [f"v_lshlrev_b32 v{t}, 16, v{r}", f"v_and_b32 v{t+1}, 0xffff0000, v{r}"]
                for kk in range(2):
                    t = tp[kk]
                    o.append(f"v_pk_fma_f32 {v(t,2)}, {v(t,2)}, {v(A_,2)}, {v(C_,2)} op_sel_hi:[1,0,0] neg_lo:[0,0,1] neg_hi:[0,0,1]")
                for kk in range(2):
                    r = R + 4 * j + k + kk; t = tp[kk]
                    o.append(f"v_cvt_pk_bf16_f32 v{r}, v{t}, v{t+1}")
            o.append(dict(i=f"ds_write_b128 v{vXW}, {v(R+4*j,4)} offset:{j*2048}", lds="xw"))
        return o
    def xn_read(rho, ks):
        return dict(i=f"ds_read_b128 {v(XF(rho,ks),4)}, v{(vXR0, vXR1)[ks & 1]} offset:{ks*1024}", lds=("xf", rho, ks))
    NT = 6; NS1 = 3 * NT; NU = 9 * NT; NG = 18 * NT
    def w1_unit(U, hi):
        T, gam = divmod(U, 9)
        return [f"s_add_u32 m0, s{sM0G}, {RING + gam * 8192 + hi * 4096}",
                f"s_add_u32 s{sOFF}, s{sFB2}, {(gam * 64 + hi * 32) * 9216 + T * 128}",
                dict(i=f"buffer_load_dwordx4 v{vW1}, {s(sW1,4)}, s{sOFF} offen lds", vm=("w1", (U - 1) // 3))]
    def units_of(sg): return range(max(0, 3 * sg + 1), min(NU, 3 * sg + 4))
    def frag(g, aa): return FR + ((g % 4) * 2 + aa) * 4
    def greads(g):
        if g >= NG: return []
        T, ks = divmod(g, 18)
        o = []
        for aa in range(2):
            f = frag(g, aa); hi = ks >= 8
            off = RING + ks * 4096 - (0x8000 if hi else 0)
            for nu in range(2):
                o.append(dict(i=f"ds_read_b64_tr_b16 {v(f+2*nu,2)}, v{RA[aa + 2*hi]} offset:{off + nu*512}", lds=("A", g, aa)))
        return o
    def bias_reads(T):
        return [dict(i=f"ds_read_b128 {v(BI+4*aa,4)}, v{vBIAS} offset:{T*256 + aa*64}", lds=("B", T)) for aa in range(2)]
    vACTH, vAR, vARH = 243, 240, 241
    def mish_tile(T, ph):
        o = []
        p = POS(2 * T + ph)
        for mt16 in range(2):
            for aa in range(2):
                o += mish_group(PEND + (aa * 2 + mt16) * 4, AO + mt16 * 4 + aa * 2, TM)
            o.append(dict(i=f"ds_write_b128 v{vACTH if p >= 4 else vACTW}, {v(AO+mt16*4,4)} offset:{mt16*1024 + (p - 4 if p >= 4 else p)*8192}", lds="aw"))
        return o
    def cost(x):
        t = x if isinstance(x, str) else x.get("i", "")
        return 2 if t.startswith(("v_exp", "v_rcp")) else 1 if t.startswith("v_") else 0
    def take(q, budget):
        out = []
        while q and budget > 0:
            budget -= cost(q[0]); out.append(q.pop(0))
        while q and cost(q[0]) == 0: out.append(q.pop(0))
        return out
    def w2_dma(st, ph):
        o = []
        for n in range(6):
            q = 24 * ph + 4 * n
            o.append([f"s_add_u32 m0, s{sM0G}, {(st % 3) * SLOT + q * 1024}",
                      f"s_add_u32 s{sOFF}, s{sW2A}, {q * 8 * 1152 + st * 128}",
                      dict(i=f"buffer_load_dwordx4 v{vW2}, {s(sW2,4)}, s{sOFF} offen lds", vm=("w2", st))])
        return o
    vRBs = [vRB, 228, 229]
    PD2 = 3
    def frag2(g): return FR2 + (g % 5) * 4
    def b_reads(st, i):
        f = frag2(12 * st + i)
        return [dict(i=f"ds_read_b64_tr_b16 {v(f+2*nu,2)}, v{vRBs[st % 3]} offset:{i*4096 + nu*2048}", lds=("W", st, i)) for nu in range(2)]
    def act_reads(kap):
        p = POS(kap)
        return [dict(i=f"ds_read_b128 {v(AFR(mu,kap),4)}, v{vARH if p >= 4 else vAR} offset:{mu*1024 + (p - 4 if p >= 4 else p)*8192}", lds=("act", kap)) for mu in range(4)]
    def epi_valu():
        o = []
        for pr in range(2):
            p = AO + pr * 4
            for mu in range(2):
                src = ACC2 + (pr * 2 + mu) * 4
                o.append(f"v_cvt_pk_bf16_f32 v{p+2*mu}, v{src}, v{src+1}")
                o.append(f"v_cvt_pk_bf16_f32 v{p+2*mu+1}, v{src+2}, v{src+3}")
        o.append("s_nop 0")
        for pr in range(2):
            p = AO + pr * 4
            o.append(f"v_permlane16_swap_b32 v{p}, v{p+2}")
            o.append(f"v_permlane16_swap_b32 v{p+1}, v{p+3}")
        return o
    def epi_store(st):
        o = []
        for pr in range(2):
            o.append(f"s_mov_b32 s{sOFF2}, {pr * PTB + st * 4096}")
            o.append(dict(i=f"buffer_store_dwordx4 {v(AO+pr*4,4)}, v{vST}, {s(sWS,4)}, s{sOFF2} offen sc1", vm=("st", st)))
        return o
    vFA, vFD = 230, 252
    def publish(level):
        return [f"s_add_u32 s{sT}, s{sTAG}, {level}", f"v_mov_b32 v{vFD}, s{sT}",
                dict(i=f"buffer_store_dwordx2 {v(vFD,2)}, v{vFA}, {s(sWS,4)}, 0 offen sc1", vm="pf")]

    def body(ph):
        X = Emit(a); X.lg.q = list(E.lg.q); X.vm.q = list(E.vm.q)
        n0 = ST.n; names0 = list(ST.names)
        def barrier(needl, needv, name=None):
            X.one(dict(needl=needl, needv=needv))
            a("s_barrier")
            if name: ST.stamp(name, X)
        if ph == 1: a("s_setprio 1")
        st0 = ln_stats(0)
        bl = [[dict(i=f"buffer_load_ushort v{vBV}, v{vBE}, {s(sA,4)}, s{sFB2} offen", vm="bias")]]
        NX = opt.get("nx", 6)
        X.run(st0[:12] + spread(st0[12:], [[x_load(1, j)] for j in range(NX)]))
        ST.stamp("stats0", X)
        n0_ = ln_norm(0)
        cut = int(len(n0_) * opt.get("xcut", 0.4))
        NU0 = opt.get("nu0", 3)
        P1 = opt.get("p1dma", 1)
        own = (lambda us: [w1_unit(U, h) for U in us for h in range(2)] if ph else []) if P1 else (lambda us: [w1_unit(U, ph) for U in us])
        X.run(spread(n0_[:cut], [[x_load(1, j)] for j in range(NX, 9)]) + spread(n0_[cut:], bl + own(range(0, NU0))))
        a(f"v_lshlrev_b32 v{vBE}, 2, v0")
        a(f"v_add_u32 v{vBE}, {BIAS}, v{vBE}")
        vTA = T0 + 4
        def taddr(dst, src):
            a(f"v_mul_u32_u24 v1, 13108, v{src}")
            a("v_lshrrev_b32 v1, 16, v1")
            a("v_mul_u32_u24 v2, 5, v1")
            a(f"v_sub_u32 v2, v{src}, v2")
            a("v_mul_u32_u24 v1, 9216, v1")
            a("v_lshl_add_u32 v1, v2, 7, v1")
            a(f"v_mov_b32 v2, {OOB}")
            a(f"v_cmp_gt_u32 vcc, 360, v{src}")
            a(f"s_and_b32 s{sXR0}, s{sMT}, 7")
            a(f"s_mul_i32 s{sXR0}, s{sXR0}, {72*9216}")
            a(f"v_cndmask_b32 v{dst}, v2, v1, vcc")
            a(f"s_add_u32 s{sXR0}, s{sXR0}, s{sFB2}")
        T1 = opt.get("touch1", 3)
        if T1 in (1, 2) or (T1 == 3 and ph == 1): taddr(vTA, 0)
        if T1 == 3 and ph == 1:
            a("v_subrev_u32 v3, 256, v0")
            taddr(4, 3)
        ST.stamp("norm0", X)
        rds = [[xn_read(0, ks)] for ks in range(18)]
        NU1 = opt.get("nu1", 6)
        dm1 = own(range(NU0, NU1)); dm2 = own(range(NU1, 9))
        n1 = ln_norm(1)
        def misc():
            X.one(dict(i=f"v_lshlrev_b32 v{vBV}, 16, v{vBV}", needv=["bias"]))
            a(f"v_mul_f32 v{vBV}, {f32(LOG2E)}, v{vBV}")
            X.one(dict(i=f"ds_write_b32 v{vBE}, v{vBV}", lds="bw"))
            if T1 == 1: X.one(tch)
        tch = dict(i=f"buffer_load_dword v{vJUNK}, v{vTA}, {s(sW1,4)}, s{sXR0} offen offset:128", vm="t")
        if ph == 0 and opt.get("early", 0):
            a(X.lg.drain()); a("s_barrier")
            ST.stamp("barA")
            s1 = ln_stats(1)
            X.run(spread(s1[:60], rds) + spread(s1[60:], dm1 + dm2))
            misc()
            ST.stamp("stats1", X)
            a(X.lg.drain()); a("s_barrier")
            X.run(n1)
        else:
            X.run(spread(ln_stats(1), dm1))
            misc()
            ST.stamp("stats1", X)
            JP = opt.get("jp", (0, 9))[ph]
            JS = max(JP, opt.get("js", 4))
            if JP:
                a("s_setprio 0")
                X.run(spread([x for x in n1[:17 * JP] if isinstance(x, str)], dm2))
            else: X.run(flat(dm2))
            if T1 == 3 and ph == 1:
                X.one(dict(i=f"buffer_load_dword v{vJUNK}, v4, {s(sW1,4)}, s{sXR0} offen offset:128", vm="t"))
                X.one(tch)
            a(X.lg.drain()); a("s_barrier")
            ST.stamp("barA")
            a("s_setprio 0")
            first = [x for x in n1[17 * JP:17 * JS] if isinstance(x, str)]
            wr = [x for x in n1[:17 * JS] if not isinstance(x, str)]
            X.run(spread(first[:len(first) * 3 // 4], rds) + first[len(first) * 3 // 4:] if first else flat(rds))
            a(X.lg.drain()); a("s_barrier")
            X.run(spread(n1[17 * JS:], [[w] for w in wr]) if n1[17 * JS:] else wr)
        a(f"v_add_u32 v{vACTH}, 0x8000, v{vACTW}")
        a(f"s_and_b32 s{sT}, s{sW}, 1")
        a(f"s_lshl_b32 s{sT}, s{sT}, 12")
        a(f"s_add_u32 s{sT}, s{sT}, {ACT}")
        a(f"v_add_u32 v{vAR}, s{sT}, v{vL16}")
        a(f"v_add_u32 v{vARH}, 0x8000, v{vAR}")
        ST.stamp("norm1", X)
        barrier(["xw"], [("w1", -1)], "Bx")
        def burst1(st, bar, extra=()):
            T, t = divmod(st, 3)
            mfs = []
            for kl in range(6):
                ks = 6 * t + kl; g = 18 * T + ks
                for aa in range(2):
                    for mt16 in range(2):
                        acc = ACC + (aa * 2 + mt16) * 4
                        src = v(BI + 4 * aa, 4) if ks == 0 else v(acc, 4)
                        dst = acc if ks < 17 else PEND + (aa * 2 + mt16) * 4
                        nl = [("A", g, 0), ("A", g, 1)]
                        if ks == 0: nl.append(("B", T))
                        if T == 0: nl.append(("xf", mt16, ks))
                        mfs.append((kl, dict(i=f"{M16} {v(dst,4)}, {v(frag(g,aa),4)}, {v(XF(mt16,ks),4)}, {src}", needl=nl)))
            if opt.get("chain1"):
                m2 = []
                for k0 in range(0, 6, 2):
                    for r in range(4): m2 += [(k0 + 1 if r == 3 else k0, mfs[4 * k0 + r][1]), (k0 + 1 if r == 3 else k0, mfs[4 * k0 + 4 + r][1])]
                mfs = m2
            rd = [(kl, r) for kl in range(6) for r in greads(6 * st + 2 + kl)]
            extra = list(extra)
            n = len(mfs)
            nb = opt.get("nb", 2) if ph == 0 else 0
            last = n if ph == 0 else n - opt.get("tail", 3)
            a("s_setprio 0")
            for mi, (kl, m) in enumerate(mfs):
                X.one(m)
                if ph == 0 and mi == nb - 1 and bar: bar()
                if ph == 1 and mi == opt.get("prio_at", 12): a("s_setprio 1")
                if mi >= nb - 1:
                    left = max(1, last - mi)
                    cnt = -(-len(rd) // left)
                    is_last_of_k = (mi + 1 == n) or mfs[mi + 1][0] != kl
                    for _ in range(min(cnt, 2)):
                        if rd and (rd[0][0] - 2 < kl or (rd[0][0] - 2 == kl and is_last_of_k)):
                            X.one(rd.pop(0)[1])
                if extra: X.one(extra.pop(0))
            X.run([r for _, r in rd])
            X.run(extra)
            a(f"s_setprio {opt.get('vprio', 2) if ph == 0 else max(1, opt.get('vprio', 2))}")
        def valu1(items, dmas):
            X.run(spread(items, dmas) if items else flat(dmas))
        xr1 = [xn_read(1, ks) for ks in range(18)]
        X.run(xr1[:3] + bias_reads(0) + greads(0) + greads(1))
        mq = []
        LS = NS1 - 1
        def lastl(sg):
            g = min(NG - 1, 6 * sg + 7)
            return [("A", g, 0), ("A", g, 1), ("xf", 1, 17)] + (["aw", ("act", 2)] if sg == LS - 1 else [])
        for st in range(NS1):
            T, t = divmod(st, 3)
            nm = f"B{st}" if t == 0 else None
            us = [9] if st == 0 else list(units_of(st + 2))
            dm = [w1_unit(U, ph) for U in us]
            bar = lambda: barrier(lastl(st - 1) if st else [("A", 1, 1)], [("w1", st)], nm)
            br = [[r] for r in bias_reads(T + 1)] if (t == 1 and T < NT - 1) else []
            q = st - (LS - 2) - ph
            if 0 <= q < 2: br = br + [[r] for kap in range(3 * q, 3 * q + 3) for r in act_reads(kap)]
            if st == 0 and T1 == 2: br = br + [[tch]]
            if st == 2 and opt.get("tlb", 0):
                br = br + [[f"s_mov_b32 s{sT}, {PTB * ph}", dict(i=f"buffer_load_dword v{vJUNK}, v{vST}, {s(sWS,4)}, s{sT} offen", vm="t")]]
            if ph == 1 and st == 1:
                br = br + [[f"v_mov_b32 v{TM}, 0", dict(i=f"buffer_load_dwordx2 {v(vFD,2)}, v{TM}, {s(sDBG,4)}, 0 offen sc1", vm="tg")]]
            if ph == 0:
                burst1(st, bar, xr1[3:] if st == 0 else ())
                if st == LS: break
                fresh = (t == 2)
                if fresh: mq.extend(mish_tile(T, 0))
                items = take(mq, 10 ** 6 if t == 1 else opt.get("bf", 40))
                if fresh and items:
                    for g in dm[:2]: X.run(g)
                    a("s_nop 1" if len(dm) >= 2 else "s_nop 7")
                    dm = dm[2:]
                valu1(items, dm + br)
            else:
                fresh = (t == 0 and st > 0)
                if fresh: mq.extend(mish_tile(T - 1, 1))
                items = take(mq, 10 ** 6 if t == 2 else opt.get("bf", 40))
                if st == 0: items = xr1[3:]
                if fresh and items: a("s_nop 7")
                k = opt.get("k1", 4) if st else 0
                X.run(items[:k])
                bar()
                if st == LS: dm = w2_dma(0, 1)
                valu1(items[k:], dm + br)
                burst1(st, None)
        assert not mq
        for k in (1, 2): a(f"v_add_u32 v{vRBs[k]}, {k*SLOT}, v{vRB}")
        a(f"v_mov_b32 v{vFA+1}, {OOB}")
        a(f"v_lshl_add_u32 v{vFA}, v{vL16}, 3, s{sPFA}")
        a(f"v_cmp_gt_u32 vcc, 64, v{vL16}")
        a("s_nop 1")
        a(f"v_cndmask_b32 v{vFA}, v{vFA+1}, v{vFA}, vcc")
        if ph == 1:
            Lt = a.newlabel("Ltg")
            cond = [f"v_readfirstlane_b32 s{sTAG+1}, v{vFD+1}", f"v_readfirstlane_b32 s{sTAG}, v{vFD}", f"s_cmp_lg_u32 s{sTAG+1}, 0"]
            X.one(dict(needv=["tg"]))
            X.run(cond); a(f"s_cbranch_scc1 {Lt}")
            a(f"v_mov_b32 v{TM}, 0")
            poll(a, [f"buffer_load_dwordx2 {v(vFD,2)}, v{TM}, {s(sDBG,4)}, 0 offen sc1"], cond, "i")
            a.label(Lt)
        a("s_nop 3")
        early = [[r] for kap in range(6, 9) for r in act_reads(kap)]
        if ph == 0: early = w2_dma(0, 0) + early
        mt = mish_tile(NT - 1, ph)
        X.run(spread(mt[:70], early) + mt[70:])
        a(X.lg.drain())
        barrier([], [("w2", 0)], "G2 start")
        late = [r for kap in range(9, 12) for r in act_reads(kap)]
        def burst2(st, embed_barrier, extra=(), xbar=None):
            extra = list(extra)
            a("s_setprio 0")
            CH = opt.get("chain2", 2)
            seq = [(i0 + c, mu) for i0 in range(0, 12, CH) for mu in range(4) for c in range(CH)]
            rd = [(i, r) for i in range(PD2, 12) for r in b_reads(st, i)]
            lastuse = {i: max(n for n, (ii, _) in enumerate(seq) if ii == i) for i in range(12)}
            for n, (i, mu) in enumerate(seq):
                acc = ACC2 + mu * 4
                src = "0" if i == 0 else v(acc, 4)
                nl = [("W", st, i)] + ([("act", i)] if st == 0 else [])
                X.one(dict(i=f"{M16} {v(acc,4)}, {v(frag2(12*st+i),4)}, {v(AFR(mu,i),4)}, {src}", needl=nl))
                if rd and (n % 2 == 0 or CH > 1) and (rd[0][0] - 5 < 0 or lastuse[rd[0][0] - 5] <= n) and rd[0][0] <= i + PD2 + CH - 1: X.one(rd.pop(0)[1])
                elif extra: X.one(extra.pop(0))
                if xbar and n == 31: xbar()
                if embed_barrier and n == 40:
                    assert not rd
                    a("s_setprio 1")
                    embed_barrier()
            a("s_setprio 2")
            assert not extra and not rd
        def pre2(st): return [r for i in range(PD2) for r in b_reads(st, i)]
        LAG = opt.get("lag", 0)
        for st in range(9):
            nxtv = ([("w2", st + 1)] if st < 8 else []) + [("st", st - LAG - 1 + 0)]
            lastw = [("W", st, 11)]
            dm = w2_dma(st + 2, ph) if st + 2 <= 8 else []
            nm = f"G2 B{st+1}" if (st % 2 == 1 or opt.get("allg2")) else None
            def vphase(est):
                d = list(dm)
                for g in d[:2]: X.run(g)
                if len(d) < 2: a("s_nop 7")
                valu1(epi_valu(), d[2:])
                X.run(epi_store(est))
            xb = lambda: barrier([("act", 11)], [])
            if ph == 0:
                X.run(pre2(st))
                if st == 0: X.run(flat(w2_dma(1, 0)))
                burst2(st, None, late if st == 0 else (), xb if st == 0 else None)
                vphase(st)
                if st < 8: barrier(lastw, nxtv, nm)
            else:
                if st == 0:
                    valu1(late, w2_dma(1, 1))
                    xb()
                    X.run(flat(dm))
                else:
                    lvl = st - 1 - LAG
                    vphase(st - 1)
                    if lvl in opt.get("levels", (1, 2, 3, 4, 5, 6)): X.run(publish(lvl))
                    if lvl == 7 and opt.get("l7", 1):
                        X.run([f"s_lshl_b32 s{sT}, s{sMT}, 7", f"s_lshl_b32 s{sT+1}, s{sSL}, 3", f"s_add_u32 s{sT}, s{sT}, s{sT+1}", f"s_add_u32 s{sT}, s{sT}, {WS_PF}",
                               f"s_cmp_eq_u32 s{sW}, 4", f"s_cselect_b32 s{sT}, s{sT}, {OOB}", f"v_mov_b32 v{vFA}, {OOB}", f"v_writelane_b32 v{vFA}, s{sT}, 0"] + publish(7))
                X.run(pre2(st))
                burst2(st, (lambda: barrier(lastw, nxtv, nm)) if st < 8 else None)
        if ph == 1:
            dm = []
            vphase(8)
        ST.stamp("G2 end", X)
        if ph == 0: a(f"s_branch {Lfin}")
        if ph == 1: return
        ST.n = n0; ST.names = names0
    Lp1 = a.newlabel("Lph1")
    a(f"s_cmp_lg_u32 s{sPH}, 0")
    a(f"s_cbranch_scc1 {Lp1}")
    Lfin = a.newlabel("Lfin")
    body(0)
    a.label(Lp1)
    body(1)
    a.label(Lfin)
    a("s_setprio 0")
    a(f"s_load_dwordx2 s[{sW1}:{sW1+1}], s[0:1], 80")
    a(f"v_lshrrev_b32 v40, 9, v{vL16}")
    a(f"v_mul_u32_u24 v41, {PSL - 512}, v40")
    a(f"v_add_u32 v41, v41, v{vL16}")
    a(f"s_lshl_b32 s{sT}, s{sMT}, 2")
    a(f"s_add_u32 s{sT}, s{sT}, s{sMG}")
    a(f"s_mul_i32 s{sT+3}, s{sT}, {PTB}")
    a(f"s_mul_i32 s{sT}, s{sT}, 36864")
    a(f"s_lshl_b32 s{sT+1}, s{sSL}, 1")
    a(f"s_add_u32 s{sT+1}, s{sT+1}, s{sPH}")
    a(f"s_add_u32 s{sT+1}, s{sT+1}, 48")
    a(f"s_lshl_b32 s{sT+2}, s{sT+1}, 9")
    a(f"s_add_u32 s{sT+2}, s{sT+2}, s{sT+3}")
    a(f"v_add_u32 v41, s{sT+2}, v41")
    a(f"v_mov_b32 v43, {OOB}")
    a(f"v_cmp_gt_u32 vcc, 512, v{vL16}")
    a(f"v_mul_u32_u24 v44, 72, v{vL16}")
    a(f"s_lshl_b32 s{sT+1}, s{sT+1}, 4")
    a(f"s_add_u32 s{sT+1}, s{sT+1}, s{sT}")
    a(f"v_add_u32 v44, s{sT+1}, v44")
    a("v_cndmask_b32 v42, v43, v41, vcc")
    a("v_cndmask_b32 v44, v43, v44, vcc")
    a(f"s_lshl_b32 s{sT}, s{sMT}, 7")
    a(f"s_add_u32 s{sT}, s{sT}, {WS_PF}")
    a(f"v_bfe_u32 v45, v{vL16}, 4, 4")
    a(f"v_lshl_add_u32 v45, v45, 3, s{sT}")
    for k in range(8): a(f"v_mov_b32 v{48+k}, 0")
    a("s_mov_b32 s66, 0x00003f80")
    a("s_mov_b32 s67, 0x3f800000")
    a("s_waitcnt vmcnt(0) lgkmcnt(0)")
    a("s_barrier")
    srd2(a, sW1, XBYTES)
    Lq = a.newlabel("Lq")
    a(f"s_cmp_lg_u32 s{sW}, 4")
    a(f"s_cbranch_scc1 {Lq}")
    a(f"v_lshrrev_b32 v46, 4, v{vL16}")
    a(f"v_cmp_eq_u32 vcc, s{sSL}, v46")
    a(f"s_add_u32 s{sT}, s{sTAG}, 9")
    a(f"v_mov_b32 v{vFD}, s{sT}")
    a(f"s_cmp_lt_u32 s{sSL}, {4 if opt.get('l7', 1) else 0}")
    a(f"s_cselect_b32 s{sT+1}, 7, 9")
    a("v_cndmask_b32 v46, v43, v45, vcc")
    a(f"buffer_store_dwordx2 {v(vFD,2)}, v46, {s(sWS,4)}, 0 offen sc1")
    poll(a, [f"buffer_load_dwordx2 v[46:47], v45, {s(sWS,4)}, 0 offen sc1"], k7h.flag_cond([46], f"s{sT+1}"), "f", opt.get("fsleep", 6))
    a.label(Lq)
    a("s_barrier")
    ST.stamp("all seen")
    for i in range(6):
        a(f"s_mov_b32 s{sOFF}, {2 * i * PSL}")
        a(f"buffer_load_dwordx4 {v(4*i,4)}, v41, {s(sWS,4)}, s{sOFF} offen sc1")
    a(f"s_mov_b32 s{sOFF}, {12 * PSL}")
    a(f"buffer_load_dwordx4 v[24:27], v42, {s(sWS,4)}, s{sOFF} offen sc1")
    for i in range(6):
        a(f"s_waitcnt vmcnt({6-i})")
        for k in range(4):
            a(f"v_dot2c_f32_bf16 v{48+2*k}, s66, v{4*i+k}")
            a(f"v_dot2c_f32_bf16 v{49+2*k}, s67, v{4*i+k}")
    a(f"s_mov_b32 s{sT}, {f32(LN2)}")
    a("s_nop 1")
    for k in range(8): a(f"v_mov_b32 v{56+k}, v{48+k}")
    for k in range(8): a(f"v_permlane32_swap_b32 v{48+k}, v{56+k}")
    for k in range(8): a(f"v_add_f32 v{48+k}, v{48+k}, v{56+k}")
    a("s_waitcnt vmcnt(0)")
    for k in range(4):
        a(f"v_lshlrev_b32 v{56+2*k}, 16, v{24+k}")
        a(f"v_and_b32 v{57+2*k}, 0xffff0000, v{24+k}")
    for k in range(8): a(f"v_fmac_f32 v{56+k}, s{sT}, v{48+k}")
    for k in range(4): a(f"v_cvt_pk_bf16_f32 v{28+k}, v{56+2*k}, v{57+2*k}")
    a(f"buffer_store_dwordx4 v[28:31], v44, {s(sW1,4)}, 0 offen")
    if opt.get("stamps"): a("s_waitcnt vmcnt(0)")
    ST.stamp("end"); ST.cyc(1)
    ST.flush(sWS, sW)
    a("s_endpgm")
    a.label(Lhelp)
    k7h.helper(a, opt, Lend)
    a.label(Lend)
    a("s_endpgm")
```

```python
from common import *
from k_mlp import Emit, M16

KB = 0; KCH = 8448; KC1 = 4096 + 128
UB = 9 * 8448; UCH = 9216; UCP = 4576
STB = 159744
WS_UF = WS_ZF + 1536
sX, sK, sV, sWS, sSK, sKF, sDD, sOUT, sDBG = 8, 12, 16, 20, 24, 40, 44, 48, 52
sH, sW, sMG, sPH, sQ, sKC, sZO, sI = 28, 30, 31, 32, 33, 34, 35, 36
sT = 56; sEX = 60; sOFF = 62
sCNT, sTAG = 5, 6
OOB = "0x7ffffff0"
vL16, vLN, vT16 = 239, 241, 238
NSL = 12

def flag_cond(regs, level):
    lv = level if isinstance(level, str) else str(level)
    o = [f"s_add_u32 s{sT+3}, s{sTAG}, {lv}"]
    for r in regs:
        o += [f"v_subrev_u32 v{r}, s{sT+3}, v{r}", f"v_xor_b32 v{r+1}, s{sTAG+1}, v{r+1}", f"v_lshrrev_b32 v{r}, 4, v{r}", f"v_or_b32 v{r}, v{r}, v{r+1}"]
    for r in regs[1:]: o.append(f"v_or_b32 v{regs[0]}, v{regs[0]}, v{r}")
    return o + [f"v_cmp_ne_u32 vcc, 0, v{regs[0]}", "s_cmp_eq_u64 vcc, 0"]

def helper(a, opt, Lend):
    from k7 import srd2, poll, stats_math
    ST = Stamps(a, opt.get("stamps"), 1)
    ST.n = 1; ST.names = ["start"]
    for d, off in ((sX, 0), (sK, 8), (sV, 16), (sSK, 24), (sKF, 32), (sDD, 40), (sOUT, 80), (sDBG, 88), (sWS, 96)):
        a(f"s_load_dwordx2 s[{d}:{d+1}], s[0:1], {off}")
    a("v_lshrrev_b32 v1, 6, v0")
    a(f"v_and_b32 v{vLN}, 63, v0")
    a(f"v_readfirstlane_b32 s{sW}, v1")
    a(f"s_sub_u32 s{sH}, s2, 192")
    a(f"v_lshlrev_b32 v{vL16}, 4, v{vLN}")
    a(f"v_lshlrev_b32 v{vT16}, 4, v0")
    a(f"s_and_b32 s{sMG}, s{sW}, 3")
    a(f"s_lshr_b32 s{sPH}, s{sW}, 2")
    a("s_waitcnt lgkmcnt(0)")
    srd2(a, sDBG, 256); srd2(a, sK, XBYTES); srd2(a, sV, XBYTES); srd2(a, sX, XBYTES); srd2(a, sWS, WS_END)
    srd2(a, sSK, 576 * 8); srd2(a, sKF, XBYTES); srd2(a, sDD, 576 * 2); srd2(a, sOUT, XBYTES)
    def one_lane_flag(addr_sgpr, level=0):
        a(f"v_mov_b32 v1, {OOB}")
        a(f"s_add_u32 s{sT+3}, s{sTAG}, {level}")
        a(f"v_mov_b32 v2, s{sT+3}")
        a(f"v_mov_b32 v3, s{sTAG+1}")
        a(f"v_writelane_b32 v1, s{addr_sgpr}, 0")
        a(f"buffer_store_dwordx2 v[2:3], v1, {s(sWS,4)}, 0 offen sc1")
    Lr = a.newlabel("Ltag")
    a(f"s_lshl_b32 s{sT}, s{sH}, 3")
    a(f"s_add_u32 s{sT}, s{sT}, s{sW}")
    a(f"s_cmp_lg_u32 s{sT}, 7")
    a(f"s_cbranch_scc1 {Lr}")
    a(f"s_memrealtime s[{sT}:{sT+1}]")
    a(f"v_mov_b32 v1, {OOB}")
    a("v_writelane_b32 v1, 0, 0")
    a("s_waitcnt lgkmcnt(0)")
    a(f"s_lshl_b64 s[{sT}:{sT+1}], s[{sT}:{sT+1}], 4")
    a(f"s_bitset1_b32 s{sT+1}, 31")
    a(f"v_mov_b32 v2, s{sT}")
    a(f"v_mov_b32 v3, s{sT+1}")
    a(f"buffer_store_dwordx2 v[2:3], v1, {s(sDBG,4)}, 0 offen sc1")
    a.label(Lr)
    if opt.get("ctouch", 1):
        Lc = a.newlabel("Lct")
        a(f"s_cmp_lg_u32 s{sW}, 6")
        a(f"s_cbranch_scc1 {Lc}")
        a(f"s_getpc_b64 s[{sT}:{sT+1}]")
        Lh = a.newlabel("Lhere"); a.label(Lh)
        a(f"s_sub_u32 s{sT}, s{sT}, {Lh}-{opt['kname']}")
        a(f"s_subb_u32 s{sT+1}, s{sT+1}, 0")
        a(f"s_lshr_b32 s{sT+2}, s{sH}, 3")
        a(f"s_lshl_b32 s{sT+2}, s{sT+2}, 13")
        a(f"v_lshl_add_u32 v4, v{vLN}, 7, s{sT+2}")
        a(f"v_add_u32 v5, 0x10000, v4")
        a(f"v_min_u32 v4, {Lend}-{opt['kname']}, v4")
        a(f"v_min_u32 v5, {Lend}-{opt['kname']}, v5")
        a(f"global_load_dword v140, v4, s[{sT}:{sT+1}]")
        a(f"global_load_dword v140, v5, s[{sT}:{sT+1}]")
        a.label(Lc)
    KL, VL, SL_, BN, XL = 0, 41984, 80896, 86016, 118784
    a(f"s_mul_i32 s{sT}, s{sH}, 36864")
    a(f"s_sub_u32 s{sT+1}, s{sT}, 4608")
    a(f"v_add_u32 v4, s{sT+1}, v{vT16}")
    a(f"s_sub_u32 s{sT+1}, s{sT}, 1152")
    a(f"v_add_u32 v5, s{sT+1}, v{vT16}")
    a(f"s_lshl_b32 s{sT+2}, s{sW}, 10")
    def dma(vaddr, srd_, lds, nwaves=8, so="0"):
        L = None
        if nwaves < 8:
            L = a.newlabel("Ld"); a(f"s_cmp_ge_u32 s{sW}, {nwaves}"); a(f"s_cbranch_scc1 {L}")
        a(f"s_add_u32 m0, s{sT+2}, {lds}")
        a("s_nop 0")
        a(f"buffer_load_dwordx4 v{vaddr}, {s(srd_,4)}, {so} offen lds")
        if L: a.label(L)
    for i in range(6):
        dma(4, sK, KL + i * 8192, 8 if i < 5 else 1)
        a("v_add_u32 v4, 8192, v4")
        if i < 5:
            dma(5, sV, VL + i * 8192, 8 if i < 4 else 6)
            a("v_add_u32 v5, 8192, v5")
    dma(vT16, sSK, SL_, 5)
    a("v_mov_b32 v4, 0")
    KR, VR, KU, WU, UU, OUT, SKR = 12, 24, 34, 58, 66, 84, 8
    vKA, vBW, vBR, vSA, vID = 116, 117, 118, 119, 120
    a(f"s_lshl_b32 s{sT}, s{sW}, 12")
    a(f"s_add_u32 s{sT+1}, s{sT}, {BN}")
    a(f"v_lshl_add_u32 v{vBW}, v{vL16}, 2, s{sT+1}")
    a(f"v_add_u32 v{vBR}, s{sT+1}, v{vL16}")
    a(f"s_lshl_b32 s{sT+1}, s{sH}, 2")
    a(f"s_sub_u32 s{sT+1}, 252, s{sT+1}")
    a(f"s_mul_i32 s{sT+1}, s{sT+1}, 18432")
    a(f"s_add_u32 s{sOFF}, s{sT}, s{sT+1}")
    a(f"s_add_u32 s{sOFF}, s{sOFF}, {WS_U}")
    a(f"v_mov_b32 v{vID}, v0")
    a(f"s_mov_b32 s{sI}, s{sW}")
    a("s_movk_i32 s63, 3641")
    a("s_waitcnt vmcnt(0)")
    a("s_barrier")
    ST.stamp("in landed")
    a(f"buffer_load_dwordx2 v[6:7], v4, {s(sDBG,4)}, 0 offen sc1")
    a(f"s_mul_i32 s64, s{sH}, 36864")
    a(f"s_lshl_b32 s{sT+2}, s{sW}, 10")
    for i in range(5):
        dma(vT16, sX, XL + i * 8192, 8 if i < 4 else 4, "s64")
        a("s_add_u32 s64, s64, 8192")
    if opt.get("kft", 0):
        a(f"v_lshlrev_b32 v122, 2, v{vT16}")
        a(f"s_lshl_b32 s64, s{sH}, 15")
        a(f"buffer_load_dword v123, v122, {s(sKF,4)}, s64 offen")
    a(f"v_mov_b32 v2, 0"); a("v_mov_b32 v3, 0")
    a(f"v_lshrrev_b32 v121, 1, v{vL16}")
    a(f"v_add_u32 v121, {STB}, v121")
    a("ds_write_b64 v121, v[2:3]")
    Lp = a.newlabel("Lprep"); a.label(Lp)
    a(f"v_mul_u32_u24 v2, s63, v{vID}")
    a("v_lshrrev_b32 v2, 20, v2")
    a("v_mul_u32_u24 v3, 288, v2")
    a(f"v_sub_u32 v3, v{vID}, v3")
    a("v_sub_u32 v2, 3, v2")
    a(f"v_mul_u32_u24 v{vKA}, 9216, v2")
    a(f"v_lshl_add_u32 v{vKA}, v3, 2, v{vKA}")
    a(f"v_lshlrev_b32 v{vSA}, 4, v3")
    a(f"v_add_u32 v{vSA}, {SL_}, v{vSA}")
    a(f"ds_read_b128 {v(SKR,4)}, v{vSA}")
    for r in range(12): a(f"ds_read_b32 v{KR+r}, v{vKA} offset:{KL + r*1152}")
    a("s_waitcnt lgkmcnt(6)")
    for r in range(9): a(f"ds_read_b32 v{VR+r}, v{vKA} offset:{VL + r*1152}")
    for j in range(4):
        for h in range(2):
            src = SKR + 2 * h + (j >> 1)
            a(f"v_lshlrev_b32 v{WU+2*j+h}, 16, v{src}" if j % 2 == 0 else f"v_and_b32 v{WU+2*j+h}, 0xffff0000, v{src}")
    a("s_waitcnt lgkmcnt(9)")
    for r in range(12):
        a(f"v_lshlrev_b32 v{KU+2*r}, 16, v{KR+r}")
        a(f"v_and_b32 v{KU+2*r+1}, 0xffff0000, v{KR+r}")
    for r in range(9): a(f"v_pk_mul_f32 {v(UU+2*r,2)}, {v(KU+2*r,2)}, {v(WU+6,2)}")
    for j in range(1, 4):
        for r in range(9): a(f"v_pk_fma_f32 {v(UU+2*r,2)}, {v(KU+2*(r+j),2)}, {v(WU+2*(3-j),2)}, {v(UU+2*r,2)}")
    a("s_waitcnt lgkmcnt(0)")
    for r in range(9):
        a(f"v_lshlrev_b32 v{KU+2*r}, 16, v{VR+r}")
        a(f"v_and_b32 v{KU+2*r+1}, 0xffff0000, v{VR+r}")
    for r in range(9): a(f"v_pk_mul_f32 {v(UU+2*r,2)}, {v(UU+2*r,2)}, {v(KU+2*r,2)}")
    for h in range(2):
        for cp in range(2):
            o = OUT + (h * 2 + cp) * 4
            for i in range(4):
                top = 7 + cp - 2 * i
                a(f"v_cvt_pk_bf16_f32 v{o+i}, v{UU+2*top+h}, v{UU+2*(top-1)+h}")
            a(f"ds_write_b128 v{vBW}, {v(o,4)} offset:{(h*2+cp)*16}")
    for k in range(4): a(f"ds_read_b128 {v(100+4*k,4)}, v{vBR} offset:{k*1024}")
    a(f"v_add_u32 v{vID}, 512, v{vID}")
    for k in range(4):
        a(f"s_waitcnt lgkmcnt({3-k})")
        a(f"buffer_store_dwordx4 {v(100+4*k,4)}, v{vL16}, {s(sWS,4)}, s{sOFF} offen offset:{k*1024} sc1")
    a(f"s_add_u32 s{sOFF}, s{sOFF}, 32768")
    a(f"s_add_u32 s{sI}, s{sI}, 8")
    a(f"s_cmp_lt_u32 s{sI}, 18")
    a(f"s_cbranch_scc1 {Lp}")
    ST.stamp("prep done")
    tcond = [f"v_readfirstlane_b32 s{sTAG+1}, v7", f"v_readfirstlane_b32 s{sTAG}, v6", f"s_cmp_lg_u32 s{sTAG+1}, 0"]
    Ltg = a.newlabel("Ltg")
    a("s_waitcnt vmcnt(0)")
    for l in tcond: a(l)
    a(f"s_cbranch_scc1 {Ltg}")
    poll(a, [f"buffer_load_dwordx2 v[6:7], v4, {s(sDBG,4)}, 0 offen sc1"], tcond, "t")
    a.label(Ltg)
    a("s_waitcnt vmcnt(0)")
    a(f"s_load_dwordx2 s[{sK}:{sK+1}], s[0:1], 72")
    a("s_waitcnt lgkmcnt(0)")
    a("s_barrier")
    srd2(a, sK, WBYTES)
    L1 = a.newlabel("Lf")
    a(f"s_cmp_lg_u32 s{sW}, 0")
    a(f"s_cbranch_scc1 {L1}")
    a(f"s_lshl_b32 s{sT}, s{sH}, 3")
    a(f"s_add_u32 s{sT}, s{sT}, {WS_UF}")
    one_lane_flag(sT)
    a.label(L1)
    ST.stamp("U published")
    XR = 200; vXO, vXO4, vSB, SS = 236, 237, 235, 232
    a(f"v_and_b32 v6, 7, v{vLN}")
    a(f"s_lshl_b32 s{sT}, s{sMG}, 3")
    a(f"v_add_u32 v6, s{sT}, v6")
    a(f"v_lshlrev_b32 v{vSB}, 3, v6")
    a(f"v_add_u32 v{vSB}, {STB}, v{vSB}")
    a(f"v_mul_u32_u24 v{vXO}, 1152, v6")
    a(f"v_bfe_u32 v7, v{vLN}, 3, 2")
    a(f"v_lshl_add_u32 v{vXO}, v7, 4, v{vXO}")
    a(f"v_lshrrev_b32 v7, 5, v{vLN}")
    a(f"v_lshl_add_u32 v{vXO}, v7, 7, v{vXO}")
    a(f"s_lshl_b32 s{sT}, s{sPH}, 6")
    a(f"v_add_u32 v{vXO}, s{sT}, v{vXO}")
    a(f"v_add_u32 v8, {XL}, v{vXO}")
    for q in range(5): a(f"ds_read_b128 {v(XR+4*q,4)}, v8 offset:{q*256}")
    a(f"s_mul_i32 s{sT}, s{sH}, 36864")
    a(f"v_add_u32 v9, s{sT}, v{vXO}")
    a(f"v_mov_b32 v7, {OOB}")
    a(f"v_cmp_gt_u32 vcc, 32, v{vLN}")
    a("s_mov_b32 s66, 0x3f803f80")
    for k in range(4): a(f"v_mov_b32 v{12+k}, 0")
    a(f"v_cndmask_b32 v{vXO}, v7, v9, vcc")
    a(f"v_cndmask_b32 v{vXO4}, v9, v7, vcc")
    a("s_waitcnt lgkmcnt(0)")
    a("s_barrier")
    for k in range(4): a(f"v_cndmask_b32 v{XR+16+k}, 0, v{XR+16+k}, vcc")
    CA = 0
    QUADS = list(range(32, 160, 4))
    UL = 160
    vA, vB, vZS, vD0, AD, vS0, vUW, vUS, vDV = 220, 221, 222, 223, 224, 228, 234, 240, 242
    vN, vG, t1_, t2_, t3_, t4_ = 243, 244, 2, 3, 4, 5
    a(f"s_mul_i32 s{sKC}, s{sW}, {KCH}")
    a(f"s_lshl_b32 s{sQ}, s{sH}, 3")
    a(f"s_add_u32 s{sQ}, s{sQ}, s{sW}")
    a(f"s_lshl_b32 s{sT}, s{sQ}, 12")
    for c in range(2):
        a(f"s_add_u32 m0, s{sKC}, {KB + c * KC1}")
        a(f"s_add_u32 s{sOFF}, s{sT}, {4 * c}")
        for pc in range(4): a(f"buffer_load_dwordx4 v{vL16}, {s(sKF,4)}, s{sOFF} offen offset:{pc*1024} lds")
    a(f"s_mul_i32 s{sT}, s{sPH}, {KC1}")
    a(f"s_lshl_b32 s{sT+1}, s{sMG}, 10")
    a(f"s_add_u32 s{sT}, s{sT}, s{sT+1}")
    a(f"s_add_u32 m0, s{sT}, {KB + 8 * KCH}")
    a(f"s_lshl_b32 s{sT}, s{sH}, 12")
    a(f"s_add_u32 s{sT}, s{sT}, s{sT+1}")
    a(f"s_lshl_b32 s{sT+1}, s{sPH}, 2")
    a(f"s_add_u32 s{sT}, s{sT}, s{sT+1}")
    a(f"s_add_u32 s{sT}, s{sT}, {512 * 4096}")
    a(f"buffer_load_dwordx4 v{vL16}, {s(sKF,4)}, s{sT} offen lds")
    a(f"s_lshl_b32 s{sT}, s{sQ}, 1")
    a(f"v_mov_b32 v6, s{sT}")
    a(f"buffer_load_ushort v{vDV}, v6, {s(sDD,4)}, 0 offen")
    a(f"s_lshl_b32 s{sT}, s{sH}, 1")
    a(f"v_mov_b32 v7, s{sT}")
    a(f"buffer_load_ushort v245, v7, {s(sDD,4)}, 0 offen offset:1024")
    a(f"v_and_b32 v{vN}, 15, v{vLN}")
    a(f"v_lshrrev_b32 v{vG}, 4, v{vLN}")
    a(f"v_add_u32 v{t1_}, 1, v{vN}")
    a(f"v_and_b32 v{t2_}, 1, v{t1_}")
    a(f"v_lshrrev_b32 v{t1_}, 1, v{t1_}")
    a(f"v_lshlrev_b32 v{t3_}, 1, v{vG}")
    a(f"v_sub_u32 v{t1_}, v{t1_}, v{t3_}")
    a(f"v_lshlrev_b32 v{t1_}, 3, v{t1_}")
    a(f"v_mul_u32_u24 v{t3_}, {KC1}, v{t2_}")
    a(f"v_add_u32 v{t1_}, v{t1_}, v{t3_}")
    a(f"s_add_u32 s{sT+1}, s{sKC}, {KB + 48}")
    a(f"v_add_u32 v{vA}, s{sT+1}, v{t1_}")
    a(f"v_and_b32 v{t4_}, 1, v{vN}")
    a(f"v_mul_u32_u24 v{t1_}, {UCP}, v{t4_}")
    a(f"v_lshrrev_b32 v{t2_}, 1, v{vN}")
    a(f"v_lshl_add_u32 v{t3_}, v{t2_}, 2, v{vG}")
    a(f"v_lshlrev_b32 v{vZS}, 4, v{t3_}")
    a(f"v_lshl_add_u32 v{vZS}, v{t4_}, 3, v{vZS}")
    a(f"v_sub_u32 v{t3_}, 31, v{t3_}")
    a(f"v_lshl_add_u32 v{t1_}, v{t3_}, 4, v{t1_}")
    a(f"s_mul_i32 s{sT+1}, s{sW}, {UCH}")
    a(f"s_add_u32 s{sT+1}, s{sT+1}, {UB}")
    a(f"v_add_u32 v{vB}, s{sT+1}, v{t1_}")
    a(f"v_lshlrev_b32 v{t1_}, 2, v{vG}")
    a(f"v_sub_u32 v{t1_}, v{vN}, v{t1_}")
    a(f"v_subrev_u32 v{vD0}, 3, v{t1_}")
    a(f"v_lshrrev_b32 v{t1_}, 8, v{vT16}")
    a(f"v_mul_u32_u24 v{vUS}, 18432, v{t1_}")
    a(f"v_and_b32 v{t2_}, 0xf0, v{vT16}")
    a(f"v_add_u32 v{vUS}, v{vUS}, v{t2_}")
    a(f"v_bfe_u32 v{t2_}, v{vT16}, 5, 3")
    a(f"v_mul_u32_u24 v{vUW}, {UCH}, v{t2_}")
    a(f"v_bfe_u32 v{t2_}, v{vT16}, 4, 1")
    a(f"v_mul_u32_u24 v{t2_}, {UCP}, v{t2_}")
    a(f"v_add_u32 v{vUW}, v{vUW}, v{t2_}")
    a(f"v_lshl_add_u32 v{vUW}, v{t1_}, 4, v{vUW}")
    a(f"v_add_u32 v{vUW}, {UB}, v{vUW}")
    a(f"v_lshrrev_b32 v{t1_}, 5, v{vT16}")
    a(f"v_mul_u32_u24 v246, 18432, v{t1_}")
    a(f"v_and_b32 v{t3_}, 16, v{vT16}")
    a(f"v_add_u32 v246, v246, v{t3_}")
    a(f"v_lshl_add_u32 v247, v{t1_}, 4, v{t2_}")
    a(f"v_add_u32 v247, {UB + 8 * UCH}, v247")
    for k in range(4): a(f"v_mov_b32 v{8+k}, 0")
    a(f"v_cmp_gt_u32 vcc, {448*16}, v{vT16}")
    a(f"s_and_saveexec_b64 s[{sEX}:{sEX+1}], vcc")
    a(f"ds_write_b128 v{vUW}, v[8:11] offset:4096")
    a(f"s_mov_b64 exec, s[{sEX}:{sEX+1}]")
    a(f"v_cmp_gt_u32 vcc, {56*16}, v{vT16}")
    a(f"s_and_saveexec_b64 s[{sEX}:{sEX+1}], vcc")
    a(f"ds_write_b128 v247, v[8:11] offset:4096")
    a(f"s_mov_b64 exec, s[{sEX}:{sEX+1}]")
    for k in range(20):
        a(f"v_dot2c_f32_bf16 v{12+2*(k&1)}, s66, v{XR+k}")
        a(f"v_dot2c_f32_bf16 v{13+2*(k&1)}, v{XR+k}, v{XR+k}")
    a("s_nop 2")
    a("v_add_f32 v12, v12, v14")
    a("v_add_f32 v13, v13, v15")
    a("s_nop 1")
    a("v_add_f32_dpp v12, v12, v12 row_ror:8 row_mask:0xf bank_mask:0xf")
    a("v_add_f32_dpp v13, v13, v13 row_ror:8 row_mask:0xf bank_mask:0xf")
    for op in ("v_permlane16_swap_b32", "v_permlane32_swap_b32"):
        a("v_mov_b32 v14, v12"); a("v_mov_b32 v15, v13"); a("s_nop 1")
        a(f"{op} v12, v14"); a(f"{op} v13, v15")
        a("v_add_f32 v12, v12, v14"); a("v_add_f32 v13, v13, v15")
    a("s_mov_b64 exec, 0xff")
    a(f"ds_add_f32 v{vSB}, v12")
    a(f"ds_add_f32 v{vSB}, v13 offset:4")
    a("s_mov_b64 exec, -1")
    a(f"v_mov_b32 v7, {OOB}")
    a(f"s_lshr_b32 s{sT}, s{sH}, 3")
    a(f"s_and_b32 s{sT+1}, s{sH}, 3")
    a(f"s_mul_i32 s{sT+1}, s{sT+1}, {1152*1152}")
    a(f"s_mul_i32 s{sT}, s{sT}, {144*1152}")
    a(f"s_add_u32 s39, s{sT}, s{sT+1}")
    a(f"s_lshl_b32 s{sT}, s{sW}, 11")
    a(f"v_lshl_add_u32 v248, v{vLN}, 7, s{sT}")
    a(f"v_cmp_gt_u32 vcc, 16, v{vLN}")
    a("s_nop 1")
    a("v_cndmask_b32 v248, v7, v248, vcc")
    L2 = a.newlabel("Lf")
    a(f"s_cmp_lg_u32 s{sW}, 0")
    a(f"s_cbranch_scc1 {L2}")
    a(f"v_lshrrev_b32 v4, 1, v{vL16}")
    a(f"v_add_u32 v4, {WS_UF}, v4")
    poll(a, [f"buffer_load_dwordx2 v[2:3], v4, {s(sWS,4)}, 0 offen sc1"], flag_cond([2], 0), "u", 2)
    a.label(L2)
    a("s_barrier")
    ST.stamp("U seen")
    a(f"s_lshl_b32 s{sT}, s{sH}, 8")
    a(f"s_add_u32 s{sT}, s{sT}, {WS_U}")
    for it in range(8):
        a(f"buffer_load_dwordx4 {v(UL+4*it,4)}, v{vUS}, {s(sWS,4)}, s{sT} offen sc1")
        if it < 7: a(f"s_add_u32 s{sT}, s{sT}, {32*18432}")
    a(f"s_lshl_b32 s{sT}, s{sH}, 5")
    a(f"s_add_u32 s{sT}, s{sT}, {WS_U + 128*128}")
    a(f"buffer_load_dwordx4 {v(UL+32,4)}, v246, {s(sWS,4)}, s{sT} offen sc1")
    def a0_setup(dv, sbase):
        for i in range(4):
            a(f"v_add_u32 v250, {i}, v{vD0}")
            a(f"v_cmp_eq_u32 vcc, 0, v250")
            a(f"v_max_i32 v251, 0, v250")
            a(f"v_lshl_add_u32 v{vS0+i}, v251, 2, s{sbase}")
            a(f"v_cndmask_b32 v{AD+i}, 0, v{dv}, vcc")
    a("s_waitcnt vmcnt(9)")
    a(f"s_sub_u32 s{sT}, 8, s{sW}")
    a(f"s_lshl_b32 s{sT+2}, s{sW}, 6")
    a(f"s_mul_i32 s64, s{sT}, {KCH}")
    a(f"s_add_u32 s64, s64, s{sT+2}")
    a(f"s_mul_i32 s65, s{sT}, {UCH}")
    a(f"s_add_u32 s65, s65, s{sT+2}")
    a(f"s_lshl_b32 s66, s{sW}, 4")
    a(f"v_add_u32 v{vA}, s64, v{vA}")
    a(f"v_add_u32 v{vB}, s65, v{vB}")
    a(f"v_add_u32 v{vD0}, s66, v{vD0}")
    a(f"s_mov_b32 s67, {KB + 8 * KCH}")
    a0_setup(245, 67)
    for it in range(8):
        a(f"s_waitcnt vmcnt({8-it})")
        a(f"ds_write_b128 v{vUW}, {v(UL+4*it,4)} offset:{it*512}")
    a("s_waitcnt vmcnt(0)")
    a(f"ds_write_b128 v247, {v(UL+32,4)}")
    a(f"s_lshl_b32 s{sZO}, s{sQ}, 12")
    a(f"s_add_u32 s{sZO}, s{sZO}, {WS_Z}")
    a("s_waitcnt lgkmcnt(0)")
    a("s_barrier")
    ST.stamp("conv start")
    pairs = []
    for aa in range(8):
        for n in range(7, aa - 1, -1): pairs.append((aa, n - aa))
    def conv_pass(nb, vq, CA, TP=3):
        X = Emit(a)
        ops = [(b, aa, mu) for b in range(nb) for (aa, mu) in pairs]
        need = [("A", 0, 0)] + [("B", 0, n) for n in range(7, -1, -1)]
        last = {}
        for idx, (b, aa, mu) in enumerate(ops):
            for key in (("A", b, aa), ("B", b, mu)):
                if key not in need: need.append(key)
                last[key] = idx
        free = list(QUADS); where = {}
        def issue():
            key = need.pop(0); q = free.pop(0); where[key] = q
            kind, b, i = key
            if key == ("A", 0, 0):
                for k in range(4): X.one(dict(i=f"ds_read_b32 v{q+k}, v{vS0+k}", lds=key))
            elif kind == "A":
                for hh in range(2): X.one(dict(i=f"ds_read_b64 {v(q+2*hh,2)}, v{vA} offset:{b*64 + i*512 - 64 + 8*hh}", lds=key))
            else: X.one(dict(i=f"ds_read_b128 {v(q,4)}, v{vB} offset:{b*64 + (7-i)*512}", lds=key))
        for _ in range(9): issue()
        q0 = where[("A", 0, 0)]
        for k in range(4):
            a(f"v_add_u32 v250, {k}, v{vD0}")
            a(f"v_cmp_le_i32 vcc, 0, v250")
            a("s_nop 1")
            X.one(dict(i=f"v_cndmask_b32 v{q0+k}, 0, v{q0+k}, vcc", needl=[("A", 0, 0)]))
        for n in range(7, -1, -1):
            X.one(dict(i=f"{M16} {v(CA+4*n,4)}, {v(AD,4)}, {v(where[('B',0,n)],4)}, 0", needl=[("B", 0, n)]))
            if need and len(X.lg.q) < 12: issue()
        for idx, (b, aa, mu) in enumerate(ops):
            ka, kb = ("A", b, aa), ("B", b, mu)
            while ka not in where or kb not in where: issue()
            d = CA + 4 * (aa + mu)
            X.one(dict(i=f"{M16} {v(d,4)}, {v(where[ka],4)}, {v(where[kb],4)}, {v(d,4)}", needl=[ka, kb]))
            for key in (ka, kb):
                if last[key] == idx: free.append(where[key])
            if need and free and need[0][1] <= b + 1 and (idx % 2 == 0 or need[0][1] == b):
                if len(X.lg.q) >= 12:
                    a("s_waitcnt lgkmcnt(4)"); X.lg.q = X.lg.q[-4:]
                issue()
            if idx % TP == TP // 2 and vq: X.one(vq.pop(0))
        assert not need and not vq
        a("s_nop 7")
    tl = [f"buffer_load_dword v252, v248, {s(sK,4)}, s39 offen\ns_add_u32 s39, s39, {128*128 if k < 9 else 16*128}" for k in range(11)] if opt.get("touch", 1) else []
    NE = opt.get('ne', 6)
    conv_pass(1, tl[:NE], UL, 6)
    tl = tl[NE:]
    a(f"v_subrev_u32 v{vA}, s64, v{vA}")
    a(f"v_subrev_u32 v{vB}, s65, v{vB}")
    a(f"v_subrev_u32 v{vD0}, s66, v{vD0}")
    a0_setup(vDV, sKC)
    xl = []
    if opt.get("ctouch2", 1):
        a("s_getpc_b64 s[66:67]")
        Lh2 = a.newlabel("Lhere"); a.label(Lh2)
        a(f"s_sub_u32 s66, s66, {Lh2}-{opt['kname']}")
        a("s_subb_u32 s67, s67, 0")
        a(f"s_lshr_b32 s{sT}, s{sH}, 3")
        a(f"s_mul_i32 s{sT}, s{sT}, 10240")
        a(f"s_mul_i32 s{sT+1}, s{sW}, 1280")
        a(f"s_add_u32 s{sT}, s{sT}, s{sT+1}")
        a(f"v_min_u32 v249, 9, v{vLN}")
        a(f"v_lshl_add_u32 v249, v249, 7, s{sT}")
        a(f"v_min_u32 v249, {Lend}-{opt['kname']}, v249")
        xl = ["global_load_dword v252, v249, s[66:67]"]
    conv_pass(8, tl + xl, CA, opt.get('tp', 6))
    for n in range(8):
        a(f"v_cvt_pk_bf16_f32 v{32+2*n}, v{CA+4*n}, v{CA+4*n+1}")
        a(f"v_cvt_pk_bf16_f32 v{33+2*n}, v{CA+4*n+2}, v{CA+4*n+3}")
        a(f"buffer_store_dwordx2 {v(32+2*n,2)}, v{vZS}, {s(sWS,4)}, s{sZO} offen offset:{n*512} sc1")
    ST.stamp("conv main")
    a(f"v_add_u32 v250, s{sKC}, v{vL16}")
    for n in range(8): a(f"ds_write_b128 v250, {v(UL+4*n,4)} offset:{n*1024}")
    a("s_waitcnt lgkmcnt(0)")
    a("s_barrier")
    for k in range(8): a(f"ds_read_b128 {v(52+4*k,4)}, v{vT16} offset:{k*KCH}")
    a(f"s_lshl_b32 s{sZO}, s{sH}, 12")
    a(f"s_lshl_b32 s{sT}, s{sW}, 9")
    a(f"s_add_u32 s{sZO}, s{sZO}, s{sT}")
    a(f"s_add_u32 s{sZO}, s{sZO}, {WS_Z + 512*4096}")
    a("s_waitcnt lgkmcnt(0)")
    for k in range(1, 8):
        for r in range(4): a(f"v_add_f32 v{52+r}, v{52+r}, v{52+4*k+r}")
    a("v_cvt_pk_bf16_f32 v48, v52, v53")
    a("v_cvt_pk_bf16_f32 v49, v54, v55")
    a(f"buffer_store_dwordx2 v[48:49], v{vZS}, {s(sWS,4)}, s{sZO} offen sc1")
    a("s_waitcnt vmcnt(0)")
    a("s_barrier")
    ST.stamp("conv done")
    L4 = a.newlabel("Lf")
    a(f"s_cmp_lg_u32 s{sW}, 0")
    a(f"s_cbranch_scc1 {L4}")
    a(f"s_lshl_b32 s{sT}, s{sH}, 3")
    a(f"s_add_u32 s{sT}, s{sT}, {WS_UF}")
    one_lane_flag(sT, 1)
    a.label(L4)
    vRL, vPF, vZG, vZG4, vZW, vZR, vUF, vRL4 = 220, 221, 225, 226, 227, 228, 229, 230
    a(f"ds_read_b64 v[150:151], v{vSB}")
    a(f"v_lshrrev_b32 v250, 6, v{vT16}")
    a(f"v_and_b32 v251, 48, v{vT16}")
    a(f"v_lshl_add_u32 v{vZG}, v250, 12, v251")
    a(f"v_bfe_u32 v249, v{vT16}, 9, 2")
    a(f"v_lshlrev_b32 v249, 4, v249")
    a(f"v_xor_b32 v{vZW}, v249, v{vT16}")
    a(f"s_cmp_eq_u32 s{sPH}, 0")
    a(f"s_cselect_b32 s{sT+2}, 0, {OOB}")
    a(f"v_or_b32 v{vZG4}, s{sT+2}, v{vZG}")
    a(f"v_bfe_u32 v250, v{vLN}, 3, 2")
    a(f"v_lshrrev_b32 v249, 5, v{vLN}")
    a(f"v_and_b32 v251, 0x70, v{vL16}")
    a(f"v_lshl_add_u32 v251, v250, 9, v251")
    a(f"v_mul_u32_u24 v{vRL}, {PSL}, v249")
    a(f"v_add_u32 v{vRL}, v{vRL}, v251")
    a(f"s_mul_i32 s{sT}, s{sH}, {PTB}")
    a(f"s_lshl_b32 s{sT+1}, s{sMG}, 7")
    a(f"s_add_u32 s{sT}, s{sT}, s{sT+1}")
    a(f"s_lshl_b32 s{sT+1}, s{sPH}, 11")
    a(f"s_add_u32 s{sT}, s{sT}, s{sT+1}")
    a(f"v_add_u32 v{vRL}, s{sT}, v{vRL}")
    a(f"v_min_u32 v251, {NSL-1}, v{vLN}")
    a(f"s_lshl_b32 s{sT}, s{sH}, 7")
    a(f"s_add_u32 s{sT}, s{sT}, {WS_PF2}")
    a(f"v_lshl_add_u32 v{vPF}, v251, 3, s{sT}")
    a(f"v_xor_b32 v251, s{sMG}, v250")
    a(f"v_lshlrev_b32 v251, 4, v251")
    a(f"v_lshl_add_u32 v{vZR}, v250, 9, v251")
    a(f"v_lshl_add_u32 v{vZR}, v249, 12, v{vZR}")
    a(f"v_and_b32 v251, 1, v{vLN}")
    a(f"v_lshl_add_u32 v{vZR}, v251, 3, v{vZR}")
    a(f"v_and_b32 v251, 6, v{vLN}")
    a(f"v_add_u32 v{vZR}, v{vZR}, v251")
    a(f"v_add_u32 v{vZR}, s{sT+1}, v{vZR}")
    a(f"v_lshrrev_b32 v{vUF}, 1, v{vL16}")
    a(f"v_add_u32 v{vUF}, {WS_UF}, v{vUF}")
    BASE, ZL, ZR, XN, AC = 160, 96, 116, 48, 144
    a("s_mov_b32 s63, 0x00003f80")
    a("s_mov_b32 s64, 0x3f800000")
    a(f"s_mov_b32 s65, {f32(LN2)}")
    a(f"s_mov_b32 s{sI}, 0")
    RB = lambda st: (st % 4) * 24
    def wave_poll(addr, level, tag):
        Lk = a.newlabel("Lk")
        a(f"s_cmp_lg_u32 s{sW}, 7")
        a(f"s_cbranch_scc1 {Lk}")
        poll(a, [f"buffer_load_dwordx2 v[222:223], v{addr}, {s(sWS,4)}, 0 offen sc1"], flag_cond([222], level), tag, opt.get("psleep", 6))
        a.label(Lk)
        a("s_barrier")
    def ensure(level):
        Lk, Lq = a.newlabel("Lk"), a.newlabel("Lq")
        a(f"s_cmp_ge_u32 s{sI}, {level}")
        a(f"s_cbranch_scc1 {Lk}")
        a(f"s_cmp_lg_u32 s{sW}, 7")
        a(f"s_cbranch_scc1 {Lq}")
        cond = [f"v_subrev_u32 v222, s{sTAG}, v222", f"v_xor_b32 v223, s{sTAG+1}, v223", "v_lshrrev_b32 v224, 4, v222", "v_or_b32 v223, v223, v224",
                "v_cmp_eq_u32 vcc, 0, v223", "s_nop 1", "v_cndmask_b32 v222, 0, v222, vcc", "s_nop 1",
                "v_min_u32_dpp v222, v222, v222 row_ror:8 row_mask:0xf bank_mask:0xf", "s_nop 1",
                "v_min_u32_dpp v222, v222, v222 row_ror:4 row_mask:0xf bank_mask:0xf", "s_nop 1",
                "v_min_u32_dpp v222, v222, v222 row_ror:2 row_mask:0xf bank_mask:0xf", "s_nop 1",
                "v_min_u32_dpp v222, v222, v222 row_ror:1 row_mask:0xf bank_mask:0xf", "s_nop 0",
                f"v_readfirstlane_b32 s{sI}, v222", "s_nop 0", f"s_cmp_ge_u32 s{sI}, {level}"]
        poll(a, [f"buffer_load_dwordx2 v[222:223], v{vPF}, {s(sWS,4)}, 0 offen sc1"], cond, "p", opt.get("psleep", 6))
        a(f"v_mov_b32 v222, s{sI}")
        a(f"ds_write_b32 v231, v222 offset:{4*level}")
        a("s_waitcnt lgkmcnt(0)")
        a.label(Lq)
        a("s_barrier")
        a(f"ds_read_b32 v222, v231 offset:{4*level}")
        a("s_waitcnt lgkmcnt(0)")
        a(f"v_readfirstlane_b32 s{sI}, v222")
        a.label(Lk)
    a(f"v_mov_b32 v231, {STB + 512}")
    nst = []
    NL = NSL // 2
    def loads(st):
        for i in range(NL):
            a(f"s_mov_b32 s{sOFF}, {2 * i * PSL + st * 4096}")
            a(f"buffer_load_dwordx4 {v(RB(st)+4*i,4)}, v{vRL}, {s(sWS,4)}, s{sOFF} offen sc1")
        nst.extend([("L", st)] * NL)
    def consume(st, defer=False):
        q = st >> 1
        for k in range(8): a(f"v_mov_b32 v{AC+k}, 0")
        for i in range(NL):
            idx = [j for j, e in enumerate(nst) if e == ("L", st)][i]
            a(f"s_waitcnt vmcnt({len(nst) - 1 - idx})")
            for k in range(4):
                a(f"v_dot2c_f32_bf16 v{AC+2*k}, s63, v{RB(st)+4*i+k}")
                a(f"v_dot2c_f32_bf16 v{AC+2*k+1}, s64, v{RB(st)+4*i+k}")
        a("s_nop 2")
        for k in range(8): a(f"v_mov_b32 v{AC+8+k}, v{AC+k}")
        for k in range(8): a(f"v_permlane32_swap_b32 v{AC+k}, v{AC+8+k}")
        for k in range(8): a(f"v_add_f32 v{AC+k}, v{AC+k}, v{AC+8+k}")
        if defer:
            for k in range(8): a(f"v_mul_f32 v{DS+8*st+k}, s65, v{AC+k}")
            return
        for k in range(8): a(f"v_fma_f32 v{AC+k}, s65, v{AC+k}, v{BASE+8*q+k}")
        emit_out(st)
    DS = 240
    def emit_out(st):
        q = st >> 1
        o = 132 + 4 * (st % 3)
        for k in range(4): a(f"v_cvt_pk_bf16_f32 v{o+k}, v{AC+2*k}, v{AC+2*k+1}")
        a(f"buffer_store_dwordx4 {v(o,4)}, v{vXO4 if st & 1 else vXO}, {s(sOUT,4)}, 0 offen offset:{q*256} {opt.get('omod', '')}")
        nst.append(("S", st))
    a("s_waitcnt lgkmcnt(0)")
    for l in stats_math(150, 151, 152, 153, SS, SS + 1): a(l)
    for k in range(20):
        a(f"v_lshlrev_b32 v{BASE+2*k}, 16, v{XR+k}")
        a(f"v_and_b32 v{BASE+2*k+1}, 0xffff0000, v{XR+k}")
    for k in range(16): a(f"v_mov_b32 v{ZR+k}, 0")
    a(f"v_mul_f32 v{SS}, v{SS}, v{SS+1}")
    ST.stamp("xpart")
    a(f"v_lshrrev_b32 v230, 5, v{vLN}")
    a(f"v_mul_u32_u24 v230, {PSL - 4096}, v230")
    a(f"v_sub_u32 v230, v{vRL}, v230")
    a(f"v_mov_b32 v234, {OOB}")
    a(f"v_cmp_gt_u32 vcc, 32, v{vLN}")
    a("s_nop 1")
    a("v_cndmask_b32 v234, v234, v230, vcc")
    def step(st, defer=False, extra=()):
        lv = st + 3
        La, Lb = a.newlabel("Lr"), a.newlabel("Lr")
        save = list(nst)
        a(f"s_cmp_ge_u32 s{sI}, {lv}")
        a(f"s_cbranch_scc0 {La}")
        loads(st + 2); consume(st, defer)
        a(f"s_branch {Lb}")
        a.label(La)
        nst[:] = save
        consume(st, defer); ensure(lv); loads(st + 2)
        a.label(Lb)
        nst[:] = [("L", st + 1)] * NL + list(extra) + [("L", st + 2)] * NL
    ensure(1); ST.stamp("seen 1"); loads(0)
    Lk = a.newlabel("Lk")
    a(f"s_cmp_lg_u32 s{sW}, 6")
    a(f"s_cbranch_scc1 {Lk}")
    poll(a, [f"buffer_load_dwordx2 v[222:223], v{vUF}, {s(sWS,4)}, 0 offen sc1"], flag_cond([222], 1), "z", opt.get("psleep", 6))
    a.label(Lk)
    a(f"s_mov_b32 s{sI}, 0")
    ensure(2); ST.stamp("z seen")
    a(f"s_lshl_b32 s{sT}, s{sH}, 6")
    a(f"s_add_u32 s{sT}, s{sT}, {WS_Z}")
    for i in range(5):
        a(f"buffer_load_dwordx4 {v(ZL+4*i,4)}, v{vZG4 if i == 4 else vZG}, {s(sWS,4)}, s{sT} offen sc1")
        if i < 4: a(f"s_add_u32 s{sT}, s{sT}, {128*4096}")
    nst.extend([("Z", 0)] * 5)
    loads(1)
    step(0, True)
    a(f"s_waitcnt vmcnt({2*NL})")
    for i in range(5): a(f"ds_write_b128 v{vZW}, {v(ZL+4*i,4)} offset:{i*8192}")
    a("s_waitcnt lgkmcnt(0)")
    a("s_barrier")
    rd = lambda q: [a(f"ds_read_u16_d16_hi v{ZR+8*(q&1)+j}, v{vZR} offset:{q*8192 + j*64}") for j in range(8)]
    order = [3, 4, 0, 1, 2]
    rdn = lambda n: [a(f"ds_read_u16_d16_hi v{ZR+8*(n&1)+j}, v{vZR} offset:{order[n]*8192 + j*64}") for j in range(8)]
    rdn(0)
    for n, q in enumerate(order):
        if n < 4:
            a("s_waitcnt lgkmcnt(4)")
            rdn(n + 1)
        for j in range(8): a(f"v_fma_f32 v{AC+j}, v{BASE+8*q+j}, v{SS+1}, -v{SS}")
        a(f"s_waitcnt lgkmcnt({8 if n < 4 else 0})")
        for j in range(8): a(f"v_fmac_f32 v{BASE+8*q+j}, v{AC+j}, v{ZR+8*(n&1)+j}")
        if q >= 3:
            for k in range(4): a(f"v_cvt_pk_bf16_f32 v{XR+4*q+k}, v{BASE+8*q+2*k}, v{BASE+8*q+2*k+1}")
            a(f"s_mov_b32 s{sOFF}, {12 * PSL + q * 8192}")
            a(f"buffer_store_dwordx4 {v(XR+4*q,4)}, v{230 if q == 3 else 234}, {s(sWS,4)}, s{sOFF} offen sc1")
    for k in range(8): a(f"v_add_f32 v{AC+k}, v{DS+k}, v{BASE+k}")
    emit_out(0)
    nst[:] = [("L", 1)] * NL + [("L", 2)] * NL + [("S", 0)] * 3
    ST.stamp("base")
    NR = 6
    for st in range(1, NR):
        if st < NR - 2: step(st)
        else: consume(st)
        if st in (1, 3): ST.stamp(f"it {st}")
        if st == 1:
            a(f"s_waitcnt vmcnt({NL})")
            a("s_barrier")
            Lf = a.newlabel("Lf")
            a(f"s_cmp_lg_u32 s{sW}, 0")
            a(f"s_cbranch_scc1 {Lf}")
            a(f"s_lshr_b32 s{sT}, s{sH}, 2")
            a(f"s_lshl_b32 s{sT}, s{sT}, 7")
            a(f"s_and_b32 s{sT+1}, s{sH}, 3")
            a(f"s_lshl_b32 s{sT+1}, s{sT+1}, 3")
            a(f"s_add_u32 s{sT}, s{sT}, s{sT+1}")
            a(f"s_add_u32 s{sT}, s{sT}, {WS_PF + 96}")
            a(f"s_add_u32 s{sT+1}, s{sTAG}, 15")
            a(f"v_mov_b32 v248, {OOB}")
            a(f"v_mov_b32 v250, s{sT+1}")
            a(f"v_mov_b32 v251, s{sTAG+1}")
            a(f"v_writelane_b32 v248, s{sT}, 0")
            a(f"buffer_store_dwordx2 v[250:251], v248, {s(sWS,4)}, 0 offen sc1")
            a.label(Lf)
    if opt.get("stamps"): a("s_waitcnt vmcnt(0)")
    ST.stamp("end"); ST.cyc(1)
    ST.flush(sWS, sW)
```

```python
from common import *
from k_mlp import Emit, M16, mish_group
import k7h

NSL = 12
RING = 0
ACT = 73728
BIAS = 155648
LDS_ALL = 163840
SLOT = 49152
def POS(k): return {0: 7, 1: 8, 9: 9, 10: 7, 11: 8}.get(k, k - 2)

def XF(mt16, ks): return mt16 * 72 + ks * 4
def AFR(mu, kap):
    q, r = divmod(kap, 3); n = mu * 3 + r
    return 144 + n * 4 if q == 3 else XF(n // 6, 6 * q + n % 6)
ACC = 144; PEND = 160; FR = 176; BI = 208; TM = 216; AO = 244
ACC2 = 192; FR2 = 208
RA = [228, 229, 230, 231]
vW1, vW2, vJUNK, vACTW, vBIAS, vST, vRB, vL16 = 232, 233, 234, 235, 236, 237, 238, 239
T0 = 240
sX, sW1, sW2, sWS, sA, sDBG = 8, 12, 16, 20, 24, 52
sMT, sSL, sW, sMG, sPH, sFB2, sW2A = 28, 29, 30, 31, 32, 33, 34
sPFA = 35
sT = 56; sEX = 60
sOFF, sONES, sM0G, sOFF2 = 62, 63, 64, 65
sXR1, sCNT, sTAG = 3, 5, 6
sXR0 = 36
OOB = "0x7ffffff0"

def spread(main, side):
    out = []; k = 0; n = len(main)
    for i, m in enumerate(main):
        out.append(m)
        want = (i + 1) * len(side) // n
        while k < want:
            out.extend(side[k]); k += 1
    for g in side[k:]: out.extend(g)
    return out
def flat(groups): return [x for g in groups for x in g]
def srd2(a, d, nbytes):
    a(f"s_and_b32 s{d+1}, s{d+1}, 0xffff")
    a(f"s_mov_b32 s{d+2}, {nbytes}")
    a(f"s_mov_b32 s{d+3}, 0x00020000")
def poll(a, load, cond_lines, tag, sleep=8):
    L, Ld = a.newlabel("Lpoll" + tag), a.newlabel("Lpd" + tag)
    a.label(L)
    for l in load: a(l)
    a("s_waitcnt vmcnt(0)")
    for l in cond_lines: a(l)
    a(f"s_cbranch_scc1 {Ld}")
    a(f"s_sleep {sleep}")
    a(f"s_sub_u32 s{sCNT}, s{sCNT}, 1")
    a(f"s_cbranch_scc0 {L}")
    a(f"s_mov_b32 s{sCNT}, 0")
    a.label(Ld)
def stats_math(s0, q0, mean, var, mb, rs):
    return [f"v_mul_f32 v{mean}, {f32(1.0/576)}, v{s0}",
            f"v_mul_f32 v{var}, {f32(1.0/576)}, v{q0}",
            f"v_fma_f32 v{var}, -v{mean}, v{mean}, v{var}",
            f"v_max_f32 v{var}, 0, v{var}",
            f"v_cvt_pk_bf16_f32 v{mb}, v{mean}, v{var}",
            f"v_and_b32 v{var}, 0xffff0000, v{mb}",
            f"v_lshlrev_b32 v{mb}, 16, v{mb}",
            f"v_add_f32 v{var}, {f32(1e-5)}, v{var}",
            f"v_cvt_pk_bf16_f32 v{var}, v{var}, v{var}",
            f"v_lshlrev_b32 v{var}, 16, v{var}",
            f"v_sqrt_f32 v{var}, v{var}",
            "s_nop 0",
            f"v_cvt_pk_bf16_f32 v{var}, v{var}, v{var}",
            f"v_lshlrev_b32 v{var}, 16, v{var}",
            f"v_rcp_f32 v{rs}, v{var}",
            "s_nop 0"]

def gen(a, opt=None):
    opt = opt or {}
    E = Emit(a)
    Lend, Lhelp = a.newlabel("Lend"), a.newlabel("Lhelp")
    if opt.get("earlytag"): a("s_memrealtime s[66:67]")
    a("s_cmp_ge_u32 s2, 256")
    a(f"s_cbranch_scc1 {Lend}")
    ST = Stamps(a, opt.get("stamps"), 0)
    ST.stamp("start"); ST.cyc(0)
    a(f"s_mov_b32 s{sCNT}, 0x80000")
    a("s_cmp_ge_u32 s2, 192")
    a(f"s_cbranch_scc1 {Lhelp}")
    for d, off in ((sX, 0), (sW1, 56), (sA, 64), (sW2, 72), (sWS, 96), (sDBG, 88)):
        a(f"s_load_dwordx2 s[{d}:{d+1}], s[0:1], {off}")
    lane, r8, u8 = T0 + 1, T0 + 2, T0 + 3
    a(f"v_lshrrev_b32 v{T0}, 6, v0")
    a(f"v_and_b32 v{lane}, 63, v0")
    a(f"v_readfirstlane_b32 s{sW}, v{T0}")
    a(f"s_lshr_b32 s{sT}, s2, 3")
    a(f"s_mul_i32 s{sT+1}, s{sT}, 11")
    a(f"s_lshr_b32 s{sT+1}, s{sT+1}, 5")
    a(f"s_mul_i32 s{sT+2}, s{sT+1}, 3")
    a(f"s_sub_u32 s{sT}, s{sT}, s{sT+2}")
    a(f"s_and_b32 s{sT+2}, s2, 3")
    a(f"s_mul_i32 s{sT+2}, s{sT+2}, 3")
    a(f"s_add_u32 s{sSL}, s{sT}, s{sT+2}")
    a(f"s_bfe_u32 s{sT}, s2, 0x10002")
    a(f"s_lshl_b32 s{sT}, s{sT}, 3")
    a(f"s_add_u32 s{sMT}, s{sT}, s{sT+1}")
    a(f"s_and_b32 s{sMG}, s{sW}, 3")
    a(f"s_lshr_b32 s{sPH}, s{sW}, 2")
    a(f"v_lshrrev_b32 v{r8}, 3, v{lane}")
    a(f"v_and_b32 v{u8}, 7, v{lane}")
    a(f"s_lshl_b32 s{sT+1}, s{sMG}, 5")
    a(f"s_lshl_b32 s{sT+2}, s{sPH}, 3")
    a(f"s_add_u32 s{sT+1}, s{sT+1}, s{sT+2}")
    a(f"s_lshl_b32 s{sT}, s{sMT}, 7")
    a(f"s_add_u32 s{sT}, s{sT}, s{sT+1}")
    vXO = T0 + 5
    a(f"v_add_u32 v{vXO}, s{sT}, v{r8}")
    a(f"v_mul_u32_u24 v{vXO}, 1152, v{vXO}")
    a(f"v_lshl_add_u32 v{vXO}, v{u8}, 4, v{vXO}")
    a(f"s_and_b32 s4, s{sSL}, {1 if opt.get('flip', 1) else 0}")
    a(f"s_mul_i32 s{sXR0}, s4, 18432")
    a(f"s_sub_u32 s{sXR1}, 18432, s{sXR0}")
    a("s_waitcnt lgkmcnt(0)")
    srd2(a, sX, XBYTES)
    RAW = [144, 180]
    def x_load(rho, j):
        so = f"s{sXR0}" if rho == 0 else f"s{sXR1}"
        return dict(i=f"buffer_load_dwordx4 {v(RAW[rho]+4*j,4)}, v{vXO}, {s(sX,4)}, {so} offen offset:{128*j}", vm=("x", rho, j))
    for j in range(9): E.one(x_load(0, j))
    ST.stamp("x0 issued")
    srd2(a, sW1, WBYTES); srd2(a, sA, F * 2); srd2(a, sW2, WBYTES); srd2(a, sWS, WS_END); srd2(a, sDBG, 256)
    a(f"s_mul_i32 s{sFB2}, s{sSL}, 768")
    a(f"s_mul_i32 s{sW2A}, s{sSL}, {384*1152}")
    a(f"s_lshl_b32 s{sM0G}, s{sMG}, 10")
    a(f"s_mov_b32 s{sONES}, 0x3f803f80")
    a(f"v_lshlrev_b32 v{vL16}, 4, v{lane}")
    t1, t2 = T0 + 8, T0 + 9
    a(f"s_lshl_b32 s{sT}, s{sMG}, 3")
    a(f"v_add_u32 v{t2}, s{sT}, v{r8}")
    a(f"v_mul_u32_u24 v{vW1}, 9216, v{t2}")
    a(f"v_bfe_u32 v{t1}, v{r8}, 1, 1")
    a(f"s_and_b32 s{sT}, s{sW}, 1")
    a(f"s_lshl_b32 s{sT}, s{sT}, 1")
    a(f"v_or_b32 v{t1}, s{sT}, v{t1}")
    a(f"v_lshlrev_b32 v{t1}, 1, v{t1}")
    a(f"v_xor_b32 v{t1}, v{t1}, v{u8}")
    a(f"v_lshl_add_u32 v{vW1}, v{t1}, 4, v{vW1}")
    a(f"v_mul_u32_u24 v{vW2}, 1152, v{t2}")
    a(f"v_and_b32 v{t1}, 6, v{r8}")
    a(f"v_xor_b32 v{t1}, v{t1}, v{u8}")
    a(f"v_lshl_add_u32 v{vW2}, v{t1}, 4, v{vW2}")
    vBE, vBV = T0 + 6, T0 + 7
    a(f"v_lshlrev_b32 v{vBE}, 1, v0")
    g4, rp, c4, fsw = T0 + 10, T0 + 11, T0 + 12, T0 + 13
    a(f"v_lshrrev_b32 v{g4}, 4, v{lane}")
    a(f"v_bfe_u32 v{rp}, v{lane}, 2, 2")
    a(f"v_and_b32 v{c4}, 3, v{lane}")
    a(f"v_lshrrev_b32 v{t1}, 1, v{rp}")
    a(f"v_and_b32 v{t2}, 1, v{g4}")
    a(f"v_lshl_or_b32 v{fsw}, v{t2}, 1, v{t1}")
    a(f"s_lshl_b32 s{sT}, s{sPH}, 1")
    a(f"v_xor_b32 v{t1}, s{sT}, v{fsw}")
    a(f"v_lshlrev_b32 v{t1}, 5, v{t1}")
    a(f"v_lshl_add_u32 v{t1}, v{g4}, 10, v{t1}")
    a(f"v_lshl_add_u32 v{t1}, v{rp}, 7, v{t1}")
    a(f"v_lshl_add_u32 v{RA[0]}, v{c4}, 3, v{t1}")
    a(f"v_xor_b32 v{RA[1]}, 32, v{RA[0]}")
    a(f"v_add_u32 v{RA[3]}, 0x8000, v{RA[1]}")
    a(f"v_add_u32 v{RA[2]}, 0x8000, v{RA[0]}")
    a(f"s_lshr_b32 s{sT}, s{sW}, 1")
    a(f"v_xor_b32 v{t1}, s{sT}, v{fsw}")
    a(f"v_lshlrev_b32 v{t1}, 5, v{t1}")
    a(f"v_lshl_add_u32 v{t1}, v{g4}, 9, v{t1}")
    a(f"v_lshl_add_u32 v{t1}, v{rp}, 7, v{t1}")
    a(f"v_lshl_add_u32 v{vRB}, v{c4}, 3, v{t1}")
    a(f"s_lshl_b32 s{sT}, s{sPH}, 7")
    a(f"s_add_u32 s{sT}, s{sT}, {BIAS}")
    a(f"v_lshl_add_u32 v{vBIAS}, v{g4}, 4, s{sT}")
    a(f"s_lshl_b32 s{sT}, s{sMG}, 11")
    a(f"s_add_u32 s{sT}, s{sT}, {ACT}")
    a(f"v_add_u32 v{vACTW}, s{sT}, v{vL16}")
    a(f"s_mul_i32 s{sT}, s{sMG}, 18432")
    a(f"s_add_u32 s{sT}, s{sT}, {ACT}")
    vXW = T0 + 14
    a(f"s_lshl_b32 s{sT+1}, s{sPH}, 3")
    a(f"v_add_u32 v{t1}, s{sT+1}, v{r8}")
    a(f"v_xor_b32 v{t1}, v{t1}, v{u8}")
    a(f"v_lshlrev_b32 v{t1}, 4, v{t1}")
    a(f"v_lshl_add_u32 v{t1}, v{u8}, 8, v{t1}")
    a(f"v_add_u32 v{vXW}, s{sT}, v{t1}")
    vXR0, vXR1 = T0 + 15, T0 + 8
    a(f"v_and_b32 v{t2}, 15, v{lane}")
    a(f"v_xor_b32 v{t2}, v{t2}, v{g4}")
    a(f"v_lshlrev_b32 v{t2}, 4, v{t2}")
    a(f"v_lshl_add_u32 v{t2}, v{g4}, 8, v{t2}")
    a(f"v_add_u32 v{vXR0}, s{sT}, v{t2}")
    a(f"v_xor_b32 v{vXR1}, 64, v{vXR0}")
    a(f"s_mul_i32 s{sT+2}, s{sSL}, {PSL}")
    a(f"s_lshl_b32 s{sT}, s{sMT}, 2")
    a(f"s_and_b32 s{sT+1}, s{sW}, 1")
    a(f"s_lshl_b32 s{sT+1}, s{sT+1}, 1")
    a(f"s_add_u32 s{sT}, s{sT}, s{sT+1}")
    a(f"s_mul_i32 s{sT}, s{sT}, {PTB}")
    a(f"s_add_u32 s{sT+2}, s{sT+2}, s{sT}")
    a(f"s_lshr_b32 s{sT}, s{sW}, 1")
    a(f"s_lshl_b32 s{sT}, s{sT}, 10")
    a(f"s_add_u32 s{sT+2}, s{sT+2}, s{sT}")
    a(f"s_lshl_b32 s{sT}, s4, 8")
    a(f"v_xor_b32 v{vST}, s{sT}, v{vL16}")
    a(f"v_add_u32 v{vST}, s{sT+2}, v{vST}")
    a(f"s_lshl_b32 s{sT}, s{sMT}, 9")
    a(f"s_lshl_b32 s{sT+1}, s{sSL}, 3")
    a(f"s_add_u32 s{sT}, s{sT}, s{sT+1}")
    a(f"s_add_u32 s{sT}, s{sT}, {WS_PF2}")
    a(f"s_cmp_eq_u32 s{sW}, 4")
    a(f"s_cselect_b32 s{sPFA}, s{sT}, {OOB}")

    A_, C_ = TM + 8, TM + 10
    def ln_stats(rho):
        o = []
        R = RAW[rho]
        s0, s1, q0, q1 = TM, TM + 1, TM + 2, TM + 3
        o += [f"v_mov_b32 v{s0}, 0", f"v_mov_b32 v{s1}, 0", f"v_mov_b32 v{q0}, 0", f"v_mov_b32 v{q1}, 0"]
        for j in range(9):
            for k in range(4):
                r = R + 4 * j + k
                o.append(dict(i=f"v_dot2c_f32_bf16 v{(s0, s1)[k & 1]}, s{sONES}, v{r}", needv=[("x", rho, j)]))
                o.append(f"v_dot2c_f32_bf16 v{(q0, q1)[k & 1]}, v{r}, v{r}")
        o += ["s_nop 2", f"v_add_f32 v{s0}, v{s0}, v{s1}", f"v_add_f32 v{q0}, v{q0}, v{q1}", "s_nop 0"]
        for dpp in ("quad_perm:[1,0,3,2]", "quad_perm:[2,3,0,1]", "row_half_mirror"):
            o += [f"v_add_f32_dpp v{s1}, v{s0}, v{s0} {dpp} row_mask:0xf bank_mask:0xf",
                  f"v_add_f32_dpp v{q1}, v{q0}, v{q0} {dpp} row_mask:0xf bank_mask:0xf", "s_nop 0"]
            s0, s1, q0, q1 = s1, s0, q1, q0
        mean, var, mb, rs = TM + 4, TM + 5, TM + 6, TM + 7
        o += stats_math(s0, q0, mean, var, mb, rs)
        o += [f"v_mul_f32 v{A_}, {f32(LOG2E)}, v{rs}", f"v_mul_f32 v{C_}, v{mb}, v{A_}"]
        return o
    def ln_norm(rho):
        o = []
        R = RAW[rho]
        tp = [T0 + 10, T0 + 12]
        for j in range(9):
            for k in range(0, 4, 2):
                for kk in range(2):
                    r = R + 4 * j + k + kk; t = tp[kk]
                    o += [f"v_lshlrev_b32 v{t}, 16, v{r}", f"v_and_b32 v{t+1}, 0xffff0000, v{r}"]
                for kk in range(2):
                    t = tp[kk]
                    o.append(f"v_pk_fma_f32 {v(t,2)}, {v(t,2)}, {v(A_,2)}, {v(C_,2)} op_sel_hi:[1,0,0] neg_lo:[0,0,1] neg_hi:[0,0,1]")
                for kk in range(2):
                    r = R + 4 * j + k + kk; t = tp[kk]
                    o.append(f"v_cvt_pk_bf16_f32 v{r}, v{t}, v{t+1}")
            o.append(dict(i=f"ds_write_b128 v{vXW}, {v(R+4*j,4)} offset:{j*2048}", lds="xw"))
        return o
    def xn_read(rho, ks):
        return dict(i=f"ds_read_b128 {v(XF(rho,ks),4)}, v{(vXR0, vXR1)[ks & 1]} offset:{ks*1024}", lds=("xf", rho, ks))
    NT = 6; NS1 = 3 * NT; NU = 9 * NT; NG = 18 * NT
    def w1_unit(U, hi):
        T, gam = divmod(U, 9)
        return [f"s_add_u32 m0, s{sM0G}, {RING + gam * 8192 + hi * 4096}",
                f"s_add_u32 s{sOFF}, s{sFB2}, {(gam * 64 + hi * 32) * 9216 + T * 128}",
                dict(i=f"buffer_load_dwordx4 v{vW1}, {s(sW1,4)}, s{sOFF} offen lds", vm=("w1", (U - 1) // 3))]
    def units_of(sg): return range(max(0, 3 * sg + 1), min(NU, 3 * sg + 4))
    def frag(g, aa): return FR + ((g % 4) * 2 + aa) * 4
    def greads(g):
        if g >= NG: return []
        T, ks = divmod(g, 18)
        o = []
        for aa in range(2):
            f = frag(g, aa); hi = ks >= 8
            off = RING + ks * 4096 - (0x8000 if hi else 0)
            for nu in range(2):
                o.append(dict(i=f"ds_read_b64_tr_b16 {v(f+2*nu,2)}, v{RA[aa + 2*hi]} offset:{off + nu*512}", lds=("A", g, aa)))
        return o
    def bias_reads(T):
        return [dict(i=f"ds_read_b128 {v(BI+4*aa,4)}, v{vBIAS} offset:{T*256 + aa*64}", lds=("B", T)) for aa in range(2)]
    vACTH, vAR, vARH = 243, 240, 241
    def mish_tile(T, ph):
        o = []
        p = POS(2 * T + ph)
        for mt16 in range(2):
            for aa in range(2):
                o += mish_group(PEND + (aa * 2 + mt16) * 4, AO + mt16 * 4 + aa * 2, TM)
            o.append(dict(i=f"ds_write_b128 v{vACTH if p >= 4 else vACTW}, {v(AO+mt16*4,4)} offset:{mt16*1024 + (p - 4 if p >= 4 else p)*8192}", lds="aw"))
        return o
    def cost(x):
        t = x if isinstance(x, str) else x.get("i", "")
        return 2 if t.startswith(("v_exp", "v_rcp")) else 1 if t.startswith("v_") else 0
    def take(q, budget):
        out = []
        while q and budget > 0:
            budget -= cost(q[0]); out.append(q.pop(0))
        while q and cost(q[0]) == 0: out.append(q.pop(0))
        return out
    def w2_dma(st, ph):
        o = []
        for n in range(6):
            q = 24 * ph + 4 * n
            o.append([f"s_add_u32 m0, s{sM0G}, {(st % 3) * SLOT + q * 1024}",
                      f"s_add_u32 s{sOFF}, s{sW2A}, {q * 8 * 1152 + st * 128}",
                      dict(i=f"buffer_load_dwordx4 v{vW2}, {s(sW2,4)}, s{sOFF} offen lds", vm=("w2", st))])
        return o
    def w2_pieces(qs, tag):
        return [[f"s_add_u32 m0, s{sM0G}, {q * 1024}", f"s_add_u32 s{sOFF}, s{sW2A}, {q * 8 * 1152}",
                 dict(i=f"buffer_load_dwordx4 v{vW2}, {s(sW2,4)}, s{sOFF} offen lds", vm=tag)] for q in qs]
    OV = opt.get("ov", 0)
    vRBs = [vRB, 228, 229]
    PD2 = 3
    def frag2(g): return FR2 + (g % 5) * 4
    def b_reads(st, i):
        f = frag2(12 * st + i)
        return [dict(i=f"ds_read_b64_tr_b16 {v(f+2*nu,2)}, v{vRBs[st % 3]} offset:{i*4096 + nu*2048}", lds=("W", st, i)) for nu in range(2)]
    def act_reads(kap):
        p = POS(kap)
        return [dict(i=f"ds_read_b128 {v(AFR(mu,kap),4)}, v{vARH if p >= 4 else vAR} offset:{mu*1024 + (p - 4 if p >= 4 else p)*8192}", lds=("act", kap)) for mu in range(4)]
    def epi_valu():
        o = []
        for pr in range(2):
            p = AO + pr * 4
            for mu in range(2):
                src = ACC2 + (pr * 2 + mu) * 4
                o.append(f"v_cvt_pk_bf16_f32 v{p+2*mu}, v{src}, v{src+1}")
                o.append(f"v_cvt_pk_bf16_f32 v{p+2*mu+1}, v{src+2}, v{src+3}")
        o.append("s_nop 0")
        for pr in range(2):
            p = AO + pr * 4
            o.append(f"v_permlane16_swap_b32 v{p}, v{p+2}")
            o.append(f"v_permlane16_swap_b32 v{p+1}, v{p+3}")
        return o
    def epi_store(st):
        o = []
        for pr in range(2):
            o.append(f"s_mov_b32 s{sOFF2}, {pr * PTB + st * 4096}")
            o.append(dict(i=f"buffer_store_dwordx4 {v(AO+pr*4,4)}, v{vST}, {s(sWS,4)}, s{sOFF2} offen sc1", vm=("st", st)))
        return o
    vFA, vFD = 230, 252
    def publish(level):
        return [f"s_add_u32 s{sT}, s{sTAG}, {level}", f"v_mov_b32 v{vFD}, s{sT}",
                dict(i=f"buffer_store_dwordx2 {v(vFD,2)}, v{vFA}, {s(sWS,4)}, 0 offen sc1", vm="pf")]

    def body(ph):
        X = Emit(a); X.lg.q = list(E.lg.q); X.vm.q = list(E.vm.q)
        n0 = ST.n; names0 = list(ST.names)
        def barrier(needl, needv, name=None):
            X.one(dict(needl=needl, needv=needv))
            a("s_barrier")
            if name: ST.stamp(name, X)
        if ph == 1: a("s_setprio 1")
        st0 = ln_stats(0)
        bl = [[dict(i=f"buffer_load_ushort v{vBV}, v{vBE}, {s(sA,4)}, s{sFB2} offen", vm="bias")]]
        NX = opt.get("nx", 6)
        X.run(st0[:12] + spread(st0[12:], [[x_load(1, j)] for j in range(NX)]))
        ST.stamp("stats0", X)
        n0_ = ln_norm(0)
        cut = int(len(n0_) * opt.get("xcut", 0.4))
        NU0 = opt.get("nu0", 3)
        P1 = opt.get("p1dma", 1)
        own = (lambda us: [w1_unit(U, h) for U in us for h in range(2)] if ph else []) if P1 else (lambda us: [w1_unit(U, ph) for U in us])
        X.run(spread(n0_[:cut], [[x_load(1, j)] for j in range(NX, 9)]) + spread(n0_[cut:], bl + own(range(0, NU0))))
        a(f"v_lshlrev_b32 v{vBE}, 2, v0")
        a(f"v_add_u32 v{vBE}, {BIAS}, v{vBE}")
        vTA = T0 + 4
        def taddr(dst, src):
            a(f"v_mul_u32_u24 v1, 13108, v{src}")
            a("v_lshrrev_b32 v1, 16, v1")
            a("v_mul_u32_u24 v2, 5, v1")
            a(f"v_sub_u32 v2, v{src}, v2")
            a("v_mul_u32_u24 v1, 9216, v1")
            a("v_lshl_add_u32 v1, v2, 7, v1")
            a(f"v_mov_b32 v2, {OOB}")
            a(f"v_cmp_gt_u32 vcc, 360, v{src}")
            a(f"s_and_b32 s{sXR0}, s{sMT}, 7")
            a(f"s_mul_i32 s{sXR0}, s{sXR0}, {72*9216}")
            a(f"v_cndmask_b32 v{dst}, v2, v1, vcc")
            a(f"s_add_u32 s{sXR0}, s{sXR0}, s{sFB2}")
        T1 = opt.get("touch1", 3)
        if T1 in (1, 2) or (T1 == 3 and ph == 1): taddr(vTA, 0)
        if T1 == 3 and ph == 1:
            a("v_subrev_u32 v3, 256, v0")
            taddr(4, 3)
        ST.stamp("norm0", X)
        rds = [[xn_read(0, ks)] for ks in range(18)]
        NU1 = opt.get("nu1", 6)
        dm1 = own(range(NU0, NU1)); dm2 = own(range(NU1, 9))
        n1 = ln_norm(1)
        def misc():
            X.one(dict(i=f"v_lshlrev_b32 v{vBV}, 16, v{vBV}", needv=["bias"]))
            a(f"v_mul_f32 v{vBV}, {f32(LOG2E)}, v{vBV}")
            X.one(dict(i=f"ds_write_b32 v{vBE}, v{vBV}", lds="bw"))
            if T1 == 1: X.one(tch)
        tch = dict(i=f"buffer_load_dword v{vJUNK}, v{vTA}, {s(sW1,4)}, s{sXR0} offen offset:128", vm="t")
        if ph == 0 and opt.get("early", 0):
            a(X.lg.drain()); a("s_barrier")
            ST.stamp("barA")
            s1 = ln_stats(1)
            X.run(spread(s1[:60], rds) + spread(s1[60:], dm1 + dm2))
            misc()
            ST.stamp("stats1", X)
            a(X.lg.drain()); a("s_barrier")
            X.run(n1)
        else:
            X.run(spread(ln_stats(1), dm1))
            misc()
            ST.stamp("stats1", X)
            JP = opt.get("jp", (0, 9))[ph]
            JS = max(JP, opt.get("js", 4))
            if JP:
                a("s_setprio 0")
                X.run(spread([x for x in n1[:17 * JP] if isinstance(x, str)], dm2))
            else: X.run(flat(dm2))
            if T1 == 3 and ph == 1:
                X.one(dict(i=f"buffer_load_dword v{vJUNK}, v4, {s(sW1,4)}, s{sXR0} offen offset:128", vm="t"))
                X.one(tch)
            a(X.lg.drain()); a("s_barrier")
            ST.stamp("barA")
            a("s_setprio 0")
            first = [x for x in n1[17 * JP:17 * JS] if isinstance(x, str)]
            wr = [x for x in n1[:17 * JS] if not isinstance(x, str)]
            X.run(spread(first[:len(first) * 3 // 4], rds) + first[len(first) * 3 // 4:] if first else flat(rds))
            a(X.lg.drain()); a("s_barrier")
            X.run(spread(n1[17 * JS:], [[w] for w in wr]) if n1[17 * JS:] else wr)
        a(f"v_add_u32 v{vACTH}, 0x8000, v{vACTW}")
        a(f"s_and_b32 s{sT}, s{sW}, 1")
        a(f"s_lshl_b32 s{sT}, s{sT}, 12")
        a(f"s_add_u32 s{sT}, s{sT}, {ACT}")
        a(f"v_add_u32 v{vAR}, s{sT}, v{vL16}")
        a(f"v_add_u32 v{vARH}, 0x8000, v{vAR}")
        ST.stamp("norm1", X)
        barrier(["xw"], [("w1", -1)], "Bx")
        def burst1(st, bar, extra=()):
            T, t = divmod(st, 3)
            mfs = []
            for kl in range(6):
                ks = 6 * t + kl; g = 18 * T + ks
                for aa in range(2):
                    for mt16 in range(2):
                        acc = ACC + (aa * 2 + mt16) * 4
                        src = v(BI + 4 * aa, 4) if ks == 0 else v(acc, 4)
                        dst = acc if ks < 17 else PEND + (aa * 2 + mt16) * 4
                        nl = [("A", g, 0), ("A", g, 1)]
                        if ks == 0: nl.append(("B", T))
                        if T == 0: nl.append(("xf", mt16, ks))
                        mfs.append((kl, dict(i=f"{M16} {v(dst,4)}, {v(frag(g,aa),4)}, {v(XF(mt16,ks),4)}, {src}", needl=nl)))
            if opt.get("chain1"):
                m2 = []
                for k0 in range(0, 6, 2):
                    for r in range(4): m2 += [(k0 + 1 if r == 3 else k0, mfs[4 * k0 + r][1]), (k0 + 1 if r == 3 else k0, mfs[4 * k0 + 4 + r][1])]
                mfs = m2
            rd = [(kl, r) for kl in range(6) for r in greads(6 * st + 2 + kl)]
            extra = list(extra)
            n = len(mfs)
            nb = opt.get("nb", 2) if ph == 0 else 0
            last = n if ph == 0 else n - opt.get("tail", 3)
            a("s_setprio 0")
            for mi, (kl, m) in enumerate(mfs):
                X.one(m)
                if ph == 0 and mi == nb - 1 and bar: bar()
                if ph == 1 and mi == opt.get("prio_at", 12): a("s_setprio 1")
                if mi >= nb - 1:
                    left = max(1, last - mi)
                    cnt = -(-len(rd) // left)
                    is_last_of_k = (mi + 1 == n) or mfs[mi + 1][0] != kl
                    for _ in range(min(cnt, 2)):
                        if rd and (rd[0][0] - 2 < kl or (rd[0][0] - 2 == kl and is_last_of_k)):
                            X.one(rd.pop(0)[1])
                if extra: X.one(extra.pop(0))
            X.run([r for _, r in rd])
            X.run(extra)
            a(f"s_setprio {opt.get('vprio', 2) if ph == 0 else max(1, opt.get('vprio', 2))}")
        def valu1(items, dmas):
            X.run(spread(items, dmas) if items else flat(dmas))
        xr1 = [xn_read(1, ks) for ks in range(18)]
        X.run(xr1[:3] + bias_reads(0) + greads(0) + greads(1))
        mq = []
        LS = NS1 - 1
        def lastl(sg):
            g = min(NG - 1, 6 * sg + 7)
            return [("A", g, 0), ("A", g, 1), ("xf", 1, 17)] + (["aw", ("act", 2)] if sg == LS - 1 else [])
        for st in range(NS1):
            T, t = divmod(st, 3)
            nm = f"B{st}" if t == 0 else None
            us = [9] if st == 0 else list(units_of(st + 2))
            dm = [w1_unit(U, ph) for U in us]
            bar = lambda: barrier(lastl(st - 1) if st else [("A", 1, 1)], [("w1", st), "w2a"], nm)
            br = [[r] for r in bias_reads(T + 1)] if (t == 1 and T < NT - 1) else []
            q = st - (LS - 2) - ph
            if 0 <= q < 2: br = br + [[r] for kap in range(3 * q, 3 * q + 3) for r in act_reads(kap)]
            if st == 0 and T1 == 2: br = br + [[tch]]
            if ph == 1 and st == opt.get("pw", 14):
                br = br + [[f"v_mov_b32 v254, {OOB}", f"v_lshl_add_u32 v242, v{vL16}, 3, s{sPFA}", f"v_cmp_gt_u32 vcc, 64, v{vL16}", "s_nop 1",
                            "v_cndmask_b32 v242, v254, v242, vcc",
                            f"s_lshl_b32 s{sT}, s{sMT}, 7", f"s_lshl_b32 s{sT+1}, s{sSL}, 3", f"s_add_u32 s{sT}, s{sT}, s{sT+1}", f"s_add_u32 s{sT}, s{sT}, {WS_PF}",
                            f"s_cmp_eq_u32 s{sW}, 4", f"s_cselect_b32 s{sT}, s{sT}, {OOB}", f"v_writelane_b32 v242, s{sT}, 4",
                            dict(i=f"buffer_store_dwordx2 {v(vFD,2)}, v242, {s(sWS,4)}, 0 offen sc1", vm="pf", needv=["tg"])]]
            if st == 2 and opt.get("tlb", 0):
                br = br + [[f"s_mov_b32 s{sT}, {PTB * ph}", dict(i=f"buffer_load_dword v{vJUNK}, v{vST}, {s(sWS,4)}, s{sT} offen", vm="t")]]
            if ph == 1 and st == 1:
                br = br + [[f"v_mov_b32 v{TM}, 0", dict(i=f"buffer_load_dwordx2 {v(vFD,2)}, v{TM}, {s(sDBG,4)}, 0 offen sc1", vm="tg")]]
            if ph == 0:
                burst1(st, bar, xr1[3:] if st == 0 else ())
                if st == LS: break
                fresh = (t == 2)
                if fresh: mq.extend(mish_tile(T, 0))
                items = take(mq, 10 ** 6 if t == 1 else opt.get("bf", 40))
                if fresh and items:
                    for g in dm[:2]: X.run(g)
                    a("s_nop 1" if len(dm) >= 2 else "s_nop 7")
                    dm = dm[2:]
                valu1(items, dm + br)
            else:
                fresh = (t == 0 and st > 0)
                if fresh: mq.extend(mish_tile(T - 1, 1))
                items = take(mq, 10 ** 6 if t == 2 else opt.get("bf", 40))
                if st == 0: items = xr1[3:]
                if fresh and items: a("s_nop 7")
                k = opt.get("k1", 4) if st else 0
                X.run(items[:k])
                bar()
                if st == LS: dm = w2_pieces(range(32, 48, 4), ("w2", 0)) if OV else w2_dma(0, 1)
                if st == LS - 1 and OV:
                    X.run(flat(w2_pieces(range(0, 32, 4), "w2a")))
                valu1(items[k:], dm + br)
                burst1(st, None)
        assert not mq
        for k in (1, 2): a(f"v_add_u32 v{vRBs[k]}, {k*SLOT}, v{vRB}")
        a(f"v_mov_b32 v{vFA+1}, {OOB}")
        a(f"v_lshl_add_u32 v{vFA}, v{vL16}, 3, s{sPFA}")
        a(f"v_cmp_gt_u32 vcc, 64, v{vL16}")
        a("s_nop 1")
        a(f"v_cndmask_b32 v{vFA}, v{vFA+1}, v{vFA}, vcc")
        if ph == 1:
            Lt = a.newlabel("Ltg")
            cond = [f"v_readfirstlane_b32 s{sTAG+1}, v{vFD+1}", f"v_readfirstlane_b32 s{sTAG}, v{vFD}", f"s_cmp_lg_u32 s{sTAG+1}, 0"]
            X.one(dict(needv=["tg"]))
            X.run(cond); a(f"s_cbranch_scc1 {Lt}")
            a(f"v_mov_b32 v{TM}, 0")
            poll(a, [f"buffer_load_dwordx2 {v(vFD,2)}, v{TM}, {s(sDBG,4)}, 0 offen sc1"], cond, "i")
            a.label(Lt)
        a("s_nop 3")
        early = [[r] for kap in range(6, 9) for r in act_reads(kap)]
        if ph == 0 and not OV: early = w2_dma(0, 0) + early
        mt = mish_tile(NT - 1, ph)
        X.run(spread(mt[:70], early) + mt[70:])
        def g2bar():
            a(X.lg.drain())
            barrier([], [("w2", 0)], "G2 start")
        if not (OV and ph == 0): g2bar()
        late = [r for kap in range(9, 12) for r in act_reads(kap)]
        def burst2(st, embed_barrier, extra=(), xbar=None):
            extra = list(extra)
            ov = OV and xbar is not None
            held, GN = (extra, opt.get("gn", 27)) if ov else ([], -1)
            if ov: extra = []
            a("s_setprio 0")
            CH = opt.get("chain2", 2)
            seq = [(i0 + c, mu) for i0 in range(0, 12, CH) for mu in range(4) for c in range(CH)]
            rd = [(i, r) for i in range(PD2, 12) for r in b_reads(st, i)]
            lastuse = {i: max(n for n, (ii, _) in enumerate(seq) if ii == i) for i in range(12)}
            for n, (i, mu) in enumerate(seq):
                acc = ACC2 + mu * 4
                src = "0" if i == 0 else v(acc, 4)
                nl = [("W", st, i)] + ([("act", i)] if st == 0 else [])
                X.one(dict(i=f"{M16} {v(acc,4)}, {v(frag2(12*st+i),4)}, {v(AFR(mu,i),4)}, {src}", needl=nl))
                if rd and (n % 2 == 0 or CH > 1) and (rd[0][0] - 5 < 0 or lastuse[rd[0][0] - 5] <= n) and rd[0][0] <= i + PD2 + CH - 1 and not (ov and n <= GN and rd[0][0] >= 8): X.one(rd.pop(0)[1])
                elif extra: X.one(extra.pop(0))
                if ov and n == GN:
                    g2bar()
                    while rd and (rd[0][0] - 5 < 0 or lastuse[rd[0][0] - 5] <= n): X.one(rd.pop(0)[1])
                    X.run(held[:4]); held = held[4:]
                elif ov and n > GN:
                    X.run(held[:2]); held = held[2:]
                if xbar and n == (44 if ov else 31): xbar()
                if embed_barrier and n == 40:
                    assert not rd
                    a("s_setprio 1")
                    embed_barrier()
            a("s_setprio 2")
            assert not extra and not rd
        def pre2(st): return [r for i in range(PD2) for r in b_reads(st, i)]
        LAG = opt.get("lag", 0)
        for st in range(9):
            nxtv = ([("w2", st + 1)] if st < 8 else []) + [("st", st - LAG - 1 + 0)]
            lastw = [("W", st, 11)]
            dm = w2_dma(st + 2, ph) if st + 2 <= 8 else []
            nm = f"G2 B{st+1}" if (st % 2 == 1 or opt.get("allg2")) else None
            def vphase(est):
                d = list(dm)
                for g in d[:2]: X.run(g)
                if len(d) < 2: a("s_nop 7")
                valu1(epi_valu(), d[2:])
                X.run(epi_store(est))
            xb = lambda: barrier([("act", 11)], [])
            if ph == 0:
                X.run(pre2(st))
                if st == 0 and not OV: X.run(flat(w2_dma(1, 0)))
                burst2(st, None, late if st == 0 else (), xb if st == 0 else None)
                vphase(st)
                if st < 8: barrier(lastw, nxtv, nm)
            else:
                if st == 0:
                    valu1(late, w2_dma(1, 1) + (w2_dma(1, 0) if OV else []))
                    xb()
                    X.run(flat(dm))
                else:
                    lvl = st - 1 - LAG
                    vphase(st - 1)
                    if lvl in opt.get("levels", (1, 2, 3, 4, 5, 6)): X.run(publish(lvl))
                    if lvl == 7 and opt.get("l7", 1):
                        X.run([f"s_lshl_b32 s{sT}, s{sMT}, 7", f"s_lshl_b32 s{sT+1}, s{sSL}, 3", f"s_add_u32 s{sT}, s{sT}, s{sT+1}", f"s_add_u32 s{sT}, s{sT}, {WS_PF}",
                               f"s_cmp_eq_u32 s{sW}, 4", f"s_cselect_b32 s{sT}, s{sT}, {OOB}", f"v_mov_b32 v{vFA}, {OOB}", f"v_writelane_b32 v{vFA}, s{sT}, 0"] + publish(7))
                X.run(pre2(st))
                burst2(st, (lambda: barrier(lastw, nxtv, nm)) if st < 8 else None)
        if opt.get("l8", 0):
            barrier([], [("st", 7)])
            if ph == 1: X.run(publish(8))
        if ph == 1:
            dm = []
            vphase(8)
        ST.stamp("G2 end", X)
        if ph == 0: a(f"s_branch {Lfin}")
        if ph == 1: return
        ST.n = n0; ST.names = names0
    Lp1 = a.newlabel("Lph1")
    a(f"s_cmp_lg_u32 s{sPH}, 0")
    a(f"s_cbranch_scc1 {Lp1}")
    Lfin = a.newlabel("Lfin")
    body(0)
    a.label(Lp1)
    body(1)
    a.label(Lfin)
    a("s_setprio 0")
    a(f"s_load_dwordx2 s[{sW1}:{sW1+1}], s[0:1], 80")
    a(f"v_lshrrev_b32 v40, 9, v{vL16}")
    a(f"v_mul_u32_u24 v41, {PSL}, v40")
    a(f"v_bfe_u32 v40, v{vL16}, 7, 2")
    a(f"v_lshl_add_u32 v41, v40, 9, v41")
    a(f"v_and_b32 v42, 0x70, v{vL16}")
    a(f"v_add_u32 v41, v41, v42")
    a(f"v_mul_u32_u24 v44, 72, v42")
    a(f"v_lshl_add_u32 v44, v40, 4, v44")
    a(f"s_lshl_b32 s{sT}, s{sMT}, 2")
    a(f"s_and_b32 s{sT+1}, s{sSL}, 3")
    a(f"s_add_u32 s{sT}, s{sT}, s{sT+1}")
    a(f"s_lshr_b32 s{sT+1}, s{sSL}, 2")
    a(f"s_add_u32 s{sT+1}, s{sT+1}, 6")
    a(f"s_lshl_b32 s{sT+1}, s{sT+1}, 1")
    a(f"s_add_u32 s{sT+1}, s{sT+1}, s{sPH}")
    a(f"s_mul_i32 s{sT+2}, s{sT}, {PTB}")
    a(f"s_lshl_b32 s{sT+3}, s{sT+1}, 11")
    a(f"s_add_u32 s{sT+2}, s{sT+2}, s{sT+3}")
    a(f"s_lshl_b32 s{sT+3}, s{sMG}, 7")
    a(f"s_add_u32 s{sT+2}, s{sT+2}, s{sT+3}")
    a(f"v_add_u32 v41, s{sT+2}, v41")
    a(f"s_mul_i32 s{sT}, s{sT}, 36864")
    a(f"s_mul_i32 s{sT+3}, s{sMG}, 9216")
    a(f"s_add_u32 s{sT}, s{sT}, s{sT+3}")
    a(f"s_lshl_b32 s{sT+1}, s{sT+1}, 6")
    a(f"s_add_u32 s{sT}, s{sT}, s{sT+1}")
    a(f"v_mov_b32 v43, {OOB}")
    a(f"v_cmp_gt_u32 vcc, 512, v{vL16}")
    a(f"v_add_u32 v44, s{sT}, v44")
    a("s_nop 0")
    a("v_cndmask_b32 v42, v43, v41, vcc")
    a("v_cndmask_b32 v44, v43, v44, vcc")
    a(f"s_lshl_b32 s{sT}, s{sMT}, 7")
    a(f"s_add_u32 s{sT}, s{sT}, {WS_PF}")
    a(f"v_bfe_u32 v45, v{vL16}, 4, 4")
    a(f"s_and_b32 s{sT+1}, s{sSL}, 3")
    a(f"s_add_u32 s{sT+1}, s{sT+1}, 12")
    a(f"v_mov_b32 v46, s{sT+1}")
    a("v_cmp_gt_u32 vcc, 12, v45")
    a("s_nop 1")
    a("v_cndmask_b32 v45, v46, v45, vcc")
    a(f"v_lshl_add_u32 v45, v45, 3, s{sT}")
    for k in range(8): a(f"v_mov_b32 v{48+k}, 0")
    a("s_mov_b32 s66, 0x00003f80")
    a("s_mov_b32 s67, 0x3f800000")
    a("s_waitcnt vmcnt(0) lgkmcnt(0)")
    a("s_barrier")
    srd2(a, sW1, XBYTES)
    Lq = a.newlabel("Lq")
    a(f"s_cmp_lg_u32 s{sW}, 4")
    a(f"s_cbranch_scc1 {Lq}")
    a(f"v_lshrrev_b32 v46, 4, v{vL16}")
    a(f"v_cmp_eq_u32 vcc, s{sSL}, v46")
    a(f"s_add_u32 s{sT}, s{sTAG}, 9")
    a(f"v_mov_b32 v{vFD}, s{sT}")
    if opt.get("l8", 0):
        a(f"s_lshr_b32 s{sT+1}, s{sSL}, 2")
        a(f"s_add_u32 s{sT+1}, s{sT+1}, 7")
    else:
        a(f"s_cmp_lt_u32 s{sSL}, {4 if opt.get('l7', 1) else 0}")
        a(f"s_cselect_b32 s{sT+1}, 7, 9")
    a("v_cndmask_b32 v46, v43, v45, vcc")
    a(f"buffer_store_dwordx2 {v(vFD,2)}, v46, {s(sWS,4)}, 0 offen sc1")
    poll(a, [f"buffer_load_dwordx2 v[46:47], v45, {s(sWS,4)}, 0 offen sc1"], k7h.flag_cond([46], f"s{sT+1}"), "f", opt.get("fsleep", 6))
    a.label(Lq)
    a("s_barrier")
    ST.stamp("all seen")
    for i in range(6):
        a(f"s_mov_b32 s{sOFF}, {2 * i * PSL}")
        a(f"buffer_load_dwordx4 {v(4*i,4)}, v41, {s(sWS,4)}, s{sOFF} offen sc1")
    a(f"s_mov_b32 s{sOFF}, {12 * PSL}")
    a(f"buffer_load_dwordx4 v[24:27], v42, {s(sWS,4)}, s{sOFF} offen sc1")
    for i in range(6):
        a(f"s_waitcnt vmcnt({6-i})")
        for k in range(4):
            a(f"v_dot2c_f32_bf16 v{48+2*k}, s66, v{4*i+k}")
            a(f"v_dot2c_f32_bf16 v{49+2*k}, s67, v{4*i+k}")
    a(f"s_mov_b32 s{sT}, {f32(LN2)}")
    a("s_nop 1")
    for k in range(8): a(f"v_mov_b32 v{56+k}, v{48+k}")
    for k in range(8): a(f"v_permlane32_swap_b32 v{48+k}, v{56+k}")
    for k in range(8): a(f"v_add_f32 v{48+k}, v{48+k}, v{56+k}")
    a("s_waitcnt vmcnt(0)")
    for k in range(4):
        a(f"v_lshlrev_b32 v{56+2*k}, 16, v{24+k}")
        a(f"v_and_b32 v{57+2*k}, 0xffff0000, v{24+k}")
    for k in range(8): a(f"v_fmac_f32 v{56+k}, s{sT}, v{48+k}")
    for k in range(4): a(f"v_cvt_pk_bf16_f32 v{28+k}, v{56+2*k}, v{57+2*k}")
    a(f"buffer_store_dwordx4 v[28:31], v44, {s(sW1,4)}, 0 offen {opt.get('omod2', '')}")
    if opt.get("stamps"): a("s_waitcnt vmcnt(0)")
    ST.stamp("end"); ST.cyc(1)
    ST.flush(sWS, sW)
    a("s_endpgm")
    a.label(Lhelp)
    k7h.helper(a, opt, Lend)
    a.label(Lend)
    a("s_endpgm")
```

```python
from common import *
from k_mlp import Emit, M16

KB = 0; KCH = 8448; KC1 = 4096 + 128
UB = 9 * 8448; UCH = 9216; UCP = 4576
STB = 159744
WS_UF = WS_ZF + 1536
sX, sK, sV, sWS, sSK, sKF, sDD, sOUT, sDBG = 8, 12, 16, 20, 24, 40, 44, 48, 52
sH, sW, sMG, sPH, sQ, sKC, sZO, sI = 28, 30, 31, 32, 33, 34, 35, 36
sT = 56; sEX = 60; sOFF = 62
sCNT, sTAG = 5, 6
OOB = "0x7ffffff0"
vL16, vLN, vT16 = 239, 241, 238
NSL = 12

def flag_cond(regs, level):
    lv = level if isinstance(level, str) else str(level)
    o = [f"s_add_u32 s{sT+3}, s{sTAG}, {lv}"]
    for r in regs:
        o += [f"v_subrev_u32 v{r}, s{sT+3}, v{r}", f"v_xor_b32 v{r+1}, s{sTAG+1}, v{r+1}", f"v_lshrrev_b32 v{r}, 4, v{r}", f"v_or_b32 v{r}, v{r}, v{r+1}"]
    for r in regs[1:]: o.append(f"v_or_b32 v{regs[0]}, v{regs[0]}, v{r}")
    return o + [f"v_cmp_ne_u32 vcc, 0, v{regs[0]}", "s_cmp_eq_u64 vcc, 0"]

def helper(a, opt, Lend):
    from k7 import srd2, poll, stats_math
    ST = Stamps(a, opt.get("stamps"), 1)
    ST.n = 1; ST.names = ["start"]
    for d, off in ((sX, 0), (sK, 8), (sV, 16), (sSK, 24), (sKF, 32), (sDD, 40), (sOUT, 80), (sDBG, 88), (sWS, 96)):
        a(f"s_load_dwordx2 s[{d}:{d+1}], s[0:1], {off}")
    a("v_lshrrev_b32 v1, 6, v0")
    a(f"v_and_b32 v{vLN}, 63, v0")
    a(f"v_readfirstlane_b32 s{sW}, v1")
    a(f"s_sub_u32 s{sH}, s2, 192")
    a(f"v_lshlrev_b32 v{vL16}, 4, v{vLN}")
    a(f"v_lshlrev_b32 v{vT16}, 4, v0")
    a(f"s_and_b32 s{sMG}, s{sW}, 3")
    a(f"s_lshr_b32 s{sPH}, s{sW}, 2")
    a("s_waitcnt lgkmcnt(0)")
    srd2(a, sDBG, 256); srd2(a, sK, XBYTES); srd2(a, sV, XBYTES); srd2(a, sX, XBYTES); srd2(a, sWS, WS_END)
    srd2(a, sSK, 576 * 8); srd2(a, sKF, XBYTES); srd2(a, sDD, 576 * 2); srd2(a, sOUT, XBYTES)
    def one_lane_flag(addr_sgpr, level=0):
        a(f"v_mov_b32 v1, {OOB}")
        a(f"s_add_u32 s{sT+3}, s{sTAG}, {level}")
        a(f"v_mov_b32 v2, s{sT+3}")
        a(f"v_mov_b32 v3, s{sTAG+1}")
        a(f"v_writelane_b32 v1, s{addr_sgpr}, 0")
        a(f"buffer_store_dwordx2 v[2:3], v1, {s(sWS,4)}, 0 offen sc1")
    Lr = a.newlabel("Ltag")
    a(f"s_lshl_b32 s{sT}, s{sH}, 3")
    a(f"s_add_u32 s{sT}, s{sT}, s{sW}")
    a(f"s_cmp_lg_u32 s{sT}, 7")
    a(f"s_cbranch_scc1 {Lr}")
    a(f"s_mov_b64 s[{sT}:{sT+1}], s[66:67]" if opt.get("earlytag") else f"s_memrealtime s[{sT}:{sT+1}]")
    a(f"v_mov_b32 v1, {OOB}")
    a("v_writelane_b32 v1, 0, 0")
    a("s_waitcnt lgkmcnt(0)")
    a(f"s_lshl_b64 s[{sT}:{sT+1}], s[{sT}:{sT+1}], 4")
    a(f"s_bitset1_b32 s{sT+1}, 31")
    a(f"v_mov_b32 v2, s{sT}")
    a(f"v_mov_b32 v3, s{sT+1}")
    a(f"buffer_store_dwordx2 v[2:3], v1, {s(sDBG,4)}, 0 offen sc1")
    a.label(Lr)
    if opt.get("hpw", 1):
        Lw_ = a.newlabel("Lpw")
        a(f"s_cmp_lg_u32 s{sW}, 0")
        a(f"s_cbranch_scc1 {Lw_}")
        a(f"s_lshl_b32 s{sT}, s{sH}, 3")
        a(f"s_add_u32 s{sT}, s{sT}, {WS_UF}")
        a(f"v_mov_b32 v1, {OOB}")
        a("v_mov_b32 v2, 0"); a("v_mov_b32 v3, 0")
        a(f"v_writelane_b32 v1, s{sT}, 0")
        a(f"buffer_store_dwordx2 v[2:3], v1, {s(sWS,4)}, 0 offen sc1")
        a.label(Lw_)
    if opt.get("ctouch", 1):
        Lc = a.newlabel("Lct")
        a(f"s_cmp_lg_u32 s{sW}, 6")
        a(f"s_cbranch_scc1 {Lc}")
        a(f"s_getpc_b64 s[{sT}:{sT+1}]")
        Lh = a.newlabel("Lhere"); a.label(Lh)
        a(f"s_sub_u32 s{sT}, s{sT}, {Lh}-{opt['kname']}")
        a(f"s_subb_u32 s{sT+1}, s{sT+1}, 0")
        a(f"s_lshr_b32 s{sT+2}, s{sH}, 3")
        a(f"s_lshl_b32 s{sT+2}, s{sT+2}, 13")
        a(f"v_lshl_add_u32 v4, v{vLN}, 7, s{sT+2}")
        a(f"v_add_u32 v5, 0x10000, v4")
        a(f"v_min_u32 v4, {Lend}-{opt['kname']}, v4")
        a(f"v_min_u32 v5, {Lend}-{opt['kname']}, v5")
        a(f"global_load_dword v140, v4, s[{sT}:{sT+1}]")
        a(f"global_load_dword v140, v5, s[{sT}:{sT+1}]")
        a.label(Lc)
    KL, VL, SL_, BN, XL = 0, 41984, 80896, 86016, 118784
    a(f"s_mul_i32 s{sT}, s{sH}, 36864")
    a(f"s_sub_u32 s{sT+1}, s{sT}, 4608")
    a(f"v_add_u32 v4, s{sT+1}, v{vT16}")
    a(f"s_sub_u32 s{sT+1}, s{sT}, 1152")
    a(f"v_add_u32 v5, s{sT+1}, v{vT16}")
    a(f"s_lshl_b32 s{sT+2}, s{sW}, 10")
    def dma(vaddr, srd_, lds, nwaves=8, so="0"):
        L = None
        if nwaves < 8:
            L = a.newlabel("Ld"); a(f"s_cmp_ge_u32 s{sW}, {nwaves}"); a(f"s_cbranch_scc1 {L}")
        a(f"s_add_u32 m0, s{sT+2}, {lds}")
        a("s_nop 0")
        a(f"buffer_load_dwordx4 v{vaddr}, {s(srd_,4)}, {so} offen lds")
        if L: a.label(L)
    for i in range(6):
        dma(4, sK, KL + i * 8192, 8 if i < 5 else 1)
        a("v_add_u32 v4, 8192, v4")
        if i < 5:
            dma(5, sV, VL + i * 8192, 8 if i < 4 else 6)
            a("v_add_u32 v5, 8192, v5")
    dma(vT16, sSK, SL_, 5)
    a("v_mov_b32 v4, 0")
    KR, VR, KU, WU, UU, OUT, SKR = 12, 24, 34, 58, 66, 84, 8
    vKA, vBW, vBR, vSA, vID = 116, 117, 118, 119, 120
    a(f"s_lshl_b32 s{sT}, s{sW}, 12")
    a(f"s_add_u32 s{sT+1}, s{sT}, {BN}")
    a(f"v_lshl_add_u32 v{vBW}, v{vL16}, 2, s{sT+1}")
    a(f"v_add_u32 v{vBR}, s{sT+1}, v{vL16}")
    a(f"s_lshl_b32 s{sT+1}, s{sH}, 2")
    a(f"s_sub_u32 s{sT+1}, 252, s{sT+1}")
    a(f"s_mul_i32 s{sT+1}, s{sT+1}, 18432")
    a(f"s_add_u32 s{sOFF}, s{sT}, s{sT+1}")
    a(f"s_add_u32 s{sOFF}, s{sOFF}, {WS_U}")
    a(f"v_mov_b32 v{vID}, v0")
    a(f"s_mov_b32 s{sI}, s{sW}")
    a("s_movk_i32 s63, 3641")
    a("s_waitcnt vmcnt(0)")
    a("s_barrier")
    ST.stamp("in landed")
    a(f"buffer_load_dwordx2 v[6:7], v4, {s(sDBG,4)}, 0 offen sc1")
    a(f"s_mul_i32 s64, s{sH}, 36864")
    a(f"s_lshl_b32 s{sT+2}, s{sW}, 10")
    for i in range(5):
        dma(vT16, sX, XL + i * 8192, 8 if i < 4 else 4, "s64")
        a("s_add_u32 s64, s64, 8192")
    if opt.get("kft", 0):
        a(f"v_lshlrev_b32 v122, 2, v{vT16}")
        a(f"s_lshl_b32 s64, s{sH}, 15")
        a(f"buffer_load_dword v123, v122, {s(sKF,4)}, s64 offen")
    a(f"v_mov_b32 v2, 0"); a("v_mov_b32 v3, 0")
    a(f"v_lshrrev_b32 v121, 1, v{vL16}")
    a(f"v_add_u32 v121, {STB}, v121")
    a("ds_write_b64 v121, v[2:3]")
    Lp = a.newlabel("Lprep"); a.label(Lp)
    a(f"v_mul_u32_u24 v2, s63, v{vID}")
    a("v_lshrrev_b32 v2, 20, v2")
    a("v_mul_u32_u24 v3, 288, v2")
    a(f"v_sub_u32 v3, v{vID}, v3")
    a("v_sub_u32 v2, 3, v2")
    a(f"v_mul_u32_u24 v{vKA}, 9216, v2")
    a(f"v_lshl_add_u32 v{vKA}, v3, 2, v{vKA}")
    a(f"v_lshlrev_b32 v{vSA}, 4, v3")
    a(f"v_add_u32 v{vSA}, {SL_}, v{vSA}")
    a(f"ds_read_b128 {v(SKR,4)}, v{vSA}")
    for r in range(12): a(f"ds_read_b32 v{KR+r}, v{vKA} offset:{KL + r*1152}")
    a("s_waitcnt lgkmcnt(6)")
    for r in range(9): a(f"ds_read_b32 v{VR+r}, v{vKA} offset:{VL + r*1152}")
    for j in range(4):
        for h in range(2):
            src = SKR + 2 * h + (j >> 1)
            a(f"v_lshlrev_b32 v{WU+2*j+h}, 16, v{src}" if j % 2 == 0 else f"v_and_b32 v{WU+2*j+h}, 0xffff0000, v{src}")
    a("s_waitcnt lgkmcnt(9)")
    for r in range(12):
        a(f"v_lshlrev_b32 v{KU+2*r}, 16, v{KR+r}")
        a(f"v_and_b32 v{KU+2*r+1}, 0xffff0000, v{KR+r}")
    for r in range(9): a(f"v_pk_mul_f32 {v(UU+2*r,2)}, {v(KU+2*r,2)}, {v(WU+6,2)}")
    for j in range(1, 4):
        for r in range(9): a(f"v_pk_fma_f32 {v(UU+2*r,2)}, {v(KU+2*(r+j),2)}, {v(WU+2*(3-j),2)}, {v(UU+2*r,2)}")
    a("s_waitcnt lgkmcnt(0)")
    for r in range(9):
        a(f"v_lshlrev_b32 v{KU+2*r}, 16, v{VR+r}")
        a(f"v_and_b32 v{KU+2*r+1}, 0xffff0000, v{VR+r}")
    for r in range(9): a(f"v_pk_mul_f32 {v(UU+2*r,2)}, {v(UU+2*r,2)}, {v(KU+2*r,2)}")
    for h in range(2):
        for cp in range(2):
            o = OUT + (h * 2 + cp) * 4
            for i in range(4):
                top = 7 + cp - 2 * i
                a(f"v_cvt_pk_bf16_f32 v{o+i}, v{UU+2*top+h}, v{UU+2*(top-1)+h}")
            a(f"ds_write_b128 v{vBW}, {v(o,4)} offset:{(h*2+cp)*16}")
    for k in range(4): a(f"ds_read_b128 {v(100+4*k,4)}, v{vBR} offset:{k*1024}")
    a(f"v_add_u32 v{vID}, 512, v{vID}")
    for k in range(4):
        a(f"s_waitcnt lgkmcnt({3-k})")
        a(f"buffer_store_dwordx4 {v(100+4*k,4)}, v{vL16}, {s(sWS,4)}, s{sOFF} offen offset:{k*1024} sc1")
    a(f"s_add_u32 s{sOFF}, s{sOFF}, 32768")
    a(f"s_add_u32 s{sI}, s{sI}, 8")
    a(f"s_cmp_lt_u32 s{sI}, 18")
    a(f"s_cbranch_scc1 {Lp}")
    ST.stamp("prep done")
    tcond = [f"v_readfirstlane_b32 s{sTAG+1}, v7", f"v_readfirstlane_b32 s{sTAG}, v6", f"s_cmp_lg_u32 s{sTAG+1}, 0"]
    Ltg = a.newlabel("Ltg")
    a("s_waitcnt vmcnt(0)")
    for l in tcond: a(l)
    a(f"s_cbranch_scc1 {Ltg}")
    poll(a, [f"buffer_load_dwordx2 v[6:7], v4, {s(sDBG,4)}, 0 offen sc1"], tcond, "t")
    a.label(Ltg)
    a("s_waitcnt vmcnt(0)")
    a(f"s_load_dwordx2 s[{sK}:{sK+1}], s[0:1], 72")
    a("s_waitcnt lgkmcnt(0)")
    a("s_barrier")
    srd2(a, sK, WBYTES)
    L1 = a.newlabel("Lf")
    a(f"s_cmp_lg_u32 s{sW}, 0")
    a(f"s_cbranch_scc1 {L1}")
    a(f"s_lshl_b32 s{sT}, s{sH}, 3")
    a(f"s_add_u32 s{sT}, s{sT}, {WS_UF}")
    one_lane_flag(sT)
    a.label(L1)
    ST.stamp("U published")
    XR = 200; vXO, vXO4, vSB, SS = 236, 237, 235, 232
    a(f"v_and_b32 v6, 7, v{vLN}")
    a(f"s_lshl_b32 s{sT}, s{sMG}, 3")
    a(f"v_add_u32 v6, s{sT}, v6")
    a(f"v_lshlrev_b32 v{vSB}, 3, v6")
    a(f"v_add_u32 v{vSB}, {STB}, v{vSB}")
    a(f"v_mul_u32_u24 v{vXO}, 1152, v6")
    a(f"v_bfe_u32 v7, v{vLN}, 3, 2")
    a(f"v_lshl_add_u32 v{vXO}, v7, 4, v{vXO}")
    a(f"v_lshrrev_b32 v7, 5, v{vLN}")
    a(f"v_lshl_add_u32 v{vXO}, v7, 7, v{vXO}")
    a(f"s_lshl_b32 s{sT}, s{sPH}, 6")
    a(f"v_add_u32 v{vXO}, s{sT}, v{vXO}")
    a(f"v_add_u32 v8, {XL}, v{vXO}")
    for q in range(5): a(f"ds_read_b128 {v(XR+4*q,4)}, v8 offset:{q*256}")
    a(f"s_mul_i32 s{sT}, s{sH}, 36864")
    a(f"v_add_u32 v9, s{sT}, v{vXO}")
    a(f"v_mov_b32 v7, {OOB}")
    a(f"v_cmp_gt_u32 vcc, 32, v{vLN}")
    a("s_mov_b32 s66, 0x3f803f80")
    for k in range(4): a(f"v_mov_b32 v{12+k}, 0")
    a(f"v_cndmask_b32 v{vXO}, v7, v9, vcc")
    a(f"v_cndmask_b32 v{vXO4}, v9, v7, vcc")
    a("s_waitcnt lgkmcnt(0)")
    a("s_barrier")
    for k in range(4): a(f"v_cndmask_b32 v{XR+16+k}, 0, v{XR+16+k}, vcc")
    CA = 0
    QUADS = list(range(32, 160, 4))
    UL = 160
    vA, vB, vZS, vD0, AD, vS0, vUW, vUS, vDV = 220, 221, 222, 223, 224, 228, 234, 240, 242
    vN, vG, t1_, t2_, t3_, t4_ = 243, 244, 2, 3, 4, 5
    a(f"s_mul_i32 s{sKC}, s{sW}, {KCH}")
    a(f"s_lshl_b32 s{sQ}, s{sH}, 3")
    a(f"s_add_u32 s{sQ}, s{sQ}, s{sW}")
    a(f"s_lshl_b32 s{sT}, s{sQ}, 12")
    for c in range(2):
        a(f"s_add_u32 m0, s{sKC}, {KB + c * KC1}")
        a(f"s_add_u32 s{sOFF}, s{sT}, {4 * c}")
        for pc in range(4): a(f"buffer_load_dwordx4 v{vL16}, {s(sKF,4)}, s{sOFF} offen offset:{pc*1024} lds")
    a(f"s_mul_i32 s{sT}, s{sPH}, {KC1}")
    a(f"s_lshl_b32 s{sT+1}, s{sMG}, 10")
    a(f"s_add_u32 s{sT}, s{sT}, s{sT+1}")
    a(f"s_add_u32 m0, s{sT}, {KB + 8 * KCH}")
    a(f"s_lshl_b32 s{sT}, s{sH}, 12")
    a(f"s_add_u32 s{sT}, s{sT}, s{sT+1}")
    a(f"s_lshl_b32 s{sT+1}, s{sPH}, 2")
    a(f"s_add_u32 s{sT}, s{sT}, s{sT+1}")
    a(f"s_add_u32 s{sT}, s{sT}, {512 * 4096}")
    a(f"buffer_load_dwordx4 v{vL16}, {s(sKF,4)}, s{sT} offen lds")
    a(f"s_lshl_b32 s{sT}, s{sQ}, 1")
    a(f"v_mov_b32 v6, s{sT}")
    a(f"buffer_load_ushort v{vDV}, v6, {s(sDD,4)}, 0 offen")
    a(f"s_lshl_b32 s{sT}, s{sH}, 1")
    a(f"v_mov_b32 v7, s{sT}")
    a(f"buffer_load_ushort v245, v7, {s(sDD,4)}, 0 offen offset:1024")
    a(f"v_and_b32 v{vN}, 15, v{vLN}")
    a(f"v_lshrrev_b32 v{vG}, 4, v{vLN}")
    a(f"v_add_u32 v{t1_}, 1, v{vN}")
    a(f"v_and_b32 v{t2_}, 1, v{t1_}")
    a(f"v_lshrrev_b32 v{t1_}, 1, v{t1_}")
    a(f"v_lshlrev_b32 v{t3_}, 1, v{vG}")
    a(f"v_sub_u32 v{t1_}, v{t1_}, v{t3_}")
    a(f"v_lshlrev_b32 v{t1_}, 3, v{t1_}")
    a(f"v_mul_u32_u24 v{t3_}, {KC1}, v{t2_}")
    a(f"v_add_u32 v{t1_}, v{t1_}, v{t3_}")
    a(f"s_add_u32 s{sT+1}, s{sKC}, {KB + 48}")
    a(f"v_add_u32 v{vA}, s{sT+1}, v{t1_}")
    a(f"v_and_b32 v{t4_}, 1, v{vN}")
    a(f"v_mul_u32_u24 v{t1_}, {UCP}, v{t4_}")
    a(f"v_lshrrev_b32 v{t2_}, 1, v{vN}")
    a(f"v_lshl_add_u32 v{t3_}, v{t2_}, 2, v{vG}")
    a(f"v_lshlrev_b32 v{vZS}, 4, v{t3_}")
    a(f"v_lshl_add_u32 v{vZS}, v{t4_}, 3, v{vZS}")
    a(f"v_mul_u32_u24 v253, 36864, v{t2_}")
    a(f"v_lshl_add_u32 v253, v{vG}, 4, v253")
    a(f"v_lshl_add_u32 v253, v{t4_}, 3, v253")
    a(f"v_sub_u32 v{t3_}, 31, v{t3_}")
    a(f"v_lshl_add_u32 v{t1_}, v{t3_}, 4, v{t1_}")
    a(f"s_mul_i32 s{sT+1}, s{sW}, {UCH}")
    a(f"s_add_u32 s{sT+1}, s{sT+1}, {UB}")
    a(f"v_add_u32 v{vB}, s{sT+1}, v{t1_}")
    a(f"v_add_u32 v{vZS}, s{sT+1}, v{vZS}")
    a(f"v_lshlrev_b32 v{t1_}, 2, v{vG}")
    a(f"v_sub_u32 v{t1_}, v{vN}, v{t1_}")
    a(f"v_subrev_u32 v{vD0}, 3, v{t1_}")
    a(f"v_lshrrev_b32 v{t1_}, 8, v{vT16}")
    a(f"v_mul_u32_u24 v{vUS}, 18432, v{t1_}")
    a(f"v_and_b32 v{t2_}, 0xf0, v{vT16}")
    a(f"v_add_u32 v{vUS}, v{vUS}, v{t2_}")
    a(f"v_bfe_u32 v{t2_}, v{vT16}, 5, 3")
    a(f"v_mul_u32_u24 v{vUW}, {UCH}, v{t2_}")
    a(f"v_bfe_u32 v{t2_}, v{vT16}, 4, 1")
    a(f"v_mul_u32_u24 v{t2_}, {UCP}, v{t2_}")
    a(f"v_add_u32 v{vUW}, v{vUW}, v{t2_}")
    a(f"v_lshl_add_u32 v{vUW}, v{t1_}, 4, v{vUW}")
    a(f"v_add_u32 v{vUW}, {UB}, v{vUW}")
    a(f"v_lshrrev_b32 v{t1_}, 5, v{vT16}")
    a(f"v_mul_u32_u24 v246, 18432, v{t1_}")
    a(f"v_and_b32 v{t3_}, 16, v{vT16}")
    a(f"v_add_u32 v246, v246, v{t3_}")
    a(f"v_lshl_add_u32 v247, v{t1_}, 4, v{t2_}")
    a(f"v_add_u32 v247, {UB + 8 * UCH}, v247")
    for k in range(4): a(f"v_mov_b32 v{8+k}, 0")
    a(f"v_cmp_gt_u32 vcc, {448*16}, v{vT16}")
    a(f"s_and_saveexec_b64 s[{sEX}:{sEX+1}], vcc")
    a(f"ds_write_b128 v{vUW}, v[8:11] offset:4096")
    a(f"s_mov_b64 exec, s[{sEX}:{sEX+1}]")
    a(f"v_cmp_gt_u32 vcc, {56*16}, v{vT16}")
    a(f"s_and_saveexec_b64 s[{sEX}:{sEX+1}], vcc")
    a(f"ds_write_b128 v247, v[8:11] offset:4096")
    a(f"s_mov_b64 exec, s[{sEX}:{sEX+1}]")
    for k in range(20):
        a(f"v_dot2c_f32_bf16 v{12+2*(k&1)}, s66, v{XR+k}")
        a(f"v_dot2c_f32_bf16 v{13+2*(k&1)}, v{XR+k}, v{XR+k}")
    a("s_nop 2")
    a("v_add_f32 v12, v12, v14")
    a("v_add_f32 v13, v13, v15")
    a("s_nop 1")
    a("v_add_f32_dpp v12, v12, v12 row_ror:8 row_mask:0xf bank_mask:0xf")
    a("v_add_f32_dpp v13, v13, v13 row_ror:8 row_mask:0xf bank_mask:0xf")
    for op in ("v_permlane16_swap_b32", "v_permlane32_swap_b32"):
        a("v_mov_b32 v14, v12"); a("v_mov_b32 v15, v13"); a("s_nop 1")
        a(f"{op} v12, v14"); a(f"{op} v13, v15")
        a("v_add_f32 v12, v12, v14"); a("v_add_f32 v13, v13, v15")
    a("s_mov_b64 exec, 0xff")
    a(f"ds_add_f32 v{vSB}, v12")
    a(f"ds_add_f32 v{vSB}, v13 offset:4")
    a("s_mov_b64 exec, -1")
    a(f"v_mov_b32 v7, {OOB}")
    a(f"s_lshr_b32 s{sT}, s{sH}, 3")
    a(f"s_and_b32 s{sT+1}, s{sH}, 3")
    a(f"s_mul_i32 s{sT+1}, s{sT+1}, {1152*1152}")
    a(f"s_mul_i32 s{sT}, s{sT}, {144*1152}")
    a(f"s_add_u32 s39, s{sT}, s{sT+1}")
    a(f"s_lshl_b32 s{sT}, s{sW}, 11")
    a(f"v_lshl_add_u32 v248, v{vLN}, 7, s{sT}")
    a(f"v_cmp_gt_u32 vcc, 16, v{vLN}")
    a("s_nop 1")
    a("v_cndmask_b32 v248, v7, v248, vcc")
    L2 = a.newlabel("Lf")
    a(f"s_cmp_lg_u32 s{sW}, 0")
    a(f"s_cbranch_scc1 {L2}")
    a(f"v_lshrrev_b32 v4, 1, v{vL16}")
    a(f"v_add_u32 v4, {WS_UF}, v4")
    poll(a, [f"buffer_load_dwordx2 v[2:3], v4, {s(sWS,4)}, 0 offen sc1"], flag_cond([2], 0), "u", 2)
    a.label(L2)
    a("s_barrier")
    ST.stamp("U seen")
    a(f"s_lshl_b32 s{sT}, s{sH}, 8")
    a(f"s_add_u32 s{sT}, s{sT}, {WS_U}")
    for it in range(8):
        a(f"buffer_load_dwordx4 {v(UL+4*it,4)}, v{vUS}, {s(sWS,4)}, s{sT} offen sc1")
        if it < 7: a(f"s_add_u32 s{sT}, s{sT}, {32*18432}")
    a(f"s_lshl_b32 s{sT}, s{sH}, 5")
    a(f"s_add_u32 s{sT}, s{sT}, {WS_U + 128*128}")
    a(f"buffer_load_dwordx4 {v(UL+32,4)}, v246, {s(sWS,4)}, s{sT} offen sc1")
    def a0_setup(dv, sbase):
        for i in range(4):
            a(f"v_add_u32 v250, {i}, v{vD0}")
            a(f"v_cmp_eq_u32 vcc, 0, v250")
            a(f"v_max_i32 v251, 0, v250")
            a(f"v_lshl_add_u32 v{vS0+i}, v251, 2, s{sbase}")
            a(f"v_cndmask_b32 v{AD+i}, 0, v{dv}, vcc")
    a("s_waitcnt vmcnt(9)")
    a(f"s_sub_u32 s{sT}, 8, s{sW}")
    a(f"s_lshl_b32 s{sT+2}, s{sW}, 6")
    a(f"s_mul_i32 s64, s{sT}, {KCH}")
    a(f"s_add_u32 s64, s64, s{sT+2}")
    a(f"s_mul_i32 s65, s{sT}, {UCH}")
    a(f"s_add_u32 s65, s65, s{sT+2}")
    a(f"s_lshl_b32 s66, s{sW}, 4")
    a(f"v_add_u32 v{vA}, s64, v{vA}")
    a(f"v_add_u32 v{vB}, s65, v{vB}")
    a(f"v_add_u32 v{vD0}, s66, v{vD0}")
    a(f"s_mov_b32 s67, {KB + 8 * KCH}")
    a0_setup(245, 67)
    for it in range(8):
        a(f"s_waitcnt vmcnt({8-it})")
        a(f"ds_write_b128 v{vUW}, {v(UL+4*it,4)} offset:{it*512}")
    a("s_waitcnt vmcnt(0)")
    a(f"ds_write_b128 v247, {v(UL+32,4)}")
    a("s_waitcnt lgkmcnt(0)")
    a("s_barrier")
    ST.stamp("conv start")
    pairs = []
    for aa in range(8):
        for n in range(7, aa - 1, -1): pairs.append((aa, n - aa))
    def conv_pass(nb, vq, CA, TP=3):
        X = Emit(a)
        ops = [(b, aa, mu) for b in range(nb) for (aa, mu) in pairs]
        need = [("A", 0, 0)] + [("B", 0, n) for n in range(7, -1, -1)]
        last = {}
        for idx, (b, aa, mu) in enumerate(ops):
            for key in (("A", b, aa), ("B", b, mu)):
                if key not in need: need.append(key)
                last[key] = idx
        free = list(QUADS); where = {}
        def issue():
            key = need.pop(0); q = free.pop(0); where[key] = q
            kind, b, i = key
            if key == ("A", 0, 0):
                for k in range(4): X.one(dict(i=f"ds_read_b32 v{q+k}, v{vS0+k}", lds=key))
            elif kind == "A":
                for hh in range(2): X.one(dict(i=f"ds_read_b64 {v(q+2*hh,2)}, v{vA} offset:{b*64 + i*512 - 64 + 8*hh}", lds=key))
            else: X.one(dict(i=f"ds_read_b128 {v(q,4)}, v{vB} offset:{b*64 + (7-i)*512}", lds=key))
        for _ in range(9): issue()
        q0 = where[("A", 0, 0)]
        for k in range(4):
            a(f"v_add_u32 v250, {k}, v{vD0}")
            a(f"v_cmp_le_i32 vcc, 0, v250")
            a("s_nop 1")
            X.one(dict(i=f"v_cndmask_b32 v{q0+k}, 0, v{q0+k}, vcc", needl=[("A", 0, 0)]))
        for n in range(7, -1, -1):
            X.one(dict(i=f"{M16} {v(CA+4*n,4)}, {v(AD,4)}, {v(where[('B',0,n)],4)}, 0", needl=[("B", 0, n)]))
            if need and len(X.lg.q) < 12: issue()
        for idx, (b, aa, mu) in enumerate(ops):
            ka, kb = ("A", b, aa), ("B", b, mu)
            while ka not in where or kb not in where: issue()
            d = CA + 4 * (aa + mu)
            X.one(dict(i=f"{M16} {v(d,4)}, {v(where[ka],4)}, {v(where[kb],4)}, {v(d,4)}", needl=[ka, kb]))
            for key in (ka, kb):
                if last[key] == idx: free.append(where[key])
            if need and free and need[0][1] <= b + 1 and (idx % 2 == 0 or need[0][1] == b):
                if len(X.lg.q) >= 12:
                    a("s_waitcnt lgkmcnt(4)"); X.lg.q = X.lg.q[-4:]
                issue()
            if idx % TP == TP // 2 and vq: X.one(vq.pop(0))
        assert not need and not vq
        a("s_nop 7")
    tl = [f"buffer_load_dword v252, v248, {s(sK,4)}, s39 offen\ns_add_u32 s39, s39, {128*128 if k < 9 else 16*128}" for k in range(11)] if opt.get("touch", 1) else []
    NE = opt.get('ne', 6)
    conv_pass(1, tl[:NE], UL, 6)
    tl = tl[NE:]
    a(f"v_subrev_u32 v{vA}, s64, v{vA}")
    a(f"v_subrev_u32 v{vB}, s65, v{vB}")
    a(f"v_subrev_u32 v{vD0}, s66, v{vD0}")
    a0_setup(vDV, sKC)
    xl = []
    if opt.get("ctouch2", 1):
        a("s_getpc_b64 s[66:67]")
        Lh2 = a.newlabel("Lhere"); a.label(Lh2)
        a(f"s_sub_u32 s66, s66, {Lh2}-{opt['kname']}")
        a("s_subb_u32 s67, s67, 0")
        a(f"s_lshr_b32 s{sT}, s{sH}, 3")
        a(f"s_mul_i32 s{sT}, s{sT}, 10240")
        a(f"s_mul_i32 s{sT+1}, s{sW}, 1280")
        a(f"s_add_u32 s{sT}, s{sT}, s{sT+1}")
        a(f"v_min_u32 v249, 9, v{vLN}")
        a(f"v_lshl_add_u32 v249, v249, 7, s{sT}")
        a(f"v_min_u32 v249, {Lend}-{opt['kname']}, v249")
        xl = ["global_load_dword v252, v249, s[66:67]"]
    conv_pass(8, tl + xl, CA, opt.get('tp', 6))
    for n in range(8):
        a(f"v_cvt_pk_bf16_f32 v{32+2*n}, v{CA+4*n}, v{CA+4*n+1}")
        a(f"v_cvt_pk_bf16_f32 v{33+2*n}, v{CA+4*n+2}, v{CA+4*n+3}")
        a(f"ds_write_b64 v{vZS}, {v(32+2*n,2)} offset:{n*512}")
    ST.stamp("conv main")
    a(f"s_mov_b32 s67, {UB}")
    a(f"v_add_u32 v250, s{sKC}, v{vL16}")
    a("s_waitcnt lgkmcnt(4)")
    for n in range(8): a(f"ds_write_b128 v250, {v(UL+4*n,4)} offset:{n*1024}")
    a(f"v_bfe_u32 v250, v{vT16}, 6, 3")
    a(f"v_mul_u32_u24 v250, {UCH}, v250")
    a(f"v_lshrrev_b32 v251, 9, v{vT16}")
    a(f"v_lshl_add_u32 v250, v251, 6, v250")
    a(f"v_and_b32 v249, 48, v{vT16}")
    a(f"v_add3_u32 v250, v250, v249, s67")
    a(f"v_mul_u32_u24 v251, 36864, v251")
    a(f"v_and_b32 v249, 0x1f0, v{vT16}")
    a(f"v_add_u32 v251, v251, v249")
    a("s_waitcnt lgkmcnt(0)")
    a("s_barrier")
    for k in range(4): a(f"ds_read_b128 {v(84+4*k,4)}, v250 offset:{k*1024}")
    for k in range(8): a(f"ds_read_b128 {v(52+4*k,4)}, v{vT16} offset:{k*KCH}")
    a(f"s_lshl_b32 s{sZO}, s{sH}, 9")
    a(f"s_add_u32 s{sZO}, s{sZO}, {WS_Z}")
    for k in range(4):
        a(f"s_waitcnt lgkmcnt({11-k})")
        a(f"buffer_store_dwordx4 {v(84+4*k,4)}, v251, {s(sWS,4)}, s{sZO} offen sc1")
        a(f"s_add_u32 s{sZO}, s{sZO}, {16*36864}")
    a(f"s_lshl_b32 s{sZO}, s{sH}, 6")
    a(f"s_mul_i32 s{sT}, s{sW}, {8*36864}")
    a(f"s_add_u32 s{sZO}, s{sZO}, s{sT}")
    a(f"s_add_u32 s{sZO}, s{sZO}, {WS_Z + 512*64}")
    a("s_waitcnt lgkmcnt(0)")
    for k in range(1, 8):
        for r in range(4): a(f"v_add_f32 v{52+r}, v{52+r}, v{52+4*k+r}")
    a("v_cvt_pk_bf16_f32 v48, v52, v53")
    a("v_cvt_pk_bf16_f32 v49, v54, v55")
    a(f"buffer_store_dwordx2 v[48:49], v253, {s(sWS,4)}, s{sZO} offen sc1")
    ST.stamp("conv done")
    vRL, vPF, vZG, vZG4, vZW, vZR, vUF, vRL4 = 220, 221, 225, 226, 227, 228, 229, 230
    a(f"ds_read_b64 v[150:151], v{vSB}")
    a(f"v_lshrrev_b32 v250, 6, v{vT16}")
    a(f"v_and_b32 v251, 48, v{vT16}")
    a(f"v_mov_b32 v{vZG}, v{vT16}")
    a(f"v_bfe_u32 v249, v{vT16}, 9, 2")
    a(f"v_lshlrev_b32 v249, 4, v249")
    a(f"v_xor_b32 v{vZW}, v249, v{vT16}")
    a(f"s_cmp_eq_u32 s{sPH}, 0")
    a(f"s_cselect_b32 s{sT+2}, 0, {OOB}")
    a(f"v_or_b32 v{vZG4}, s{sT+2}, v{vZG}")
    a(f"v_bfe_u32 v250, v{vLN}, 3, 2")
    a(f"v_lshrrev_b32 v249, 5, v{vLN}")
    a(f"v_and_b32 v251, 0x70, v{vL16}")
    a(f"v_lshl_add_u32 v251, v250, 9, v251")
    a(f"v_mul_u32_u24 v{vRL}, {PSL}, v249")
    a(f"v_add_u32 v{vRL}, v{vRL}, v251")
    a(f"s_mul_i32 s{sT}, s{sH}, {PTB}")
    a(f"s_lshl_b32 s{sT+1}, s{sMG}, 7")
    a(f"s_add_u32 s{sT}, s{sT}, s{sT+1}")
    a(f"s_lshl_b32 s{sT+1}, s{sPH}, 11")
    a(f"s_add_u32 s{sT}, s{sT}, s{sT+1}")
    a(f"v_add_u32 v{vRL}, s{sT}, v{vRL}")
    a(f"v_min_u32 v251, {NSL-1}, v{vLN}")
    a(f"s_lshl_b32 s{sT}, s{sH}, 7")
    a(f"s_add_u32 s{sT}, s{sT}, {WS_PF2}")
    a(f"v_lshl_add_u32 v{vPF}, v251, 3, s{sT}")
    a(f"v_xor_b32 v251, s{sMG}, v250")
    a(f"v_lshlrev_b32 v251, 4, v251")
    a(f"v_lshl_add_u32 v{vZR}, v250, 9, v251")
    a(f"v_lshl_add_u32 v{vZR}, v249, 12, v{vZR}")
    a(f"v_and_b32 v251, 1, v{vLN}")
    a(f"v_lshl_add_u32 v{vZR}, v251, 3, v{vZR}")
    a(f"v_and_b32 v251, 6, v{vLN}")
    a(f"v_add_u32 v{vZR}, v{vZR}, v251")
    a(f"v_add_u32 v{vZR}, s{sT+1}, v{vZR}")
    a(f"v_lshrrev_b32 v{vUF}, 1, v{vL16}")
    a(f"v_add_u32 v{vUF}, {WS_UF}, v{vUF}")
    BASE, ZL, ZR, XN, AC = 160, 96, 116, 48, 144
    a("s_mov_b32 s63, 0x00003f80")
    a("s_mov_b32 s64, 0x3f800000")
    a(f"s_mov_b32 s65, {f32(LN2)}")
    a(f"s_mov_b32 s{sI}, 0")
    RB = lambda st: (st % 4) * 24
    def wave_poll(addr, level, tag):
        Lk = a.newlabel("Lk")
        a(f"s_cmp_lg_u32 s{sW}, 7")
        a(f"s_cbranch_scc1 {Lk}")
        poll(a, [f"buffer_load_dwordx2 v[222:223], v{addr}, {s(sWS,4)}, 0 offen sc1"], flag_cond([222], level), tag, opt.get("psleep", 6))
        a.label(Lk)
        a("s_barrier")
    def ensure(level, force=False):
        Lk, Lq = a.newlabel("Lk"), a.newlabel("Lq")
        if not force:
            a(f"s_cmp_ge_u32 s{sI}, {level}")
            a(f"s_cbranch_scc1 {Lk}")
        a(f"s_cmp_lg_u32 s{sW}, 7")
        a(f"s_cbranch_scc1 {Lq}")
        cond = [f"v_subrev_u32 v222, s{sTAG}, v222", f"v_xor_b32 v223, s{sTAG+1}, v223", "v_lshrrev_b32 v224, 4, v222", "v_or_b32 v223, v223, v224",
                "v_cmp_eq_u32 vcc, 0, v223", "s_nop 1", "v_cndmask_b32 v222, 0, v222, vcc", "s_nop 1",
                "v_min_u32_dpp v222, v222, v222 row_ror:8 row_mask:0xf bank_mask:0xf", "s_nop 1",
                "v_min_u32_dpp v222, v222, v222 row_ror:4 row_mask:0xf bank_mask:0xf", "s_nop 1",
                "v_min_u32_dpp v222, v222, v222 row_ror:2 row_mask:0xf bank_mask:0xf", "s_nop 1",
                "v_min_u32_dpp v222, v222, v222 row_ror:1 row_mask:0xf bank_mask:0xf", "s_nop 0",
                f"v_readfirstlane_b32 s{sI}, v222", "s_nop 0", f"s_cmp_ge_u32 s{sI}, {level}"]
        poll(a, [f"buffer_load_dwordx2 v[222:223], v{vPF}, {s(sWS,4)}, 0 offen sc1"], cond, "p", opt.get("psleep", 6))
        a(f"v_mov_b32 v222, s{sI}")
        a(f"ds_write_b32 v231, v222 offset:{4*level}")
        a("s_waitcnt lgkmcnt(0)")
        a.label(Lq)
        if force: a("s_waitcnt vmcnt(0)")
        a("s_barrier")
        a(f"ds_read_b32 v222, v231 offset:{4*level}")
        a("s_waitcnt lgkmcnt(0)")
        a(f"v_readfirstlane_b32 s{sI}, v222")
        a.label(Lk)
    a(f"v_mov_b32 v231, {STB + 512}")
    nst = []
    NL = NSL // 2
    def loads(st):
        for i in range(NL):
            a(f"s_mov_b32 s{sOFF}, {2 * i * PSL + st * 4096}")
            a(f"buffer_load_dwordx4 {v(RB(st)+4*i,4)}, v{vRL}, {s(sWS,4)}, s{sOFF} offen sc1")
        nst.extend([("L", st)] * NL)
    def consume(st, defer=False):
        q = st >> 1
        for k in range(8): a(f"v_mov_b32 v{AC+k}, 0")
        for i in range(NL):
            idx = [j for j, e in enumerate(nst) if e == ("L", st)][i]
            a(f"s_waitcnt vmcnt({len(nst) - 1 - idx})")
            for k in range(4):
                a(f"v_dot2c_f32_bf16 v{AC+2*k}, s63, v{RB(st)+4*i+k}")
                a(f"v_dot2c_f32_bf16 v{AC+2*k+1}, s64, v{RB(st)+4*i+k}")
        a("s_nop 2")
        for k in range(8): a(f"v_mov_b32 v{AC+8+k}, v{AC+k}")
        for k in range(8): a(f"v_permlane32_swap_b32 v{AC+k}, v{AC+8+k}")
        for k in range(8): a(f"v_add_f32 v{AC+k}, v{AC+k}, v{AC+8+k}")
        if defer:
            for k in range(8): a(f"v_mul_f32 v{DS+8*st+k}, s65, v{AC+k}")
            return
        for k in range(8): a(f"v_fma_f32 v{AC+k}, s65, v{AC+k}, v{BASE+8*q+k}")
        emit_out(st)
    DS = 240
    def emit_out(st):
        q = st >> 1
        o = 132 + 4 * (st % 3)
        for k in range(4): a(f"v_cvt_pk_bf16_f32 v{o+k}, v{AC+2*k}, v{AC+2*k+1}")
        a(f"buffer_store_dwordx4 {v(o,4)}, v{vXO4 if st & 1 else vXO}, {s(sOUT,4)}, 0 offen offset:{q*256} {opt.get('omod', '')}")
        nst.append(("S", st))
    a("s_waitcnt lgkmcnt(0)")
    for l in stats_math(150, 151, 152, 153, SS, SS + 1): a(l)
    for k in range(20):
        a(f"v_lshlrev_b32 v{BASE+2*k}, 16, v{XR+k}")
        a(f"v_and_b32 v{BASE+2*k+1}, 0xffff0000, v{XR+k}")
    for k in range(16): a(f"v_mov_b32 v{ZR+k}, 0")
    a(f"v_mul_f32 v{SS}, v{SS}, v{SS+1}")
    ST.stamp("xpart")
    a(f"v_lshrrev_b32 v230, 5, v{vLN}")
    a(f"v_mul_u32_u24 v230, {PSL - 4096}, v230")
    a(f"v_sub_u32 v230, v{vRL}, v230")
    a(f"v_mov_b32 v234, {OOB}")
    a(f"v_cmp_gt_u32 vcc, 32, v{vLN}")
    a("s_nop 1")
    a("v_cndmask_b32 v234, v234, v230, vcc")
    def step(st, defer=False, extra=()):
        lv = st + 3
        La, Lb = a.newlabel("Lr"), a.newlabel("Lr")
        save = list(nst)
        a(f"s_cmp_ge_u32 s{sI}, {lv}")
        a(f"s_cbranch_scc0 {La}")
        loads(st + 2); consume(st, defer)
        a(f"s_branch {Lb}")
        a.label(La)
        nst[:] = save
        consume(st, defer); ensure(lv); loads(st + 2)
        a.label(Lb)
        nst[:] = [("L", st + 1)] * NL + list(extra) + [("L", st + 2)] * NL
    ensure(0, force=True)
    L4 = a.newlabel("Lf")
    a(f"s_cmp_lg_u32 s{sW}, 0")
    a(f"s_cbranch_scc1 {L4}")
    a(f"s_lshl_b32 s{sT}, s{sH}, 3")
    a(f"s_add_u32 s{sT}, s{sT}, {WS_UF}")
    a(f"v_mov_b32 v248, {OOB}")
    a(f"s_add_u32 s{sT+3}, s{sTAG}, 1")
    a(f"v_mov_b32 v250, s{sT+3}")
    a(f"v_mov_b32 v251, s{sTAG+1}")
    a(f"v_writelane_b32 v248, s{sT}, 0")
    a(f"buffer_store_dwordx2 v[250:251], v248, {s(sWS,4)}, 0 offen sc1")
    a.label(L4)
    ensure(1); ST.stamp("seen 1"); loads(0)
    Lk = a.newlabel("Lk")
    a(f"s_cmp_lg_u32 s{sW}, 6")
    a(f"s_cbranch_scc1 {Lk}")
    poll(a, [f"buffer_load_dwordx2 v[222:223], v{vUF}, {s(sWS,4)}, 0 offen sc1"], flag_cond([222], 1), "z", opt.get("psleep", 6))
    a.label(Lk)
    a(f"s_mov_b32 s{sI}, 0")
    ensure(2); ST.stamp("z seen")
    a(f"s_mul_i32 s{sT}, s{sH}, 36864")
    a(f"s_add_u32 s{sT}, s{sT}, {WS_Z}")
    for i in range(5):
        a(f"buffer_load_dwordx4 {v(ZL+4*i,4)}, v{vZG4 if i == 4 else vZG}, {s(sWS,4)}, s{sT} offen sc1")
        if i < 4: a(f"s_add_u32 s{sT}, s{sT}, 8192")
    nst.extend([("Z", 0)] * 5)
    loads(1)
    step(0, True)
    a(f"s_waitcnt vmcnt({2*NL})")
    for i in range(5): a(f"ds_write_b128 v{vZW}, {v(ZL+4*i,4)} offset:{i*8192}")
    a("s_waitcnt lgkmcnt(0)")
    a("s_barrier")
    rd = lambda q: [a(f"ds_read_u16_d16_hi v{ZR+8*(q&1)+j}, v{vZR} offset:{q*8192 + j*64}") for j in range(8)]
    order = [3, 4, 0, 1, 2]
    rdn = lambda n: [a(f"ds_read_u16_d16_hi v{ZR+8*(n&1)+j}, v{vZR} offset:{order[n]*8192 + j*64}") for j in range(8)]
    rdn(0)
    for n, q in enumerate(order):
        if n < 4:
            a("s_waitcnt lgkmcnt(4)")
            rdn(n + 1)
        for j in range(8): a(f"v_fma_f32 v{AC+j}, v{BASE+8*q+j}, v{SS+1}, -v{SS}")
        a(f"s_waitcnt lgkmcnt({8 if n < 4 else 0})")
        for j in range(8): a(f"v_fmac_f32 v{BASE+8*q+j}, v{AC+j}, v{ZR+8*(n&1)+j}")
        if q >= 3:
            for k in range(4): a(f"v_cvt_pk_bf16_f32 v{XR+4*q+k}, v{BASE+8*q+2*k}, v{BASE+8*q+2*k+1}")
            a(f"s_mov_b32 s{sOFF}, {12 * PSL + q * 8192}")
            a(f"buffer_store_dwordx4 {v(XR+4*q,4)}, v{230 if q == 3 else 234}, {s(sWS,4)}, s{sOFF} offen sc1")
    for k in range(8): a(f"v_add_f32 v{AC+k}, v{DS+k}, v{BASE+k}")
    emit_out(0)
    nst[:] = [("L", 1)] * NL + [("L", 2)] * NL + [("S", 0)] * 3
    ST.stamp("base")
    NR = 6
    def step2(st):
        pass
    for st in range(1, NR):
        if opt.get("la3") and st == 2:
            La, Lb = a.newlabel("Lr"), a.newlabel("Lr")
            save = list(nst)
            a(f"s_cmp_ge_u32 s{sI}, 6")
            a(f"s_cbranch_scc0 {La}")
            loads(4); loads(5); consume(2)
            a(f"s_branch {Lb}")
            a.label(La)
            nst[:] = save
            consume(2); ensure(5); loads(4); ensure(6); loads(5)
            a.label(Lb)
            nst[:] = [("L", 3)] * NL + [("L", 4)] * NL + [("L", 5)] * NL
        elif st < NR - 2 and not (opt.get("la3") and st == 3): step(st)
        else: consume(st)
        if st in (1, 3): ST.stamp(f"it {st}")
        if st == 1:
            a(f"s_waitcnt vmcnt({NL})")
            a("s_barrier")
            Lf = a.newlabel("Lf")
            a(f"s_cmp_lg_u32 s{sW}, 0")
            a(f"s_cbranch_scc1 {Lf}")
            a(f"s_lshr_b32 s{sT}, s{sH}, 2")
            a(f"s_lshl_b32 s{sT}, s{sT}, 7")
            a(f"s_and_b32 s{sT+1}, s{sH}, 3")
            a(f"s_lshl_b32 s{sT+1}, s{sT+1}, 3")
            a(f"s_add_u32 s{sT}, s{sT}, s{sT+1}")
            a(f"s_add_u32 s{sT}, s{sT}, {WS_PF + 96}")
            a(f"s_add_u32 s{sT+1}, s{sTAG}, 15")
            a(f"v_mov_b32 v248, {OOB}")
            a(f"v_mov_b32 v250, s{sT+1}")
            a(f"v_mov_b32 v251, s{sTAG+1}")
            a(f"v_writelane_b32 v248, s{sT}, 0")
            a(f"buffer_store_dwordx2 v[250:251], v248, {s(sWS,4)}, 0 offen sc1")
            a.label(Lf)
    if opt.get("diagwait"):
        Lw = a.newlabel("Lw")
        a(f"s_lshr_b64 s[66:67], s[{sTAG}:{sTAG+1}], 4")
        a.label(Lw)
        a("s_memrealtime s[64:65]")
        a("s_waitcnt lgkmcnt(0)")
        a("s_sub_u32 s64, s64, s66")
        a(f"s_cmp_lt_u32 s64, {opt['diagwait']}")
        a(f"s_cbranch_scc1 {Lw}")
    if opt.get("stamps"): a("s_waitcnt vmcnt(0)")
    ST.stamp("end"); ST.cyc(1)
    ST.flush(sWS, sW)
```

```python
from common import *
from k_mlp import Emit, M16, mish_group
import k7h

NSL = 12
RING = 0
ACT = 73728
BIAS = 155648
LDS_ALL = 163840
SLOT = 49152
STAT = BIAS + 2048
def POS(k): return {0: 7, 1: 8, 9: 9, 10: 7, 11: 8}.get(k, k - 2)

def XF(mt16, ks): return mt16 * 72 + ks * 4
def AFR(mu, kap):
    q, r = divmod(kap, 3); n = mu * 3 + r
    return 144 + n * 4 if q == 3 else XF(n // 6, 6 * q + n % 6)
ACC = 144; PEND = 160; FR = 176; BI = 208; TM = 216; AO = 244
ACC2 = 192; FR2 = 208
RA = [228, 229, 230, 231]
vW1, vW2, vJUNK, vACTW, vBIAS, vST, vRB, vL16 = 232, 233, 234, 235, 236, 237, 238, 239
T0 = 240
sX, sW1, sW2, sWS, sA, sDBG = 8, 12, 16, 20, 24, 52
sMT, sSL, sW, sMG, sPH, sFB2, sW2A = 28, 29, 30, 31, 32, 33, 34
sPFA = 35
sT = 56; sEX = 60
sOFF, sONES, sM0G, sOFF2 = 62, 63, 64, 65
sXR1, sCNT, sTAG = 3, 5, 6
sXR0 = 36
OOB = "0x7ffffff0"

def spread(main, side):
    out = []; k = 0; n = len(main)
    for i, m in enumerate(main):
        out.append(m)
        want = (i + 1) * len(side) // n
        while k < want:
            out.extend(side[k]); k += 1
    for g in side[k:]: out.extend(g)
    return out
def flat(groups): return [x for g in groups for x in g]
def srd2(a, d, nbytes):
    a(f"s_and_b32 s{d+1}, s{d+1}, 0xffff")
    a(f"s_mov_b32 s{d+2}, {nbytes}")
    a(f"s_mov_b32 s{d+3}, 0x00020000")
def poll(a, load, cond_lines, tag, sleep=8):
    L, Ld = a.newlabel("Lpoll" + tag), a.newlabel("Lpd" + tag)
    a.label(L)
    for l in load: a(l)
    a("s_waitcnt vmcnt(0)")
    for l in cond_lines: a(l)
    a(f"s_cbranch_scc1 {Ld}")
    a(f"s_sleep {sleep}")
    a(f"s_sub_u32 s{sCNT}, s{sCNT}, 1")
    a(f"s_cbranch_scc0 {L}")
    a(f"s_mov_b32 s{sCNT}, 0")
    a.label(Ld)
def stats_math(s0, q0, mean, var, mb, rs):
    return [f"v_mul_f32 v{mean}, {f32(1.0/576)}, v{s0}",
            f"v_mul_f32 v{var}, {f32(1.0/576)}, v{q0}",
            f"v_fma_f32 v{var}, -v{mean}, v{mean}, v{var}",
            f"v_max_f32 v{var}, 0, v{var}",
            f"v_cvt_pk_bf16_f32 v{mb}, v{mean}, v{var}",
            f"v_and_b32 v{var}, 0xffff0000, v{mb}",
            f"v_lshlrev_b32 v{mb}, 16, v{mb}",
            f"v_add_f32 v{var}, {f32(1e-5)}, v{var}",
            f"v_cvt_pk_bf16_f32 v{var}, v{var}, v{var}",
            f"v_lshlrev_b32 v{var}, 16, v{var}",
            f"v_sqrt_f32 v{var}, v{var}",
            "s_nop 0",
            f"v_cvt_pk_bf16_f32 v{var}, v{var}, v{var}",
            f"v_lshlrev_b32 v{var}, 16, v{var}",
            f"v_rcp_f32 v{rs}, v{var}",
            "s_nop 0"]

def gen(a, opt=None):
    opt = opt or {}
    E = Emit(a)
    Lend, Lhelp = a.newlabel("Lend"), a.newlabel("Lhelp")
    if opt.get("earlytag"): a("s_memrealtime s[66:67]")
    a("s_cmp_ge_u32 s2, 256")
    a(f"s_cbranch_scc1 {Lend}")
    ST = Stamps(a, opt.get("stamps"), 0)
    ST.stamp("start"); ST.cyc(0)
    a(f"s_mov_b32 s{sCNT}, 0x80000")
    if opt.get("hfirst"):
        a("s_add_u32 s2, s2, 192")
        a("s_and_b32 s2, s2, 255")
    a("s_cmp_ge_u32 s2, 192")
    a(f"s_cbranch_scc1 {Lhelp}")
    for d, off in ((sX, 0), (sW1, 56), (sA, 64), (sW2, 72), (sWS, 96), (sDBG, 88)):
        a(f"s_load_dwordx2 s[{d}:{d+1}], s[0:1], {off}")
    lane, r8, u8 = T0 + 1, T0 + 2, T0 + 3
    a(f"v_lshrrev_b32 v{T0}, 6, v0")
    a(f"v_and_b32 v{lane}, 63, v0")
    a(f"v_readfirstlane_b32 s{sW}, v{T0}")
    a(f"s_lshr_b32 s{sT}, s2, 3")
    a(f"s_mul_i32 s{sT+1}, s{sT}, 11")
    a(f"s_lshr_b32 s{sT+1}, s{sT+1}, 5")
    a(f"s_mul_i32 s{sT+2}, s{sT+1}, 3")
    a(f"s_sub_u32 s{sT}, s{sT}, s{sT+2}")
    a(f"s_and_b32 s{sT+2}, s2, 3")
    a(f"s_mul_i32 s{sT+2}, s{sT+2}, 3")
    a(f"s_add_u32 s{sSL}, s{sT}, s{sT+2}")
    a(f"s_bfe_u32 s{sT}, s2, 0x10002")
    a(f"s_lshl_b32 s{sT}, s{sT}, 3")
    a(f"s_add_u32 s{sMT}, s{sT}, s{sT+1}")
    a(f"s_and_b32 s{sMG}, s{sW}, 3")
    a(f"s_lshr_b32 s{sPH}, s{sW}, 2")
    a(f"v_lshrrev_b32 v{r8}, 3, v{lane}")
    a(f"v_and_b32 v{u8}, 7, v{lane}")
    a(f"s_lshl_b32 s{sT+1}, s{sMG}, 5")
    a(f"s_lshl_b32 s{sT+2}, s{sPH}, 3")
    a(f"s_add_u32 s{sT+1}, s{sT+1}, s{sT+2}")
    a(f"s_lshl_b32 s{sT}, s{sMT}, 7")
    a(f"s_add_u32 s{sT}, s{sT}, s{sT+1}")
    vXO = T0 + 5
    a(f"v_add_u32 v{vXO}, s{sT}, v{r8}")
    a(f"v_mul_u32_u24 v{vXO}, 1152, v{vXO}")
    a(f"v_lshl_add_u32 v{vXO}, v{u8}, 4, v{vXO}")
    a(f"s_and_b32 s4, s{sSL}, {1 if opt.get('flip', 1) else 0}")
    a(f"s_mul_i32 s{sXR0}, s4, 18432")
    a(f"s_sub_u32 s{sXR1}, 18432, s{sXR0}")
    a("s_waitcnt lgkmcnt(0)")
    srd2(a, sX, XBYTES)
    RAW = [144, 180]
    def x_load(rho, j):
        so = f"s{sXR0}" if rho == 0 else f"s{sXR1}"
        return dict(i=f"buffer_load_dwordx4 {v(RAW[rho]+4*j,4)}, v{vXO}, {s(sX,4)}, {so} offen offset:{128*j}", vm=("x", rho, j))
    for j in range(9): E.one(x_load(0, j))
    ST.stamp("x0 issued")
    srd2(a, sW1, WBYTES); srd2(a, sA, F * 2); srd2(a, sW2, WBYTES); srd2(a, sWS, WS_END); srd2(a, sDBG, 256)
    a(f"s_mul_i32 s{sFB2}, s{sSL}, 768")
    a(f"s_mul_i32 s{sW2A}, s{sSL}, {384*1152}")
    a(f"s_lshl_b32 s{sM0G}, s{sMG}, 10")
    a(f"s_mov_b32 s{sONES}, 0x3f803f80")
    a(f"v_lshlrev_b32 v{vL16}, 4, v{lane}")
    t1, t2 = T0 + 8, T0 + 9
    a(f"s_lshl_b32 s{sT}, s{sMG}, 3")
    a(f"v_add_u32 v{t2}, s{sT}, v{r8}")
    a(f"v_mul_u32_u24 v{vW1}, 9216, v{t2}")
    a(f"v_bfe_u32 v{t1}, v{r8}, 1, 1")
    a(f"s_and_b32 s{sT}, s{sW}, 1")
    a(f"s_lshl_b32 s{sT}, s{sT}, 1")
    a(f"v_or_b32 v{t1}, s{sT}, v{t1}")
    a(f"v_lshlrev_b32 v{t1}, 1, v{t1}")
    a(f"v_xor_b32 v{t1}, v{t1}, v{u8}")
    a(f"v_lshl_add_u32 v{vW1}, v{t1}, 4, v{vW1}")
    a(f"v_mul_u32_u24 v{vW2}, 1152, v{t2}")
    a(f"v_and_b32 v{t1}, 6, v{r8}")
    a(f"v_xor_b32 v{t1}, v{t1}, v{u8}")
    a(f"v_lshl_add_u32 v{vW2}, v{t1}, 4, v{vW2}")
    vBE, vBV = T0 + 6, T0 + 7
    a(f"v_lshlrev_b32 v{vBE}, 1, v0")
    g4, rp, c4, fsw = T0 + 10, T0 + 11, T0 + 12, T0 + 13
    a(f"v_lshrrev_b32 v{g4}, 4, v{lane}")
    a(f"v_bfe_u32 v{rp}, v{lane}, 2, 2")
    a(f"v_and_b32 v{c4}, 3, v{lane}")
    a(f"v_lshrrev_b32 v{t1}, 1, v{rp}")
    a(f"v_and_b32 v{t2}, 1, v{g4}")
    a(f"v_lshl_or_b32 v{fsw}, v{t2}, 1, v{t1}")
    a(f"s_lshl_b32 s{sT}, s{sPH}, 1")
    a(f"v_xor_b32 v{t1}, s{sT}, v{fsw}")
    a(f"v_lshlrev_b32 v{t1}, 5, v{t1}")
    a(f"v_lshl_add_u32 v{t1}, v{g4}, 10, v{t1}")
    a(f"v_lshl_add_u32 v{t1}, v{rp}, 7, v{t1}")
    a(f"v_lshl_add_u32 v{RA[0]}, v{c4}, 3, v{t1}")
    a(f"v_xor_b32 v{RA[1]}, 32, v{RA[0]}")
    a(f"v_add_u32 v{RA[3]}, 0x8000, v{RA[1]}")
    a(f"v_add_u32 v{RA[2]}, 0x8000, v{RA[0]}")
    a(f"s_lshr_b32 s{sT}, s{sW}, 1")
    a(f"v_xor_b32 v{t1}, s{sT}, v{fsw}")
    a(f"v_lshlrev_b32 v{t1}, 5, v{t1}")
    a(f"v_lshl_add_u32 v{t1}, v{g4}, 9, v{t1}")
    a(f"v_lshl_add_u32 v{t1}, v{rp}, 7, v{t1}")
    a(f"v_lshl_add_u32 v{vRB}, v{c4}, 3, v{t1}")
    a(f"s_lshl_b32 s{sT}, s{sPH}, 7")
    a(f"s_add_u32 s{sT}, s{sT}, {BIAS}")
    a(f"v_lshl_add_u32 v{vBIAS}, v{g4}, 4, s{sT}")
    a(f"s_lshl_b32 s{sT}, s{sMG}, 11")
    a(f"s_add_u32 s{sT}, s{sT}, {ACT}")
    a(f"v_add_u32 v{vACTW}, s{sT}, v{vL16}")
    a(f"s_mul_i32 s{sT}, s{sMG}, 18432")
    a(f"s_add_u32 s{sT}, s{sT}, {ACT}")
    vXW = T0 + 14
    a(f"s_lshl_b32 s{sT+1}, s{sPH}, 3")
    a(f"v_add_u32 v{t1}, s{sT+1}, v{r8}")
    a(f"v_xor_b32 v{t1}, v{t1}, v{u8}")
    a(f"v_lshlrev_b32 v{t1}, 4, v{t1}")
    a(f"v_lshl_add_u32 v{t1}, v{u8}, 8, v{t1}")
    a(f"v_add_u32 v{vXW}, s{sT}, v{t1}")
    vXR0, vXR1 = T0 + 15, T0 + 8
    a(f"v_and_b32 v{t2}, 15, v{lane}")
    a(f"v_xor_b32 v{t2}, v{t2}, v{g4}")
    a(f"v_lshlrev_b32 v{t2}, 4, v{t2}")
    a(f"v_lshl_add_u32 v{t2}, v{g4}, 8, v{t2}")
    a(f"v_add_u32 v{vXR0}, s{sT}, v{t2}")
    a(f"v_xor_b32 v{vXR1}, 64, v{vXR0}")
    a(f"s_mul_i32 s{sT+2}, s{sSL}, {PSL}")
    a(f"s_lshl_b32 s{sT}, s{sMT}, 2")
    a(f"s_and_b32 s{sT+1}, s{sW}, 1")
    a(f"s_lshl_b32 s{sT+1}, s{sT+1}, 1")
    a(f"s_add_u32 s{sT}, s{sT}, s{sT+1}")
    a(f"s_mul_i32 s{sT}, s{sT}, {PTB}")
    a(f"s_add_u32 s{sT+2}, s{sT+2}, s{sT}")
    a(f"s_lshr_b32 s{sT}, s{sW}, 1")
    a(f"s_lshl_b32 s{sT}, s{sT}, 10")
    a(f"s_add_u32 s{sT+2}, s{sT+2}, s{sT}")
    a(f"s_lshl_b32 s{sT}, s4, 8")
    a(f"v_xor_b32 v{vST}, s{sT}, v{vL16}")
    a(f"v_add_u32 v{vST}, s{sT+2}, v{vST}")
    a(f"s_lshl_b32 s{sT}, s{sMT}, 9")
    a(f"s_lshl_b32 s{sT+1}, s{sSL}, 3")
    a(f"s_add_u32 s{sT}, s{sT}, s{sT+1}")
    a(f"s_add_u32 s{sT}, s{sT}, {WS_PF2}")
    a(f"s_cmp_eq_u32 s{sW}, 4")
    a(f"s_cselect_b32 s{sPFA}, s{sT}, {OOB}")

    vSTW = T0 + 9
    a(f"s_lshl_b32 s{sT}, s{sMG}, 5")
    a(f"s_lshl_b32 s{sT+1}, s{sPH}, 3")
    a(f"s_add_u32 s{sT}, s{sT}, s{sT+1}")
    a(f"s_lshl_b32 s{sT+1}, s4, 4")
    a(f"s_add_u32 s{sT}, s{sT}, s{sT+1}")
    a(f"v_add_u32 v{vSTW}, s{sT}, v{r8}")
    a(f"v_lshlrev_b32 v{vSTW}, 3, v{vSTW}")
    a(f"v_add_u32 v{vSTW}, {STAT}, v{vSTW}")
    A_, C_ = TM + 8, TM + 10
    def ln_stats(rho):
        o = []
        R = RAW[rho]
        s0, s1, q0, q1 = TM, TM + 1, TM + 2, TM + 3
        o += [f"v_mov_b32 v{s0}, 0", f"v_mov_b32 v{s1}, 0", f"v_mov_b32 v{q0}, 0", f"v_mov_b32 v{q1}, 0"]
        for j in range(9):
            for k in range(4):
                r = R + 4 * j + k
                o.append(dict(i=f"v_dot2c_f32_bf16 v{(s0, s1)[k & 1]}, s{sONES}, v{r}", needv=[("x", rho, j)]))
                o.append(f"v_dot2c_f32_bf16 v{(q0, q1)[k & 1]}, v{r}, v{r}")
        o += ["s_nop 2", f"v_add_f32 v{s0}, v{s0}, v{s1}", f"v_add_f32 v{q0}, v{q0}, v{q1}", "s_nop 0"]
        for dpp in ("quad_perm:[1,0,3,2]", "quad_perm:[2,3,0,1]", "row_half_mirror"):
            o += [f"v_add_f32_dpp v{s1}, v{s0}, v{s0} {dpp} row_mask:0xf bank_mask:0xf",
                  f"v_add_f32_dpp v{q1}, v{q0}, v{q0} {dpp} row_mask:0xf bank_mask:0xf", "s_nop 0"]
            s0, s1, q0, q1 = s1, s0, q1, q0
        mean, var, mb, rs = TM + 4, TM + 5, TM + 6, TM + 7
        o += stats_math(s0, q0, mean, var, mb, rs)
        o += [f"v_mul_f32 v{A_}, {f32(LOG2E)}, v{rs}", f"v_mul_f32 v{C_}, v{mb}, v{A_}",
              dict(i=f"ds_write_b64 v{vSTW}, {v(mb,2)}", lds="sw"), f"v_xor_b32 v{vSTW}, 128, v{vSTW}"]
        return o
    def ln_norm(rho):
        o = []
        R = RAW[rho]
        tp = [T0 + 10, T0 + 12]
        for j in range(9):
            for k in range(0, 4, 2):
                for kk in range(2):
                    r = R + 4 * j + k + kk; t = tp[kk]
                    o += [f"v_lshlrev_b32 v{t}, 16, v{r}", f"v_and_b32 v{t+1}, 0xffff0000, v{r}"]
                for kk in range(2):
                    t = tp[kk]
                    o.append(f"v_pk_fma_f32 {v(t,2)}, {v(t,2)}, {v(A_,2)}, {v(C_,2)} op_sel_hi:[1,0,0] neg_lo:[0,0,1] neg_hi:[0,0,1]")
                for kk in range(2):
                    r = R + 4 * j + k + kk; t = tp[kk]
                    o.append(f"v_cvt_pk_bf16_f32 v{r}, v{t}, v{t+1}")
            o.append(dict(i=f"ds_write_b128 v{vXW}, {v(R+4*j,4)} offset:{j*2048}", lds="xw"))
        return o
    def xn_read(rho, ks):
        return dict(i=f"ds_read_b128 {v(XF(rho,ks),4)}, v{(vXR0, vXR1)[ks & 1]} offset:{ks*1024}", lds=("xf", rho, ks))
    NT = 6; NS1 = 3 * NT; NU = 9 * NT; NG = 18 * NT
    def w1_unit(U, hi):
        T, gam = divmod(U, 9)
        return [f"s_add_u32 m0, s{sM0G}, {RING + gam * 8192 + hi * 4096}",
                f"s_add_u32 s{sOFF}, s{sFB2}, {(gam * 64 + hi * 32) * 9216 + T * 128}",
                dict(i=f"buffer_load_dwordx4 v{vW1}, {s(sW1,4)}, s{sOFF} offen lds", vm=("w1", (U - 1) // 3))]
    def units_of(sg): return range(max(0, 3 * sg + 1), min(NU, 3 * sg + 4))
    def frag(g, aa): return FR + ((g % 4) * 2 + aa) * 4
    def greads(g):
        if g >= NG: return []
        T, ks = divmod(g, 18)
        o = []
        for aa in range(2):
            f = frag(g, aa); hi = ks >= 8
            off = RING + ks * 4096 - (0x8000 if hi else 0)
            for nu in range(2):
                o.append(dict(i=f"ds_read_b64_tr_b16 {v(f+2*nu,2)}, v{RA[aa + 2*hi]} offset:{off + nu*512}", lds=("A", g, aa)))
        return o
    def bias_reads(T):
        return [dict(i=f"ds_read_b128 {v(BI+4*aa,4)}, v{vBIAS} offset:{T*256 + aa*64}", lds=("B", T)) for aa in range(2)]
    vACTH, vAR, vARH = 243, 240, 241
    def mish_tile(T, ph):
        o = []
        p = POS(2 * T + ph)
        for mt16 in range(2):
            for aa in range(2):
                o += mish_group(PEND + (aa * 2 + mt16) * 4, AO + mt16 * 4 + aa * 2, TM)
            o.append(dict(i=f"ds_write_b128 v{vACTH if p >= 4 else vACTW}, {v(AO+mt16*4,4)} offset:{mt16*1024 + (p - 4 if p >= 4 else p)*8192}", lds="aw"))
        return o
    def cost(x):
        t = x if isinstance(x, str) else x.get("i", "")
        return 2 if t.startswith(("v_exp", "v_rcp")) else 1 if t.startswith("v_") else 0
    def take(q, budget):
        out = []
        while q and budget > 0:
            budget -= cost(q[0]); out.append(q.pop(0))
        while q and cost(q[0]) == 0: out.append(q.pop(0))
        return out
    def w2_dma(st, ph):
        o = []
        for n in range(6):
            q = 24 * ph + 4 * n
            o.append([f"s_add_u32 m0, s{sM0G}, {(st % 3) * SLOT + q * 1024}",
                      f"s_add_u32 s{sOFF}, s{sW2A}, {q * 8 * 1152 + st * 128}",
                      dict(i=f"buffer_load_dwordx4 v{vW2}, {s(sW2,4)}, s{sOFF} offen lds", vm=("w2", st))])
        return o
    def w2_pieces(qs, tag):
        return [[f"s_add_u32 m0, s{sM0G}, {q * 1024}", f"s_add_u32 s{sOFF}, s{sW2A}, {q * 8 * 1152}",
                 dict(i=f"buffer_load_dwordx4 v{vW2}, {s(sW2,4)}, s{sOFF} offen lds", vm=tag)] for q in qs]
    OV = opt.get("ov", 0)
    vRBs = [vRB, 228, 229]
    PD2 = 3
    def frag2(g): return FR2 + (g % 5) * 4
    def b_reads(st, i):
        f = frag2(12 * st + i)
        return [dict(i=f"ds_read_b64_tr_b16 {v(f+2*nu,2)}, v{vRBs[st % 3]} offset:{i*4096 + nu*2048}", lds=("W", st, i)) for nu in range(2)]
    def act_reads(kap):
        p = POS(kap)
        return [dict(i=f"ds_read_b128 {v(AFR(mu,kap),4)}, v{vARH if p >= 4 else vAR} offset:{mu*1024 + (p - 4 if p >= 4 else p)*8192}", lds=("act", kap)) for mu in range(4)]
    def epi_valu():
        o = []
        for pr in range(2):
            p = AO + pr * 4
            for mu in range(2):
                src = ACC2 + (pr * 2 + mu) * 4
                o.append(f"v_cvt_pk_bf16_f32 v{p+2*mu}, v{src}, v{src+1}")
                o.append(f"v_cvt_pk_bf16_f32 v{p+2*mu+1}, v{src+2}, v{src+3}")
        o.append("s_nop 0")
        for pr in range(2):
            p = AO + pr * 4
            o.append(f"v_permlane16_swap_b32 v{p}, v{p+2}")
            o.append(f"v_permlane16_swap_b32 v{p+1}, v{p+3}")
        return o
    def epi_store(st):
        o = []
        for pr in range(2):
            o.append(f"s_mov_b32 s{sOFF2}, {pr * PTB + st * 4096}")
            o.append(dict(i=f"buffer_store_dwordx4 {v(AO+pr*4,4)}, v{vST}, {s(sWS,4)}, s{sOFF2} offen sc1", vm=("st", st)))
        return o
    vFA, vFD = 230, 252
    def publish(level):
        return [f"s_add_u32 s{sT}, s{sTAG}, {level}", f"v_mov_b32 v{vFD}, s{sT}",
                dict(i=f"buffer_store_dwordx2 {v(vFD,2)}, v{vFA}, {s(sWS,4)}, 0 offen sc1", vm="pf")]

    def body(ph):
        X = Emit(a); X.lg.q = list(E.lg.q); X.vm.q = list(E.vm.q)
        n0 = ST.n; names0 = list(ST.names)
        def barrier(needl, needv, name=None):
            X.one(dict(needl=needl, needv=needv))
            a("s_barrier")
            if name: ST.stamp(name, X)
        if ph == 1: a("s_setprio 1")
        st0 = ln_stats(0)
        bl = [[dict(i=f"buffer_load_ushort v{vBV}, v{vBE}, {s(sA,4)}, s{sFB2} offen", vm="bias")]]
        NX = opt.get("nx", 6)
        X.run(st0[:12] + spread(st0[12:], [[x_load(1, j)] for j in range(NX)]))
        ST.stamp("stats0", X)
        n0_ = ln_norm(0)
        cut = int(len(n0_) * opt.get("xcut", 0.4))
        NU0 = opt.get("nu0", 3)
        P1 = opt.get("p1dma", 1)
        own = (lambda us: [w1_unit(U, h) for U in us for h in range(2)] if ph else []) if P1 else (lambda us: [w1_unit(U, ph) for U in us])
        X.run(spread(n0_[:cut], [[x_load(1, j)] for j in range(NX, 9)]) + spread(n0_[cut:], bl + own(range(0, NU0))))
        a(f"v_lshlrev_b32 v{vBE}, 2, v0")
        a(f"v_add_u32 v{vBE}, {BIAS}, v{vBE}")
        vTA = T0 + 4
        def taddr(dst, src):
            a(f"v_mul_u32_u24 v1, 13108, v{src}")
            a("v_lshrrev_b32 v1, 16, v1")
            a("v_mul_u32_u24 v2, 5, v1")
            a(f"v_sub_u32 v2, v{src}, v2")
            a("v_mul_u32_u24 v1, 9216, v1")
            a("v_lshl_add_u32 v1, v2, 7, v1")
            a(f"v_mov_b32 v2, {OOB}")
            a(f"v_cmp_gt_u32 vcc, 360, v{src}")
            a(f"s_and_b32 s{sXR0}, s{sMT}, 7")
            a(f"s_mul_i32 s{sXR0}, s{sXR0}, {72*9216}")
            a(f"v_cndmask_b32 v{dst}, v2, v1, vcc")
            a(f"s_add_u32 s{sXR0}, s{sXR0}, s{sFB2}")
        T1 = opt.get("touch1", 3)
        if T1 in (1, 2) or (T1 == 3 and ph == 1): taddr(vTA, 0)
        if T1 == 3 and ph == 1:
            a("v_subrev_u32 v3, 256, v0")
            taddr(4, 3)
        ST.stamp("norm0", X)
        rds = [[xn_read(0, ks)] for ks in range(18)]
        NU1 = opt.get("nu1", 6)
        dm1 = own(range(NU0, NU1)); dm2 = own(range(NU1, 9))
        n1 = ln_norm(1)
        def misc():
            X.one(dict(i=f"v_lshlrev_b32 v{vBV}, 16, v{vBV}", needv=["bias"]))
            a(f"v_mul_f32 v{vBV}, {f32(LOG2E)}, v{vBV}")
            X.one(dict(i=f"ds_write_b32 v{vBE}, v{vBV}", lds="bw"))
            if T1 == 1: X.one(tch)
        tch = dict(i=f"buffer_load_dword v{vJUNK}, v{vTA}, {s(sW1,4)}, s{sXR0} offen offset:128", vm="t")
        if ph == 0 and opt.get("early", 0):
            a(X.lg.drain()); a("s_barrier")
            ST.stamp("barA")
            s1 = ln_stats(1)
            X.run(spread(s1[:60], rds) + spread(s1[60:], dm1 + dm2))
            misc()
            ST.stamp("stats1", X)
            a(X.lg.drain()); a("s_barrier")
            X.run(n1)
        else:
            X.run(spread(ln_stats(1), dm1))
            misc()
            ST.stamp("stats1", X)
            JP = opt.get("jp", (0, 9))[ph]
            JS = max(JP, opt.get("js", 4))
            if JP:
                a("s_setprio 0")
                X.run(spread([x for x in n1[:17 * JP] if isinstance(x, str)], dm2))
            else: X.run(flat(dm2))
            if T1 == 3 and ph == 1:
                X.one(dict(i=f"buffer_load_dword v{vJUNK}, v4, {s(sW1,4)}, s{sXR0} offen offset:128", vm="t"))
                X.one(tch)
            a(X.lg.drain()); a("s_barrier")
            ST.stamp("barA")
            a("s_setprio 0")
            first = [x for x in n1[17 * JP:17 * JS] if isinstance(x, str)]
            wr = [x for x in n1[:17 * JS] if not isinstance(x, str)]
            X.run(spread(first[:len(first) * 3 // 4], rds) + first[len(first) * 3 // 4:] if first else flat(rds))
            a(X.lg.drain()); a("s_barrier")
            X.run(spread(n1[17 * JS:], [[w] for w in wr]) if n1[17 * JS:] else wr)
        a(f"v_add_u32 v{vACTH}, 0x8000, v{vACTW}")
        a(f"s_and_b32 s{sT}, s{sW}, 1")
        a(f"s_lshl_b32 s{sT}, s{sT}, 12")
        a(f"s_add_u32 s{sT}, s{sT}, {ACT}")
        a(f"v_add_u32 v{vAR}, s{sT}, v{vL16}")
        a(f"v_add_u32 v{vARH}, 0x8000, v{vAR}")
        ST.stamp("norm1", X)
        barrier(["xw"], [("w1", -1)], "Bx")
        def burst1(st, bar, extra=()):
            T, t = divmod(st, 3)
            mfs = []
            for kl in range(6):
                ks = 6 * t + kl; g = 18 * T + ks
                for aa in range(2):
                    for mt16 in range(2):
                        acc = ACC + (aa * 2 + mt16) * 4
                        src = v(BI + 4 * aa, 4) if ks == 0 else v(acc, 4)
                        dst = acc if ks < 17 else PEND + (aa * 2 + mt16) * 4
                        nl = [("A", g, 0), ("A", g, 1)]
                        if ks == 0: nl.append(("B", T))
                        if T == 0: nl.append(("xf", mt16, ks))
                        mfs.append((kl, dict(i=f"{M16} {v(dst,4)}, {v(frag(g,aa),4)}, {v(XF(mt16,ks),4)}, {src}", needl=nl)))
            if opt.get("m32diag"):
                mfs = []
                for kl in range(6):
                    ks = 6 * t + kl; g = 18 * T + ks
                    for aa in range(2):
                        src = "0" if (ks == 0 and aa == 0) else v(ACC, 16)
                        dst = PEND if (ks == 17 and aa == 1) else ACC
                        nl = [("A", g, aa)] + ([("xf", aa, ks)] if T == 0 else [])
                        mfs.append((kl, dict(i=f"v_mfma_f32_32x32x16_bf16 {v(dst,16)}, {v(frag(g,aa),4)}, {v(XF(aa,ks),4)}, {src}", needl=nl)))
            if opt.get("chain1"):
                m2 = []
                for k0 in range(0, 6, 2):
                    for r in range(4): m2 += [(k0 + 1 if r == 3 else k0, mfs[4 * k0 + r][1]), (k0 + 1 if r == 3 else k0, mfs[4 * k0 + 4 + r][1])]
                mfs = m2
            rd = [(kl, r) for kl in range(6) for r in greads(6 * st + 2 + kl)]
            extra = list(extra)
            n = len(mfs)
            nb = opt.get("nb", 2) if ph == 0 else 0
            last = n if ph == 0 else n - opt.get("tail", 3)
            a("s_setprio 0")
            for mi, (kl, m) in enumerate(mfs):
                X.one(m)
                if ph == 0 and mi == nb - 1 and bar: bar()
                if ph == 1 and mi == opt.get("prio_at", 12): a("s_setprio 1")
                if mi >= nb - 1:
                    left = max(1, last - mi)
                    cnt = -(-len(rd) // left)
                    is_last_of_k = (mi + 1 == n) or mfs[mi + 1][0] != kl
                    for _ in range(min(cnt, 3 if opt.get('m32diag') else 2)):
                        if rd and (rd[0][0] - 2 < kl or (rd[0][0] - 2 == kl and is_last_of_k)):
                            X.one(rd.pop(0)[1])
                if extra: X.one(extra.pop(0))
                if extra and opt.get('m32diag'): X.one(extra.pop(0))
            X.run([r for _, r in rd])
            X.run(extra)
            a(f"s_setprio {opt.get('vprio', 2) if ph == 0 else max(1, opt.get('vprio', 2))}")
        def valu1(items, dmas):
            X.run(spread(items, dmas) if items else flat(dmas))
        xr1 = [xn_read(1, ks) for ks in range(18)]
        X.run(xr1[:3] + bias_reads(0) + greads(0) + greads(1))
        mq = []
        LS = NS1 - 1
        def lastl(sg):
            g = min(NG - 1, 6 * sg + 7)
            return [("A", g, 0), ("A", g, 1), ("xf", 1, 17)] + (["aw", ("act", 2)] if sg == LS - 1 else [])
        for st in range(NS1):
            T, t = divmod(st, 3)
            nm = f"B{st}" if t == 0 else None
            us = [9] if st == 0 else list(units_of(st + 2))
            dm = [w1_unit(U, ph) for U in us]
            bar = lambda: barrier(lastl(st - 1) if st else [("A", 1, 1)], [("w1", st), "w2a"], nm)
            br = [[r] for r in bias_reads(T + 1)] if (t == 1 and T < NT - 1) else []
            q = st - (LS - 2) - ph
            if 0 <= q < 2: br = br + [[r] for kap in range(3 * q, 3 * q + 3) for r in act_reads(kap)]
            if st == 0 and T1 == 2: br = br + [[tch]]
            if ph == 1 and st == opt.get("pw", 14):
                br = br + [[f"v_mov_b32 v254, {OOB}", f"v_lshl_add_u32 v242, v{vL16}, 3, s{sPFA}", f"v_cmp_gt_u32 vcc, 64, v{vL16}", "s_nop 1",
                            "v_cndmask_b32 v242, v254, v242, vcc",
                            f"s_lshl_b32 s{sT}, s{sMT}, 7", f"s_lshl_b32 s{sT+1}, s{sSL}, 3", f"s_add_u32 s{sT}, s{sT}, s{sT+1}", f"s_add_u32 s{sT}, s{sT}, {WS_PF}",
                            f"s_cmp_eq_u32 s{sW}, 4", f"s_cselect_b32 s{sT}, s{sT}, {OOB}", f"v_writelane_b32 v242, s{sT}, 4",
                            dict(i=f"buffer_store_dwordx2 {v(vFD,2)}, v242, {s(sWS,4)}, 0 offen sc1", vm="pf", needv=["tg"])]]
            if st == 2 and opt.get("tlb", 0):
                br = br + [[f"s_mov_b32 s{sT}, {PTB * ph}", dict(i=f"buffer_load_dword v{vJUNK}, v{vST}, {s(sWS,4)}, s{sT} offen", vm="t")]]
            if ph == 1 and st == 1:
                br = br + [[f"v_mov_b32 v{TM}, 0", dict(i=f"buffer_load_dwordx2 {v(vFD,2)}, v{TM}, {s(sDBG,4)}, 0 offen sc1", vm="tg")]]
            if ph == 0:
                burst1(st, bar, xr1[3:] if st == 0 else ())
                if st == LS: break
                fresh = (t == 2)
                if fresh: mq.extend(mish_tile(T, 0))
                items = take(mq, 10 ** 6 if t == 1 else opt.get("bf", 40))
                if fresh and items:
                    for g in dm[:2]: X.run(g)
                    a("s_nop 1" if len(dm) >= 2 else "s_nop 7")
                    dm = dm[2:]
                valu1(items, dm + br)
            else:
                fresh = (t == 0 and st > 0)
                if fresh: mq.extend(mish_tile(T - 1, 1))
                items = take(mq, 10 ** 6 if t == 2 else opt.get("bf", 40))
                if st == 0: items = xr1[3:]
                if fresh and items: a("s_nop 7")
                k = opt.get("k1", 4) if st else 0
                X.run(items[:k])
                bar()
                if st == LS: dm = w2_pieces(range(32, 48, 4), ("w2", 0)) if OV else w2_dma(0, 1)
                if st == LS - 1 and OV:
                    X.run(flat(w2_pieces(range(0, 32, 4), "w2a")))
                valu1(items[k:], dm + br)
                burst1(st, None)
        assert not mq
        for k in (1, 2): a(f"v_add_u32 v{vRBs[k]}, {k*SLOT}, v{vRB}")
        a(f"v_mov_b32 v{vFA+1}, {OOB}")
        a(f"v_lshl_add_u32 v{vFA}, v{vL16}, 3, s{sPFA}")
        a(f"v_cmp_gt_u32 vcc, 64, v{vL16}")
        a("s_nop 1")
        a(f"v_cndmask_b32 v{vFA}, v{vFA+1}, v{vFA}, vcc")
        if ph == 1:
            Lt = a.newlabel("Ltg")
            cond = [f"v_readfirstlane_b32 s{sTAG+1}, v{vFD+1}", f"v_readfirstlane_b32 s{sTAG}, v{vFD}", f"s_cmp_lg_u32 s{sTAG+1}, 0"]
            X.one(dict(needv=["tg"]))
            X.run(cond); a(f"s_cbranch_scc1 {Lt}")
            a(f"v_mov_b32 v{TM}, 0")
            poll(a, [f"buffer_load_dwordx2 {v(vFD,2)}, v{TM}, {s(sDBG,4)}, 0 offen sc1"], cond, "i")
            a.label(Lt)
        a("s_nop 3")
        early = [[r] for kap in range(6, 9) for r in act_reads(kap)]
        if ph == 0 and not OV: early = w2_dma(0, 0) + early
        mt = mish_tile(NT - 1, ph)
        X.run(spread(mt[:70], early) + mt[70:])
        def g2bar():
            a(X.lg.drain())
            barrier([], [("w2", 0)], "G2 start")
        if not (OV and ph == 0): g2bar()
        late = [r for kap in range(9, 12) for r in act_reads(kap)]
        def burst2(st, embed_barrier, extra=(), xbar=None):
            extra = list(extra)
            ov = OV and xbar is not None
            held, GN = (extra, opt.get("gn", 27)) if ov else ([], -1)
            if ov: extra = []
            a("s_setprio 0")
            CH = opt.get("chain2", 2)
            seq = [(i0 + c, mu) for i0 in range(0, 12, CH) for mu in range(4) for c in range(CH)]
            rd = [(i, r) for i in range(PD2, 12) for r in b_reads(st, i)]
            lastuse = {i: max(n for n, (ii, _) in enumerate(seq) if ii == i) for i in range(12)}
            for n, (i, mu) in enumerate(seq):
                acc = ACC2 + mu * 4
                src = "0" if i == 0 else v(acc, 4)
                nl = [("W", st, i)] + ([("act", i)] if st == 0 else [])
                X.one(dict(i=f"{M16} {v(acc,4)}, {v(frag2(12*st+i),4)}, {v(AFR(mu,i),4)}, {src}", needl=nl))
                if rd and (n % 2 == 0 or CH > 1) and (rd[0][0] - 5 < 0 or lastuse[rd[0][0] - 5] <= n) and rd[0][0] <= i + PD2 + CH - 1 and not (ov and n <= GN and rd[0][0] >= 8): X.one(rd.pop(0)[1])
                elif extra: X.one(extra.pop(0))
                if ov and n == GN:
                    g2bar()
                    while rd and (rd[0][0] - 5 < 0 or lastuse[rd[0][0] - 5] <= n): X.one(rd.pop(0)[1])
                    X.run(held[:4]); held = held[4:]
                elif ov and n > GN:
                    X.run(held[:2]); held = held[2:]
                if xbar and n == (44 if ov else 31): xbar()
                if embed_barrier and n == 40:
                    assert not rd
                    a("s_setprio 1")
                    embed_barrier()
            a("s_setprio 2")
            assert not extra and not rd
        def pre2(st): return [r for i in range(PD2) for r in b_reads(st, i)]
        LAG = opt.get("lag", 0)
        for st in range(9):
            nxtv = ([("w2", st + 1)] if st < 8 else []) + [("st", st - LAG - 1 + 0)]
            lastw = [("W", st, 11)]
            dm = w2_dma(st + 2, ph) if st + 2 <= 8 else []
            nm = f"G2 B{st+1}" if (st % 2 == 1 or opt.get("allg2")) else None
            def vphase(est):
                d = list(dm)
                for g in d[:2]: X.run(g)
                if len(d) < 2: a("s_nop 7")
                valu1(epi_valu(), d[2:])
                X.run(epi_store(est))
            xb = lambda: barrier([("act", 11)], [])
            if ph == 0:
                X.run(pre2(st))
                if st == 0 and not OV: X.run(flat(w2_dma(1, 0)))
                burst2(st, None, late if st == 0 else (), xb if st == 0 else None)
                vphase(st)
                if st < 8: barrier(lastw, nxtv, nm)
            else:
                if st == 0:
                    valu1(late, w2_dma(1, 1) + (w2_dma(1, 0) if OV else []))
                    xb()
                    X.run(flat(dm))
                else:
                    lvl = st - 1 - LAG
                    pf_first = opt.get("pfirst", 1)
                    if pf_first and lvl in opt.get("levels", (1, 2, 3, 4, 5, 6)): X.run(publish(lvl))
                    vphase(st - 1)
                    if not pf_first and lvl in opt.get("levels", (1, 2, 3, 4, 5, 6)): X.run(publish(lvl))
                    if lvl == 7 and opt.get("l7", 1):
                        X.run([f"s_lshl_b32 s{sT}, s{sMT}, 7", f"s_lshl_b32 s{sT+1}, s{sSL}, 3", f"s_add_u32 s{sT}, s{sT}, s{sT+1}", f"s_add_u32 s{sT}, s{sT}, {WS_PF}",
                               f"s_cmp_eq_u32 s{sW}, 4", f"s_cselect_b32 s{sT}, s{sT}, {OOB}", f"v_mov_b32 v{vFA}, {OOB}", f"v_writelane_b32 v{vFA}, s{sT}, 0"] + publish(7))
                X.run(pre2(st))
                burst2(st, (lambda: barrier(lastw, nxtv, nm)) if st < 8 else None)
        if opt.get("l8", 0):
            barrier([], [("st", 7)])
            if ph == 1: X.run(publish(8))
        if ph == 1:
            dm = []
            vphase(8)
        ST.stamp("G2 end", X)
        if ph == 0: a(f"s_branch {Lfin}")
        if ph == 1: return
        ST.n = n0; ST.names = names0
    Lp1 = a.newlabel("Lph1")
    a(f"s_cmp_lg_u32 s{sPH}, 0")
    a(f"s_cbranch_scc1 {Lp1}")
    Lfin = a.newlabel("Lfin")
    body(0)
    a.label(Lp1)
    body(1)
    a.label(Lfin)
    a("s_setprio 0")
    a(f"s_load_dwordx2 s[{sW1}:{sW1+1}], s[0:1], 80")
    a(f"v_lshrrev_b32 v40, 9, v{vL16}")
    a(f"v_mul_u32_u24 v41, {PSL}, v40")
    a(f"v_bfe_u32 v40, v{vL16}, 7, 2")
    a(f"v_lshl_add_u32 v41, v40, 9, v41")
    a(f"v_and_b32 v42, 0x70, v{vL16}")
    a(f"v_add_u32 v41, v41, v42")
    a(f"v_mul_u32_u24 v44, 72, v42")
    a(f"v_lshl_add_u32 v44, v40, 4, v44")
    a(f"s_lshl_b32 s{sT}, s{sMT}, 2")
    a(f"s_and_b32 s{sT+1}, s{sSL}, 3")
    a(f"s_add_u32 s{sT}, s{sT}, s{sT+1}")
    a(f"s_lshr_b32 s{sT+1}, s{sSL}, 2")
    a(f"s_add_u32 s{sT+1}, s{sT+1}, 6")
    a(f"s_lshl_b32 s{sT+1}, s{sT+1}, 1")
    a(f"s_add_u32 s{sT+1}, s{sT+1}, s{sPH}")
    a(f"s_mul_i32 s{sT+2}, s{sT}, {PTB}")
    a(f"s_lshl_b32 s{sT+3}, s{sT+1}, 11")
    a(f"s_add_u32 s{sT+2}, s{sT+2}, s{sT+3}")
    a(f"s_lshl_b32 s{sT+3}, s{sMG}, 7")
    a(f"s_add_u32 s{sT+2}, s{sT+2}, s{sT+3}")
    a(f"v_add_u32 v41, s{sT+2}, v41")
    a(f"s_mul_i32 s{sT}, s{sT}, 36864")
    a(f"s_mul_i32 s{sT+3}, s{sMG}, 9216")
    a(f"s_add_u32 s{sT}, s{sT}, s{sT+3}")
    a(f"s_lshl_b32 s{sT+1}, s{sT+1}, 6")
    a(f"s_add_u32 s{sT}, s{sT}, s{sT+1}")
    a(f"v_mov_b32 v43, {OOB}")
    a(f"v_cmp_gt_u32 vcc, 512, v{vL16}")
    a(f"v_add_u32 v44, s{sT}, v44")
    a("s_nop 0")
    a("v_cndmask_b32 v44, v43, v44, vcc")
    a(f"buffer_load_dwordx4 v[24:27], v44, {s(sX,4)}, 0 offen")
    a(f"s_lshl_b32 s{sT}, s{sMT}, 2")
    a(f"s_and_b32 s{sT+1}, s{sSL}, 3")
    a(f"s_add_u32 s{sT}, s{sT}, s{sT+1}")
    a(f"s_mul_i32 s{sW2A}, s{sT}, 36864")
    a(f"s_lshr_b32 s{sT+2}, s{sSL}, 2")
    a(f"s_lshl_b32 s{sT+2}, s{sT+2}, 12")
    a(f"s_add_u32 s{sW2A}, s{sW2A}, s{sT+2}")
    a(f"s_add_u32 s{sW2A}, s{sW2A}, s{sM0G}")
    a(f"s_add_u32 s{sW2A}, s{sW2A}, {WS_Z + 6 * 4096}")
    a(f"v_add_u32 v64, s{sM0G}, v{vL16}")
    a(f"v_bfe_u32 v65, v64, 9, 2")
    a(f"v_lshlrev_b32 v65, 4, v65")
    a(f"v_xor_b32 v64, v65, v64")
    a(f"v_xor_b32 v65, s{sMG}, v40")
    a(f"v_lshlrev_b32 v65, 4, v65")
    a(f"v_lshl_add_u32 v65, v40, 9, v65")
    a(f"v_bfe_u32 v66, v{vL16}, 4, 1")
    a(f"v_lshl_add_u32 v65, v66, 3, v65")
    a(f"v_bfe_u32 v66, v{vL16}, 5, 2")
    a(f"v_lshl_add_u32 v65, v66, 1, v65")
    a(f"s_lshl_b32 s{sT+2}, s{sPH}, 11")
    a(f"v_add_u32 v65, s{sT+2}, v65")
    a(f"s_lshl_b32 s{sT+1}, s{sT+1}, 8")
    a(f"s_lshl_b32 s{sT+2}, s{sMG}, 6")
    a(f"s_add_u32 s{sT+1}, s{sT+1}, s{sT+2}")
    a(f"s_add_u32 s{sT+1}, s{sT+1}, {STAT}")
    a(f"v_lshrrev_b32 v66, 1, v42")
    a(f"v_add_u32 v66, s{sT+1}, v66")
    a("ds_read_b64 v[68:69], v66")
    a(f"s_lshl_b32 s{sT}, s{sMT}, 7")
    a(f"s_add_u32 s{sT}, s{sT}, {WS_PF}")
    a(f"v_bfe_u32 v45, v{vL16}, 4, 4")
    a("v_min_u32 v45, 11, v45")
    a(f"v_lshl_add_u32 v45, v45, 3, s{sT}")
    for k in range(8): a(f"v_mov_b32 v{48+k}, 0")
    for k in range(8): a(f"v_mov_b32 v{72+k}, 0")
    a("s_mov_b32 s66, 0x00003f80")
    a("s_mov_b32 s67, 0x3f800000")
    Lz = a.newlabel("Lq")
    a(f"s_cmp_lg_u32 s{sW}, 5")
    a(f"s_cbranch_scc1 {Lz}")
    a(f"v_lshrrev_b32 v46, 1, v{vL16}")
    a(f"v_add_u32 v70, {k7h.WS_UF}, v46")
    poll(a, [f"buffer_load_dwordx2 v[46:47], v70, {s(sWS,4)}, 0 offen sc1"], k7h.flag_cond([46], 1), "y", opt.get("fsleep", 6))
    a.label(Lz)
    a("s_waitcnt vmcnt(0) lgkmcnt(0)")
    a("s_barrier")
    srd2(a, sW1, XBYTES)
    Lq, Lq2 = a.newlabel("Lq"), a.newlabel("Lq")
    a(f"s_cmp_lg_u32 s{sPH}, 0")
    a(f"s_cbranch_scc1 {Lq2}")
    a(f"buffer_load_dwordx4 v[32:35], v{vL16}, {s(sWS,4)}, s{sW2A} offen sc1")
    a("s_waitcnt vmcnt(0)")
    a("ds_write_b128 v64, v[32:35]")
    a("s_waitcnt lgkmcnt(0)")
    a.label(Lq2)
    a(f"s_cmp_lg_u32 s{sW}, 4")
    a(f"s_cbranch_scc1 {Lq}")
    a(f"v_lshrrev_b32 v46, 4, v{vL16}")
    a(f"v_cmp_eq_u32 vcc, s{sSL}, v46")
    a(f"s_add_u32 s{sT}, s{sTAG}, 9")
    a(f"v_mov_b32 v{vFD}, s{sT}")
    if opt.get("l8", 0):
        a(f"s_lshr_b32 s{sT+1}, s{sSL}, 2")
        a(f"s_add_u32 s{sT+1}, s{sT+1}, 7")
    else:
        a(f"s_cmp_lt_u32 s{sSL}, 4")
        a(f"s_cselect_b32 s{sT+1}, 7, 9")
    a("v_cndmask_b32 v46, v43, v45, vcc")
    a(f"buffer_store_dwordx2 {v(vFD,2)}, v46, {s(sWS,4)}, 0 offen sc1")
    poll(a, [f"buffer_load_dwordx2 v[46:47], v45, {s(sWS,4)}, 0 offen sc1"], k7h.flag_cond([46], f"s{sT+1}"), "f", opt.get("fsleep", 6))
    a.label(Lq)
    a("s_barrier")
    ST.stamp("all seen")
    for i in range(6):
        a(f"s_mov_b32 s{sOFF}, {2 * i * PSL}")
        a(f"buffer_load_dwordx4 {v(4*i,4)}, v41, {s(sWS,4)}, s{sOFF} offen sc1")
    for j in range(8): a(f"ds_read_u16_d16_hi v{72+j}, v65 offset:{j*64}")
    for k in range(4):
        a(f"v_lshlrev_b32 v{80+2*k}, 16, v{24+k}")
        a(f"v_and_b32 v{81+2*k}, 0xffff0000, v{24+k}")
    for j in range(8):
        a(f"v_sub_f32 v{88+j}, v{80+j}, v68")
        a(f"v_mul_f32 v{88+j}, v{88+j}, v69")
    a("s_waitcnt lgkmcnt(0)")
    for j in range(8): a(f"v_fmac_f32 v{80+j}, v{88+j}, v{72+j}")
    for i in range(6):
        a(f"s_waitcnt vmcnt({5-i})")
        for k in range(4):
            a(f"v_dot2c_f32_bf16 v{48+2*k}, s66, v{4*i+k}")
            a(f"v_dot2c_f32_bf16 v{49+2*k}, s67, v{4*i+k}")
    a(f"s_mov_b32 s{sT}, {f32(LN2)}")
    a("s_nop 1")
    for k in range(8): a(f"v_mov_b32 v{56+k}, v{48+k}")
    for k in range(8): a(f"v_permlane32_swap_b32 v{48+k}, v{56+k}")
    for k in range(8): a(f"v_add_f32 v{48+k}, v{48+k}, v{56+k}")
    for k in range(8): a(f"v_fma_f32 v{56+k}, s{sT}, v{48+k}, v{80+k}")
    for k in range(4): a(f"v_cvt_pk_bf16_f32 v{28+k}, v{56+2*k}, v{57+2*k}")
    a(f"buffer_store_dwordx4 v[28:31], v44, {s(sW1,4)}, 0 offen {opt.get('omod2', '')}")
    if opt.get("stamps"): a("s_waitcnt vmcnt(0)")
    ST.stamp("end"); ST.cyc(1)
    ST.flush(sWS, sW)
    a("s_endpgm")
    a.label(Lhelp)
    k7h.helper(a, opt, Lend)
    a.label(Lend)
    a("s_endpgm")
```

```python
from common import *
from k_mlp import Emit, M16

KB = 0; KCH = 8448; KC1 = 4096 + 128
UB = 9 * 8448; UCH = 9216; UCP = 4576
STB = 159744
WS_UF = WS_ZF + 1536
sX, sK, sV, sWS, sSK, sKF, sDD, sOUT, sDBG = 8, 12, 16, 20, 24, 40, 44, 48, 52
sH, sW, sMG, sPH, sQ, sKC, sZO, sI = 28, 30, 31, 32, 33, 34, 35, 36
sT = 56; sEX = 60; sOFF = 62
sCNT, sTAG = 5, 6
OOB = "0x7ffffff0"
vL16, vLN, vT16 = 239, 241, 238
NSL = 12

def flag_cond(regs, level):
    lv = level if isinstance(level, str) else str(level)
    o = [f"s_add_u32 s{sT+3}, s{sTAG}, {lv}"]
    for r in regs:
        o += [f"v_subrev_u32 v{r}, s{sT+3}, v{r}", f"v_xor_b32 v{r+1}, s{sTAG+1}, v{r+1}", f"v_lshrrev_b32 v{r}, 4, v{r}", f"v_or_b32 v{r}, v{r}, v{r+1}"]
    for r in regs[1:]: o.append(f"v_or_b32 v{regs[0]}, v{regs[0]}, v{r}")
    return o + [f"v_cmp_ne_u32 vcc, 0, v{regs[0]}", "s_cmp_eq_u64 vcc, 0"]

def helper(a, opt, Lend):
    from k7 import srd2, poll, stats_math
    ST = Stamps(a, opt.get("stamps"), 1)
    ST.n = 1; ST.names = ["start"]
    for d, off in ((sX, 0), (sK, 8), (sV, 16), (sSK, 24), (sKF, 32), (sDD, 40), (sOUT, 80), (sDBG, 88), (sWS, 96)):
        a(f"s_load_dwordx2 s[{d}:{d+1}], s[0:1], {off}")
    a("v_lshrrev_b32 v1, 6, v0")
    a(f"v_and_b32 v{vLN}, 63, v0")
    a(f"v_readfirstlane_b32 s{sW}, v1")
    a(f"s_sub_u32 s{sH}, s2, 192")
    a(f"v_lshlrev_b32 v{vL16}, 4, v{vLN}")
    a(f"v_lshlrev_b32 v{vT16}, 4, v0")
    a(f"s_and_b32 s{sMG}, s{sW}, 3")
    a(f"s_lshr_b32 s{sPH}, s{sW}, 2")
    a("s_waitcnt lgkmcnt(0)")
    srd2(a, sDBG, 256); srd2(a, sK, XBYTES); srd2(a, sV, XBYTES); srd2(a, sX, XBYTES); srd2(a, sWS, WS_END)
    srd2(a, sSK, 576 * 8); srd2(a, sKF, XBYTES); srd2(a, sDD, 576 * 2); srd2(a, sOUT, XBYTES)
    def one_lane_flag(addr_sgpr, level=0):
        a(f"v_mov_b32 v1, {OOB}")
        a(f"s_add_u32 s{sT+3}, s{sTAG}, {level}")
        a(f"v_mov_b32 v2, s{sT+3}")
        a(f"v_mov_b32 v3, s{sTAG+1}")
        a(f"v_writelane_b32 v1, s{addr_sgpr}, 0")
        a(f"buffer_store_dwordx2 v[2:3], v1, {s(sWS,4)}, 0 offen sc1")
    Lr = a.newlabel("Ltag")
    a(f"s_lshl_b32 s{sT}, s{sH}, 3")
    a(f"s_add_u32 s{sT}, s{sT}, s{sW}")
    a(f"s_cmp_lg_u32 s{sT}, 7")
    a(f"s_cbranch_scc1 {Lr}")
    a(f"s_mov_b64 s[{sT}:{sT+1}], s[66:67]" if opt.get("earlytag") else f"s_memrealtime s[{sT}:{sT+1}]")
    a(f"v_mov_b32 v1, {OOB}")
    a("v_writelane_b32 v1, 0, 0")
    a("s_waitcnt lgkmcnt(0)")
    a(f"s_lshl_b64 s[{sT}:{sT+1}], s[{sT}:{sT+1}], 4")
    a(f"s_bitset1_b32 s{sT+1}, 31")
    a(f"v_mov_b32 v2, s{sT}")
    a(f"v_mov_b32 v3, s{sT+1}")
    a(f"buffer_store_dwordx2 v[2:3], v1, {s(sDBG,4)}, 0 offen sc1")
    a.label(Lr)
    if opt.get("hpw", 1):
        Lw_ = a.newlabel("Lpw")
        a(f"s_cmp_lg_u32 s{sW}, 0")
        a(f"s_cbranch_scc1 {Lw_}")
        a(f"s_lshl_b32 s{sT}, s{sH}, 3")
        a(f"s_add_u32 s{sT}, s{sT}, {WS_UF}")
        a(f"v_mov_b32 v1, {OOB}")
        a("v_mov_b32 v2, 0"); a("v_mov_b32 v3, 0")
        a(f"v_writelane_b32 v1, s{sT}, 0")
        a(f"buffer_store_dwordx2 v[2:3], v1, {s(sWS,4)}, 0 offen sc1")
        a.label(Lw_)
    if opt.get("ctouch", 1):
        Lc = a.newlabel("Lct")
        a(f"s_cmp_lg_u32 s{sW}, 6")
        a(f"s_cbranch_scc1 {Lc}")
        a(f"s_getpc_b64 s[{sT}:{sT+1}]")
        Lh = a.newlabel("Lhere"); a.label(Lh)
        a(f"s_sub_u32 s{sT}, s{sT}, {Lh}-{opt['kname']}")
        a(f"s_subb_u32 s{sT+1}, s{sT+1}, 0")
        a(f"s_lshr_b32 s{sT+2}, s{sH}, 3")
        a(f"s_lshl_b32 s{sT+2}, s{sT+2}, 13")
        a(f"v_lshl_add_u32 v4, v{vLN}, 7, s{sT+2}")
        a(f"v_add_u32 v5, 0x10000, v4")
        a(f"v_min_u32 v4, {Lend}-{opt['kname']}, v4")
        a(f"v_min_u32 v5, {Lend}-{opt['kname']}, v5")
        a(f"global_load_dword v140, v4, s[{sT}:{sT+1}]")
        a(f"global_load_dword v140, v5, s[{sT}:{sT+1}]")
        a.label(Lc)
    KL, VL, SL_, BN, XL = 0, 41984, 80896, 86016, 118784
    a(f"s_mul_i32 s{sT}, s{sH}, 36864")
    a(f"s_sub_u32 s{sT+1}, s{sT}, 4608")
    a(f"v_add_u32 v4, s{sT+1}, v{vT16}")
    a(f"s_sub_u32 s{sT+1}, s{sT}, 1152")
    a(f"v_add_u32 v5, s{sT+1}, v{vT16}")
    a(f"s_lshl_b32 s{sT+2}, s{sW}, 10")
    def dma(vaddr, srd_, lds, nwaves=8, so="0"):
        L = None
        if nwaves < 8:
            L = a.newlabel("Ld"); a(f"s_cmp_ge_u32 s{sW}, {nwaves}"); a(f"s_cbranch_scc1 {L}")
        a(f"s_add_u32 m0, s{sT+2}, {lds}")
        a("s_nop 0")
        a(f"buffer_load_dwordx4 v{vaddr}, {s(srd_,4)}, {so} offen lds")
        if L: a.label(L)
    for i in range(6):
        dma(4, sK, KL + i * 8192, 8 if i < 5 else 1)
        a("v_add_u32 v4, 8192, v4")
        if i < 5:
            dma(5, sV, VL + i * 8192, 8 if i < 4 else 6)
            a("v_add_u32 v5, 8192, v5")
    dma(vT16, sSK, SL_, 5)
    a("v_mov_b32 v4, 0")
    KR, VR, KU, WU, UU, OUT, SKR = 12, 24, 34, 58, 66, 84, 8
    vKA, vBW, vBR, vSA, vID = 116, 117, 118, 119, 120
    a(f"s_lshl_b32 s{sT}, s{sW}, 12")
    a(f"s_add_u32 s{sT+1}, s{sT}, {BN}")
    a(f"v_lshl_add_u32 v{vBW}, v{vL16}, 2, s{sT+1}")
    a(f"v_add_u32 v{vBR}, s{sT+1}, v{vL16}")
    a(f"s_lshl_b32 s{sT+1}, s{sH}, 2")
    a(f"s_sub_u32 s{sT+1}, 252, s{sT+1}")
    a(f"s_mul_i32 s{sT+1}, s{sT+1}, 18432")
    a(f"s_add_u32 s{sOFF}, s{sT}, s{sT+1}")
    a(f"s_add_u32 s{sOFF}, s{sOFF}, {WS_U}")
    a(f"v_mov_b32 v{vID}, v0")
    a(f"s_mov_b32 s{sI}, s{sW}")
    a("s_movk_i32 s63, 3641")
    a("s_waitcnt vmcnt(0)")
    a("s_barrier")
    ST.stamp("in landed")
    a(f"buffer_load_dwordx2 v[6:7], v4, {s(sDBG,4)}, 0 offen sc1")
    a(f"s_mul_i32 s64, s{sH}, 36864")
    a(f"s_lshl_b32 s{sT+2}, s{sW}, 10")
    for i in range(5):
        dma(vT16, sX, XL + i * 8192, 8 if i < 4 else 4, "s64")
        a("s_add_u32 s64, s64, 8192")
    if opt.get("kft", 0):
        a(f"v_lshlrev_b32 v122, 2, v{vT16}")
        a(f"s_lshl_b32 s64, s{sH}, 15")
        a(f"buffer_load_dword v123, v122, {s(sKF,4)}, s64 offen")
    a(f"v_mov_b32 v2, 0"); a("v_mov_b32 v3, 0")
    a(f"v_lshrrev_b32 v121, 1, v{vL16}")
    a(f"v_add_u32 v121, {STB}, v121")
    a("ds_write_b64 v121, v[2:3]")
    Lp = a.newlabel("Lprep"); a.label(Lp)
    a(f"v_mul_u32_u24 v2, s63, v{vID}")
    a("v_lshrrev_b32 v2, 20, v2")
    a("v_mul_u32_u24 v3, 288, v2")
    a(f"v_sub_u32 v3, v{vID}, v3")
    a("v_sub_u32 v2, 3, v2")
    a(f"v_mul_u32_u24 v{vKA}, 9216, v2")
    a(f"v_lshl_add_u32 v{vKA}, v3, 2, v{vKA}")
    a(f"v_lshlrev_b32 v{vSA}, 4, v3")
    a(f"v_add_u32 v{vSA}, {SL_}, v{vSA}")
    a(f"ds_read_b128 {v(SKR,4)}, v{vSA}")
    for r in range(12): a(f"ds_read_b32 v{KR+r}, v{vKA} offset:{KL + r*1152}")
    a("s_waitcnt lgkmcnt(6)")
    for r in range(9): a(f"ds_read_b32 v{VR+r}, v{vKA} offset:{VL + r*1152}")
    for j in range(4):
        for h in range(2):
            src = SKR + 2 * h + (j >> 1)
            a(f"v_lshlrev_b32 v{WU+2*j+h}, 16, v{src}" if j % 2 == 0 else f"v_and_b32 v{WU+2*j+h}, 0xffff0000, v{src}")
    a("s_waitcnt lgkmcnt(9)")
    for r in range(12):
        a(f"v_lshlrev_b32 v{KU+2*r}, 16, v{KR+r}")
        a(f"v_and_b32 v{KU+2*r+1}, 0xffff0000, v{KR+r}")
    for r in range(9): a(f"v_pk_mul_f32 {v(UU+2*r,2)}, {v(KU+2*r,2)}, {v(WU+6,2)}")
    for j in range(1, 4):
        for r in range(9): a(f"v_pk_fma_f32 {v(UU+2*r,2)}, {v(KU+2*(r+j),2)}, {v(WU+2*(3-j),2)}, {v(UU+2*r,2)}")
    a("s_waitcnt lgkmcnt(0)")
    for r in range(9):
        a(f"v_lshlrev_b32 v{KU+2*r}, 16, v{VR+r}")
        a(f"v_and_b32 v{KU+2*r+1}, 0xffff0000, v{VR+r}")
    for r in range(9): a(f"v_pk_mul_f32 {v(UU+2*r,2)}, {v(UU+2*r,2)}, {v(KU+2*r,2)}")
    for h in range(2):
        for cp in range(2):
            o = OUT + (h * 2 + cp) * 4
            for i in range(4):
                top = 7 + cp - 2 * i
                a(f"v_cvt_pk_bf16_f32 v{o+i}, v{UU+2*top+h}, v{UU+2*(top-1)+h}")
            a(f"ds_write_b128 v{vBW}, {v(o,4)} offset:{(h*2+cp)*16}")
    for k in range(4): a(f"ds_read_b128 {v(100+4*k,4)}, v{vBR} offset:{k*1024}")
    a(f"v_add_u32 v{vID}, 512, v{vID}")
    for k in range(4):
        a(f"s_waitcnt lgkmcnt({3-k})")
        a(f"buffer_store_dwordx4 {v(100+4*k,4)}, v{vL16}, {s(sWS,4)}, s{sOFF} offen offset:{k*1024} sc1")
    a(f"s_add_u32 s{sOFF}, s{sOFF}, 32768")
    a(f"s_add_u32 s{sI}, s{sI}, 8")
    a(f"s_cmp_lt_u32 s{sI}, 18")
    a(f"s_cbranch_scc1 {Lp}")
    ST.stamp("prep done")
    tcond = [f"v_readfirstlane_b32 s{sTAG+1}, v7", f"v_readfirstlane_b32 s{sTAG}, v6", f"s_cmp_lg_u32 s{sTAG+1}, 0"]
    Ltg = a.newlabel("Ltg")
    a("s_waitcnt vmcnt(0)")
    for l in tcond: a(l)
    a(f"s_cbranch_scc1 {Ltg}")
    poll(a, [f"buffer_load_dwordx2 v[6:7], v4, {s(sDBG,4)}, 0 offen sc1"], tcond, "t")
    a.label(Ltg)
    a("s_waitcnt vmcnt(0)")
    a(f"s_load_dwordx2 s[{sK}:{sK+1}], s[0:1], 72")
    a("s_waitcnt lgkmcnt(0)")
    a("s_barrier")
    srd2(a, sK, WBYTES)
    L1 = a.newlabel("Lf")
    a(f"s_cmp_lg_u32 s{sW}, 0")
    a(f"s_cbranch_scc1 {L1}")
    a(f"s_lshl_b32 s{sT}, s{sH}, 3")
    a(f"s_add_u32 s{sT}, s{sT}, {WS_UF}")
    one_lane_flag(sT)
    a.label(L1)
    ST.stamp("U published")
    XR = 200; vXO, vXO4, vSB, SS = 236, 237, 235, 232
    a(f"v_and_b32 v6, 7, v{vLN}")
    a(f"s_lshl_b32 s{sT}, s{sMG}, 3")
    a(f"v_add_u32 v6, s{sT}, v6")
    a(f"v_lshlrev_b32 v{vSB}, 3, v6")
    a(f"v_add_u32 v{vSB}, {STB}, v{vSB}")
    a(f"v_mul_u32_u24 v{vXO}, 1152, v6")
    a(f"v_bfe_u32 v7, v{vLN}, 3, 2")
    a(f"v_lshl_add_u32 v{vXO}, v7, 4, v{vXO}")
    a(f"v_lshrrev_b32 v7, 5, v{vLN}")
    a(f"v_lshl_add_u32 v{vXO}, v7, 7, v{vXO}")
    a(f"s_lshl_b32 s{sT}, s{sPH}, 6")
    a(f"v_add_u32 v{vXO}, s{sT}, v{vXO}")
    a(f"v_add_u32 v8, {XL}, v{vXO}")
    for q in range(5): a(f"ds_read_b128 {v(XR+4*q,4)}, v8 offset:{q*256}")
    a(f"s_mul_i32 s{sT}, s{sH}, 36864")
    a(f"v_add_u32 v9, s{sT}, v{vXO}")
    a(f"v_mov_b32 v7, {OOB}")
    a(f"v_cmp_gt_u32 vcc, 32, v{vLN}")
    a("s_mov_b32 s66, 0x3f803f80")
    for k in range(4): a(f"v_mov_b32 v{12+k}, 0")
    a(f"v_cndmask_b32 v{vXO}, v7, v9, vcc")
    a(f"v_cndmask_b32 v{vXO4}, v9, v7, vcc")
    a("s_waitcnt lgkmcnt(0)")
    a("s_barrier")
    for k in range(4): a(f"v_cndmask_b32 v{XR+16+k}, 0, v{XR+16+k}, vcc")
    CA = 0
    QUADS = list(range(32, 160, 4))
    UL = 160
    vA, vB, vZS, vD0, AD, vS0, vUW, vUS, vDV = 220, 221, 222, 223, 224, 228, 234, 240, 242
    vN, vG, t1_, t2_, t3_, t4_ = 243, 244, 2, 3, 4, 5
    a(f"s_mul_i32 s{sKC}, s{sW}, {KCH}")
    a(f"s_lshl_b32 s{sQ}, s{sH}, 3")
    a(f"s_add_u32 s{sQ}, s{sQ}, s{sW}")
    a(f"s_lshl_b32 s{sT}, s{sQ}, 12")
    for c in range(2):
        a(f"s_add_u32 m0, s{sKC}, {KB + c * KC1}")
        a(f"s_add_u32 s{sOFF}, s{sT}, {4 * c}")
        for pc in range(4): a(f"buffer_load_dwordx4 v{vL16}, {s(sKF,4)}, s{sOFF} offen offset:{pc*1024} lds")
    a(f"s_mul_i32 s{sT}, s{sPH}, {KC1}")
    a(f"s_lshl_b32 s{sT+1}, s{sMG}, 10")
    a(f"s_add_u32 s{sT}, s{sT}, s{sT+1}")
    a(f"s_add_u32 m0, s{sT}, {KB + 8 * KCH}")
    a(f"s_lshl_b32 s{sT}, s{sH}, 12")
    a(f"s_add_u32 s{sT}, s{sT}, s{sT+1}")
    a(f"s_lshl_b32 s{sT+1}, s{sPH}, 2")
    a(f"s_add_u32 s{sT}, s{sT}, s{sT+1}")
    a(f"s_add_u32 s{sT}, s{sT}, {512 * 4096}")
    a(f"buffer_load_dwordx4 v{vL16}, {s(sKF,4)}, s{sT} offen lds")
    a(f"s_lshl_b32 s{sT}, s{sQ}, 1")
    a(f"v_mov_b32 v6, s{sT}")
    a(f"buffer_load_ushort v{vDV}, v6, {s(sDD,4)}, 0 offen")
    a(f"s_lshl_b32 s{sT}, s{sH}, 1")
    a(f"v_mov_b32 v7, s{sT}")
    a(f"buffer_load_ushort v245, v7, {s(sDD,4)}, 0 offen offset:1024")
    a(f"v_and_b32 v{vN}, 15, v{vLN}")
    a(f"v_lshrrev_b32 v{vG}, 4, v{vLN}")
    a(f"v_add_u32 v{t1_}, 1, v{vN}")
    a(f"v_and_b32 v{t2_}, 1, v{t1_}")
    a(f"v_lshrrev_b32 v{t1_}, 1, v{t1_}")
    a(f"v_lshlrev_b32 v{t3_}, 1, v{vG}")
    a(f"v_sub_u32 v{t1_}, v{t1_}, v{t3_}")
    a(f"v_lshlrev_b32 v{t1_}, 3, v{t1_}")
    a(f"v_mul_u32_u24 v{t3_}, {KC1}, v{t2_}")
    a(f"v_add_u32 v{t1_}, v{t1_}, v{t3_}")
    a(f"s_add_u32 s{sT+1}, s{sKC}, {KB + 48}")
    a(f"v_add_u32 v{vA}, s{sT+1}, v{t1_}")
    a(f"v_and_b32 v{t4_}, 1, v{vN}")
    a(f"v_mul_u32_u24 v{t1_}, {UCP}, v{t4_}")
    a(f"v_lshrrev_b32 v{t2_}, 1, v{vN}")
    a(f"v_lshl_add_u32 v{t3_}, v{t2_}, 2, v{vG}")
    a(f"v_lshlrev_b32 v{vZS}, 4, v{t3_}")
    a(f"v_lshl_add_u32 v{vZS}, v{t4_}, 3, v{vZS}")
    a(f"v_mul_u32_u24 v253, 36864, v{t2_}")
    a(f"v_lshl_add_u32 v253, v{vG}, 4, v253")
    a(f"v_lshl_add_u32 v253, v{t4_}, 3, v253")
    a(f"v_sub_u32 v{t3_}, 31, v{t3_}")
    a(f"v_lshl_add_u32 v{t1_}, v{t3_}, 4, v{t1_}")
    a(f"s_mul_i32 s{sT+1}, s{sW}, {UCH}")
    a(f"s_add_u32 s{sT+1}, s{sT+1}, {UB}")
    a(f"v_add_u32 v{vB}, s{sT+1}, v{t1_}")
    a(f"v_add_u32 v{vZS}, s{sT+1}, v{vZS}")
    a(f"v_lshlrev_b32 v{t1_}, 2, v{vG}")
    a(f"v_sub_u32 v{t1_}, v{vN}, v{t1_}")
    a(f"v_subrev_u32 v{vD0}, 3, v{t1_}")
    a(f"v_lshrrev_b32 v{t1_}, 8, v{vT16}")
    a(f"v_mul_u32_u24 v{vUS}, 18432, v{t1_}")
    a(f"v_and_b32 v{t2_}, 0xf0, v{vT16}")
    a(f"v_add_u32 v{vUS}, v{vUS}, v{t2_}")
    a(f"v_bfe_u32 v{t2_}, v{vT16}, 5, 3")
    a(f"v_mul_u32_u24 v{vUW}, {UCH}, v{t2_}")
    a(f"v_bfe_u32 v{t2_}, v{vT16}, 4, 1")
    a(f"v_mul_u32_u24 v{t2_}, {UCP}, v{t2_}")
    a(f"v_add_u32 v{vUW}, v{vUW}, v{t2_}")
    a(f"v_lshl_add_u32 v{vUW}, v{t1_}, 4, v{vUW}")
    a(f"v_add_u32 v{vUW}, {UB}, v{vUW}")
    a(f"v_lshrrev_b32 v{t1_}, 5, v{vT16}")
    a(f"v_mul_u32_u24 v246, 18432, v{t1_}")
    a(f"v_and_b32 v{t3_}, 16, v{vT16}")
    a(f"v_add_u32 v246, v246, v{t3_}")
    a(f"v_lshl_add_u32 v247, v{t1_}, 4, v{t2_}")
    a(f"v_add_u32 v247, {UB + 8 * UCH}, v247")
    for k in range(4): a(f"v_mov_b32 v{8+k}, 0")
    a(f"v_cmp_gt_u32 vcc, {448*16}, v{vT16}")
    a(f"s_and_saveexec_b64 s[{sEX}:{sEX+1}], vcc")
    a(f"ds_write_b128 v{vUW}, v[8:11] offset:4096")
    a(f"s_mov_b64 exec, s[{sEX}:{sEX+1}]")
    a(f"v_cmp_gt_u32 vcc, {56*16}, v{vT16}")
    a(f"s_and_saveexec_b64 s[{sEX}:{sEX+1}], vcc")
    a(f"ds_write_b128 v247, v[8:11] offset:4096")
    a(f"s_mov_b64 exec, s[{sEX}:{sEX+1}]")
    for k in range(20):
        a(f"v_dot2c_f32_bf16 v{12+2*(k&1)}, s66, v{XR+k}")
        a(f"v_dot2c_f32_bf16 v{13+2*(k&1)}, v{XR+k}, v{XR+k}")
    a("s_nop 2")
    a("v_add_f32 v12, v12, v14")
    a("v_add_f32 v13, v13, v15")
    a("s_nop 1")
    a("v_add_f32_dpp v12, v12, v12 row_ror:8 row_mask:0xf bank_mask:0xf")
    a("v_add_f32_dpp v13, v13, v13 row_ror:8 row_mask:0xf bank_mask:0xf")
    for op in ("v_permlane16_swap_b32", "v_permlane32_swap_b32"):
        a("v_mov_b32 v14, v12"); a("v_mov_b32 v15, v13"); a("s_nop 1")
        a(f"{op} v12, v14"); a(f"{op} v13, v15")
        a("v_add_f32 v12, v12, v14"); a("v_add_f32 v13, v13, v15")
    a("s_mov_b64 exec, 0xff")
    a(f"ds_add_f32 v{vSB}, v12")
    a(f"ds_add_f32 v{vSB}, v13 offset:4")
    a("s_mov_b64 exec, -1")
    a(f"v_mov_b32 v7, {OOB}")
    a(f"s_lshr_b32 s{sT}, s{sH}, 3")
    a(f"s_and_b32 s{sT+1}, s{sH}, 3")
    a(f"s_mul_i32 s{sT+1}, s{sT+1}, {1152*1152}")
    a(f"s_mul_i32 s{sT}, s{sT}, {144*1152}")
    a(f"s_add_u32 s39, s{sT}, s{sT+1}")
    a(f"s_lshl_b32 s{sT}, s{sW}, 11")
    a(f"v_lshl_add_u32 v248, v{vLN}, 7, s{sT}")
    a(f"v_cmp_gt_u32 vcc, 16, v{vLN}")
    a("s_nop 1")
    a("v_cndmask_b32 v248, v7, v248, vcc")
    L2 = a.newlabel("Lf")
    a(f"s_cmp_lg_u32 s{sW}, 0")
    a(f"s_cbranch_scc1 {L2}")
    a(f"v_lshrrev_b32 v4, 1, v{vL16}")
    a(f"v_add_u32 v4, {WS_UF}, v4")
    poll(a, [f"buffer_load_dwordx2 v[2:3], v4, {s(sWS,4)}, 0 offen sc1"], flag_cond([2], 0), "u", 2)
    a.label(L2)
    a("s_barrier")
    ST.stamp("U seen")
    a(f"s_lshl_b32 s{sT}, s{sH}, 8")
    a(f"s_add_u32 s{sT}, s{sT}, {WS_U}")
    for it in range(8):
        a(f"buffer_load_dwordx4 {v(UL+4*it,4)}, v{vUS}, {s(sWS,4)}, s{sT} offen sc1")
        if it < 7: a(f"s_add_u32 s{sT}, s{sT}, {32*18432}")
    a(f"s_lshl_b32 s{sT}, s{sH}, 5")
    a(f"s_add_u32 s{sT}, s{sT}, {WS_U + 128*128}")
    a(f"buffer_load_dwordx4 {v(UL+32,4)}, v246, {s(sWS,4)}, s{sT} offen sc1")
    def a0_setup(dv, sbase):
        for i in range(4):
            a(f"v_add_u32 v250, {i}, v{vD0}")
            a(f"v_cmp_eq_u32 vcc, 0, v250")
            a(f"v_max_i32 v251, 0, v250")
            a(f"v_lshl_add_u32 v{vS0+i}, v251, 2, s{sbase}")
            a(f"v_cndmask_b32 v{AD+i}, 0, v{dv}, vcc")
    a("s_waitcnt vmcnt(9)")
    a(f"s_sub_u32 s{sT}, 8, s{sW}")
    a(f"s_lshl_b32 s{sT+2}, s{sW}, 6")
    a(f"s_mul_i32 s64, s{sT}, {KCH}")
    a(f"s_add_u32 s64, s64, s{sT+2}")
    a(f"s_mul_i32 s65, s{sT}, {UCH}")
    a(f"s_add_u32 s65, s65, s{sT+2}")
    a(f"s_lshl_b32 s66, s{sW}, 4")
    a(f"v_add_u32 v{vA}, s64, v{vA}")
    a(f"v_add_u32 v{vB}, s65, v{vB}")
    a(f"v_add_u32 v{vD0}, s66, v{vD0}")
    a(f"s_mov_b32 s67, {KB + 8 * KCH}")
    a0_setup(245, 67)
    for it in range(8):
        a(f"s_waitcnt vmcnt({8-it})")
        a(f"ds_write_b128 v{vUW}, {v(UL+4*it,4)} offset:{it*512}")
    a("s_waitcnt vmcnt(0)")
    a(f"ds_write_b128 v247, {v(UL+32,4)}")
    a("s_waitcnt lgkmcnt(0)")
    a("s_barrier")
    ST.stamp("conv start")
    pairs = []
    for aa in range(8):
        for n in range(7, aa - 1, -1): pairs.append((aa, n - aa))
    def conv_pass(nb, vq, CA, TP=3):
        X = Emit(a)
        ops = [(b, aa, mu) for b in range(nb) for (aa, mu) in pairs]
        need = [("A", 0, 0)] + [("B", 0, n) for n in range(7, -1, -1)]
        last = {}
        for idx, (b, aa, mu) in enumerate(ops):
            for key in (("A", b, aa), ("B", b, mu)):
                if key not in need: need.append(key)
                last[key] = idx
        free = list(QUADS); where = {}
        def issue():
            key = need.pop(0); q = free.pop(0); where[key] = q
            kind, b, i = key
            if key == ("A", 0, 0):
                for k in range(4): X.one(dict(i=f"ds_read_b32 v{q+k}, v{vS0+k}", lds=key))
            elif kind == "A":
                for hh in range(2): X.one(dict(i=f"ds_read_b64 {v(q+2*hh,2)}, v{vA} offset:{b*64 + i*512 - 64 + 8*hh}", lds=key))
            else: X.one(dict(i=f"ds_read_b128 {v(q,4)}, v{vB} offset:{b*64 + (7-i)*512}", lds=key))
        for _ in range(9): issue()
        q0 = where[("A", 0, 0)]
        for k in range(4):
            a(f"v_add_u32 v250, {k}, v{vD0}")
            a(f"v_cmp_le_i32 vcc, 0, v250")
            a("s_nop 1")
            X.one(dict(i=f"v_cndmask_b32 v{q0+k}, 0, v{q0+k}, vcc", needl=[("A", 0, 0)]))
        for n in range(7, -1, -1):
            X.one(dict(i=f"{M16} {v(CA+4*n,4)}, {v(AD,4)}, {v(where[('B',0,n)],4)}, 0", needl=[("B", 0, n)]))
            if need and len(X.lg.q) < 12: issue()
        for idx, (b, aa, mu) in enumerate(ops):
            ka, kb = ("A", b, aa), ("B", b, mu)
            while ka not in where or kb not in where: issue()
            d = CA + 4 * (aa + mu)
            X.one(dict(i=f"{M16} {v(d,4)}, {v(where[ka],4)}, {v(where[kb],4)}, {v(d,4)}", needl=[ka, kb]))
            for key in (ka, kb):
                if last[key] == idx: free.append(where[key])
            if need and free and need[0][1] <= b + 1 and (idx % 2 == 0 or need[0][1] == b):
                if len(X.lg.q) >= 12:
                    a("s_waitcnt lgkmcnt(4)"); X.lg.q = X.lg.q[-4:]
                issue()
            if idx % TP == TP // 2 and vq: X.one(vq.pop(0))
        assert not need and not vq
        a("s_nop 7")
    tl = [f"buffer_load_dword v252, v248, {s(sK,4)}, s39 offen\ns_add_u32 s39, s39, {128*128 if k < 9 else 16*128}" for k in range(11)] if opt.get("touch", 1) else []
    NE = opt.get('ne', 6)
    conv_pass(1, tl[:NE], UL, 6)
    tl = tl[NE:]
    a(f"v_subrev_u32 v{vA}, s64, v{vA}")
    a(f"v_subrev_u32 v{vB}, s65, v{vB}")
    a(f"v_subrev_u32 v{vD0}, s66, v{vD0}")
    a0_setup(vDV, sKC)
    xl = []
    if opt.get("ctouch2", 1):
        a("s_getpc_b64 s[66:67]")
        Lh2 = a.newlabel("Lhere"); a.label(Lh2)
        a(f"s_sub_u32 s66, s66, {Lh2}-{opt['kname']}")
        a("s_subb_u32 s67, s67, 0")
        a(f"s_lshr_b32 s{sT}, s{sH}, 3")
        a(f"s_mul_i32 s{sT}, s{sT}, 10240")
        a(f"s_mul_i32 s{sT+1}, s{sW}, 1280")
        a(f"s_add_u32 s{sT}, s{sT}, s{sT+1}")
        a(f"v_min_u32 v249, 9, v{vLN}")
        a(f"v_lshl_add_u32 v249, v249, 7, s{sT}")
        a(f"v_min_u32 v249, {Lend}-{opt['kname']}, v249")
        xl = ["global_load_dword v252, v249, s[66:67]"]
    conv_pass(8, tl + xl, CA, opt.get('tp', 6))
    for n in range(8):
        a(f"v_cvt_pk_bf16_f32 v{32+2*n}, v{CA+4*n}, v{CA+4*n+1}")
        a(f"v_cvt_pk_bf16_f32 v{33+2*n}, v{CA+4*n+2}, v{CA+4*n+3}")
        a(f"ds_write_b64 v{vZS}, {v(32+2*n,2)} offset:{n*512}")
    ST.stamp("conv main")
    a(f"s_mov_b32 s67, {UB}")
    a(f"v_add_u32 v250, s{sKC}, v{vL16}")
    a("s_waitcnt lgkmcnt(4)")
    for n in range(8): a(f"ds_write_b128 v250, {v(UL+4*n,4)} offset:{n*1024}")
    a(f"v_bfe_u32 v250, v{vT16}, 6, 3")
    a(f"v_mul_u32_u24 v250, {UCH}, v250")
    a(f"v_lshrrev_b32 v251, 9, v{vT16}")
    a(f"v_lshl_add_u32 v250, v251, 6, v250")
    a(f"v_and_b32 v249, 48, v{vT16}")
    a(f"v_add3_u32 v250, v250, v249, s67")
    a(f"v_mul_u32_u24 v251, 36864, v251")
    a(f"v_and_b32 v249, 0x1f0, v{vT16}")
    a(f"v_add_u32 v251, v251, v249")
    a("s_waitcnt lgkmcnt(0)")
    a("s_barrier")
    for k in range(4): a(f"ds_read_b128 {v(84+4*k,4)}, v250 offset:{k*1024}")
    for k in range(8): a(f"ds_read_b128 {v(52+4*k,4)}, v{vT16} offset:{k*KCH}")
    a(f"s_lshl_b32 s{sZO}, s{sH}, 9")
    a(f"s_add_u32 s{sZO}, s{sZO}, {WS_Z}")
    for k in range(4):
        a(f"s_waitcnt lgkmcnt({11-k})")
        a(f"buffer_store_dwordx4 {v(84+4*k,4)}, v251, {s(sWS,4)}, s{sZO} offen sc1")
        a(f"s_add_u32 s{sZO}, s{sZO}, {16*36864}")
    a(f"s_lshl_b32 s{sZO}, s{sH}, 6")
    a(f"s_mul_i32 s{sT}, s{sW}, {8*36864}")
    a(f"s_add_u32 s{sZO}, s{sZO}, s{sT}")
    a(f"s_add_u32 s{sZO}, s{sZO}, {WS_Z + 512*64}")
    a("s_waitcnt lgkmcnt(0)")
    for k in range(1, 8):
        for r in range(4): a(f"v_add_f32 v{52+r}, v{52+r}, v{52+4*k+r}")
    a("v_cvt_pk_bf16_f32 v48, v52, v53")
    a("v_cvt_pk_bf16_f32 v49, v54, v55")
    a(f"buffer_store_dwordx2 v[48:49], v253, {s(sWS,4)}, s{sZO} offen sc1")
    ST.stamp("conv done")
    vRL, vPF, vZG, vZG4, vZW, vZR, vUF, vRL4 = 220, 221, 225, 226, 227, 228, 229, 230
    a(f"ds_read_b64 v[150:151], v{vSB}")
    a(f"v_lshrrev_b32 v250, 6, v{vT16}")
    a(f"v_and_b32 v251, 48, v{vT16}")
    a(f"v_mov_b32 v{vZG}, v{vT16}")
    a(f"v_bfe_u32 v249, v{vT16}, 9, 2")
    a(f"v_lshlrev_b32 v249, 4, v249")
    a(f"v_xor_b32 v{vZW}, v249, v{vT16}")
    a(f"s_cmp_eq_u32 s{sPH}, 0")
    a(f"s_cselect_b32 s{sT+2}, 0, {OOB}")
    a(f"v_or_b32 v{vZG4}, s{sT+2}, v{vZG}")
    a(f"v_bfe_u32 v250, v{vLN}, 3, 2")
    a(f"v_lshrrev_b32 v249, 5, v{vLN}")
    a(f"v_and_b32 v251, 0x70, v{vL16}")
    a(f"v_lshl_add_u32 v251, v250, 9, v251")
    a(f"v_mul_u32_u24 v{vRL}, {PSL}, v249")
    a(f"v_add_u32 v{vRL}, v{vRL}, v251")
    a(f"s_mul_i32 s{sT}, s{sH}, {PTB}")
    a(f"s_lshl_b32 s{sT+1}, s{sMG}, 7")
    a(f"s_add_u32 s{sT}, s{sT}, s{sT+1}")
    a(f"s_lshl_b32 s{sT+1}, s{sPH}, 11")
    a(f"s_add_u32 s{sT}, s{sT}, s{sT+1}")
    a(f"v_add_u32 v{vRL}, s{sT}, v{vRL}")
    a(f"v_min_u32 v251, {NSL-1}, v{vLN}")
    a(f"s_lshl_b32 s{sT}, s{sH}, 7")
    a(f"s_add_u32 s{sT}, s{sT}, {WS_PF2}")
    a(f"v_lshl_add_u32 v{vPF}, v251, 3, s{sT}")
    a(f"v_xor_b32 v251, s{sMG}, v250")
    a(f"v_lshlrev_b32 v251, 4, v251")
    a(f"v_lshl_add_u32 v{vZR}, v250, 9, v251")
    a(f"v_lshl_add_u32 v{vZR}, v249, 12, v{vZR}")
    a(f"v_and_b32 v251, 1, v{vLN}")
    a(f"v_lshl_add_u32 v{vZR}, v251, 3, v{vZR}")
    a(f"v_and_b32 v251, 6, v{vLN}")
    a(f"v_add_u32 v{vZR}, v{vZR}, v251")
    a(f"v_add_u32 v{vZR}, s{sT+1}, v{vZR}")
    a(f"v_lshrrev_b32 v{vUF}, 1, v{vL16}")
    a(f"v_add_u32 v{vUF}, {WS_UF}, v{vUF}")
    BASE, ZL, ZR, XN, AC = 160, 96, 116, 48, 144
    a("s_mov_b32 s63, 0x00003f80")
    a("s_mov_b32 s64, 0x3f800000")
    a(f"s_mov_b32 s65, {f32(LN2)}")
    a(f"s_mov_b32 s{sI}, 0")
    RB = lambda st: (st % 4) * 24
    def wave_poll(addr, level, tag):
        Lk = a.newlabel("Lk")
        a(f"s_cmp_lg_u32 s{sW}, 7")
        a(f"s_cbranch_scc1 {Lk}")
        poll(a, [f"buffer_load_dwordx2 v[222:223], v{addr}, {s(sWS,4)}, 0 offen sc1"], flag_cond([222], level), tag, opt.get("psleep", 3))
        a.label(Lk)
        a("s_barrier")
    def ensure(level, force=False):
        Lk, Lq = a.newlabel("Lk"), a.newlabel("Lq")
        if not force:
            a(f"s_cmp_ge_u32 s{sI}, {level}")
            a(f"s_cbranch_scc1 {Lk}")
        a(f"s_cmp_lg_u32 s{sW}, 7")
        a(f"s_cbranch_scc1 {Lq}")
        cond = [f"v_subrev_u32 v222, s{sTAG}, v222", f"v_xor_b32 v223, s{sTAG+1}, v223", "v_lshrrev_b32 v224, 4, v222", "v_or_b32 v223, v223, v224",
                "v_cmp_eq_u32 vcc, 0, v223", "s_nop 1", "v_cndmask_b32 v222, 0, v222, vcc", "s_nop 1",
                "v_min_u32_dpp v222, v222, v222 row_ror:8 row_mask:0xf bank_mask:0xf", "s_nop 1",
                "v_min_u32_dpp v222, v222, v222 row_ror:4 row_mask:0xf bank_mask:0xf", "s_nop 1",
                "v_min_u32_dpp v222, v222, v222 row_ror:2 row_mask:0xf bank_mask:0xf", "s_nop 1",
                "v_min_u32_dpp v222, v222, v222 row_ror:1 row_mask:0xf bank_mask:0xf", "s_nop 0",
                f"v_readfirstlane_b32 s{sI}, v222", "s_nop 0", f"s_cmp_ge_u32 s{sI}, {level}"]
        poll(a, [f"buffer_load_dwordx2 v[222:223], v{vPF}, {s(sWS,4)}, 0 offen sc1"], cond, "p", opt.get("psleep", 3))
        a(f"v_mov_b32 v222, s{sI}")
        a(f"ds_write_b32 v231, v222 offset:{4*level}")
        a("s_waitcnt lgkmcnt(0)")
        a.label(Lq)
        if force: a("s_waitcnt vmcnt(0)")
        a("s_barrier")
        a(f"ds_read_b32 v222, v231 offset:{4*level}")
        a("s_waitcnt lgkmcnt(0)")
        a(f"v_readfirstlane_b32 s{sI}, v222")
        a.label(Lk)
    a(f"v_mov_b32 v231, {STB + 512}")
    nst = []
    NL = NSL // 2
    def loads(st):
        for i in range(NL):
            a(f"s_mov_b32 s{sOFF}, {2 * i * PSL + st * 4096}")
            a(f"buffer_load_dwordx4 {v(RB(st)+4*i,4)}, v{vRL}, {s(sWS,4)}, s{sOFF} offen sc1")
        nst.extend([("L", st)] * NL)
    def consume(st, defer=False):
        q = st >> 1
        for k in range(8): a(f"v_mov_b32 v{AC+k}, 0")
        for i in range(NL):
            idx = [j for j, e in enumerate(nst) if e == ("L", st)][i]
            a(f"s_waitcnt vmcnt({len(nst) - 1 - idx})")
            for k in range(4):
                a(f"v_dot2c_f32_bf16 v{AC+2*k}, s63, v{RB(st)+4*i+k}")
                a(f"v_dot2c_f32_bf16 v{AC+2*k+1}, s64, v{RB(st)+4*i+k}")
        a("s_nop 2")
        for k in range(8): a(f"v_mov_b32 v{AC+8+k}, v{AC+k}")
        for k in range(8): a(f"v_permlane32_swap_b32 v{AC+k}, v{AC+8+k}")
        for k in range(8): a(f"v_add_f32 v{AC+k}, v{AC+k}, v{AC+8+k}")
        if defer:
            for k in range(8): a(f"v_mul_f32 v{DS+8*st+k}, s65, v{AC+k}")
            return
        for k in range(8): a(f"v_fma_f32 v{AC+k}, s65, v{AC+k}, v{BASE+8*q+k}")
        emit_out(st)
    DS = 240
    def emit_out(st):
        q = st >> 1
        o = 132 + 4 * (st % 3)
        for k in range(4): a(f"v_cvt_pk_bf16_f32 v{o+k}, v{AC+2*k}, v{AC+2*k+1}")
        a(f"buffer_store_dwordx4 {v(o,4)}, v{vXO4 if st & 1 else vXO}, {s(sOUT,4)}, 0 offen offset:{q*256} {opt.get('omod', '')}")
        nst.append(("S", st))
    a("s_waitcnt lgkmcnt(0)")
    for l in stats_math(150, 151, 152, 153, SS, SS + 1): a(l)
    for k in range(12):
        a(f"v_lshlrev_b32 v{BASE+2*k}, 16, v{XR+k}")
        a(f"v_and_b32 v{BASE+2*k+1}, 0xffff0000, v{XR+k}")
    for k in range(16): a(f"v_mov_b32 v{ZR+k}, 0")
    a(f"v_mul_f32 v{SS}, v{SS}, v{SS+1}")
    ST.stamp("xpart")
    a(f"v_lshrrev_b32 v230, 5, v{vLN}")
    a(f"v_mul_u32_u24 v230, {PSL - 4096}, v230")
    a(f"v_sub_u32 v230, v{vRL}, v230")
    a(f"v_mov_b32 v234, {OOB}")
    a(f"v_cmp_gt_u32 vcc, 32, v{vLN}")
    a("s_nop 1")
    a("v_cndmask_b32 v234, v234, v230, vcc")
    def step(st, defer=False, extra=()):
        lv = st + 3
        La, Lb = a.newlabel("Lr"), a.newlabel("Lr")
        save = list(nst)
        a(f"s_cmp_ge_u32 s{sI}, {lv}")
        a(f"s_cbranch_scc0 {La}")
        loads(st + 2); consume(st, defer)
        a(f"s_branch {Lb}")
        a.label(La)
        nst[:] = save
        consume(st, defer); ensure(lv); loads(st + 2)
        a.label(Lb)
        nst[:] = [("L", st + 1)] * NL + list(extra) + [("L", st + 2)] * NL
    ensure(0, force=True)
    L4 = a.newlabel("Lf")
    a(f"s_cmp_lg_u32 s{sW}, 0")
    a(f"s_cbranch_scc1 {L4}")
    a(f"s_lshl_b32 s{sT}, s{sH}, 3")
    a(f"s_add_u32 s{sT}, s{sT}, {WS_UF}")
    a(f"v_mov_b32 v248, {OOB}")
    a(f"s_add_u32 s{sT+3}, s{sTAG}, 1")
    a(f"v_mov_b32 v250, s{sT+3}")
    a(f"v_mov_b32 v251, s{sTAG+1}")
    a(f"v_writelane_b32 v248, s{sT}, 0")
    a(f"buffer_store_dwordx2 v[250:251], v248, {s(sWS,4)}, 0 offen sc1")
    a.label(L4)
    ensure(1); ST.stamp("seen 1"); loads(0)
    ensure(2); loads(1)
    consume(0, True)
    Lk = a.newlabel("Lk")
    a(f"s_cmp_lg_u32 s{sW}, 6")
    a(f"s_cbranch_scc1 {Lk}")
    poll(a, [f"buffer_load_dwordx2 v[222:223], v{vUF}, {s(sWS,4)}, 0 offen sc1"], flag_cond([222], 1), "z", opt.get("psleep", 3))
    a.label(Lk)
    a(f"s_mov_b32 s{sI}, 0")
    ensure(3); ST.stamp("z seen")
    a(f"s_mul_i32 s{sT}, s{sH}, 36864")
    a(f"s_add_u32 s{sT}, s{sT}, {WS_Z}")
    for i in range(3):
        a(f"buffer_load_dwordx4 {v(ZL+4*i,4)}, v{vZG}, {s(sWS,4)}, s{sT} offen sc1")
        if i < 2: a(f"s_add_u32 s{sT}, s{sT}, 8192")
    nst.extend([("Z", 0)] * 3)
    loads(2)
    step(1, True)
    a(f"s_waitcnt vmcnt({2*NL})")
    for i in range(3): a(f"ds_write_b128 v{vZW}, {v(ZL+4*i,4)} offset:{i*8192}")
    a("s_waitcnt lgkmcnt(0)")
    a("s_barrier")
    rd = lambda q: [a(f"ds_read_u16_d16_hi v{ZR+8*(q&1)+j}, v{vZR} offset:{q*8192 + j*64}") for j in range(8)]
    order = [0, 1, 2]
    rdn = lambda n: [a(f"ds_read_u16_d16_hi v{ZR+8*(n&1)+j}, v{vZR} offset:{order[n]*8192 + j*64}") for j in range(8)]
    rdn(0)
    for n, q in enumerate(order):
        if n < 2:
            a("s_waitcnt lgkmcnt(4)")
            rdn(n + 1)
        for j in range(8): a(f"v_fma_f32 v{AC+j}, v{BASE+8*q+j}, v{SS+1}, -v{SS}")
        a(f"s_waitcnt lgkmcnt({8 if n < 2 else 0})")
        for j in range(8): a(f"v_fmac_f32 v{BASE+8*q+j}, v{AC+j}, v{ZR+8*(n&1)+j}")
        if q >= 3:
            for k in range(4): a(f"v_cvt_pk_bf16_f32 v{XR+4*q+k}, v{BASE+8*q+2*k}, v{BASE+8*q+2*k+1}")
            a(f"s_mov_b32 s{sOFF}, {12 * PSL + q * 8192}")
            a(f"buffer_store_dwordx4 {v(XR+4*q,4)}, v{230 if q == 3 else 234}, {s(sWS,4)}, s{sOFF} offen sc1")
    for k in range(8): a(f"v_add_f32 v{AC+k}, v{DS+k}, v{BASE+k}")
    emit_out(0)
    for k in range(8): a(f"v_add_f32 v{AC+k}, v{DS+8+k}, v{BASE+k}")
    emit_out(1)
    nst[:] = [("L", 2)] * NL + [("L", 3)] * NL + [("S", 0)] * 2
    ST.stamp("base")
    NR = 6
    def step2(st):
        pass
    for st in range(2, NR):
        if opt.get("la3") and st == 2:
            La, Lb = a.newlabel("Lr"), a.newlabel("Lr")
            save = list(nst)
            a(f"s_cmp_ge_u32 s{sI}, 6")
            a(f"s_cbranch_scc0 {La}")
            loads(4); loads(5); consume(2)
            a(f"s_branch {Lb}")
            a.label(La)
            nst[:] = save
            consume(2); ensure(5); loads(4); ensure(6); loads(5)
            a.label(Lb)
            nst[:] = [("L", 3)] * NL + [("L", 4)] * NL + [("L", 5)] * NL
        elif st < NR - 2 and not (opt.get("la3") and st == 3): step(st)
        else: consume(st)
        if st in (2, 3): ST.stamp(f"it {st}")
    if opt.get("diagwait"):
        Lw = a.newlabel("Lw")
        a(f"s_lshr_b64 s[66:67], s[{sTAG}:{sTAG+1}], 4")
        a.label(Lw)
        a("s_memrealtime s[64:65]")
        a("s_waitcnt lgkmcnt(0)")
        a("s_sub_u32 s64, s64, s66")
        a(f"s_cmp_lt_u32 s64, {opt['diagwait']}")
        a(f"s_cbranch_scc1 {Lw}")
    if opt.get("stamps"): a("s_waitcnt vmcnt(0)")
    ST.stamp("end"); ST.cyc(1)
    ST.flush(sWS, sW)
```

```python
import sys
from gen import *
import k7
NAME = "parallel_sum__ssm_conv_h3__dense_activation_mish__prompt_kernel"
DOC = """;
"""
def build1(opt, out):
    opt = dict(opt); opt["kname"] = NAME
    head = [l for l in open(REF).read().split("\n") if l.startswith(";") and "@launch" not in l]
    txt = "\n".join(head) + f"\n; @launch grid=(256,1,1) block=(512,1,1) lds={k7.LDS_ALL}\n"
    txt += DOC
    txt += '.amdgcn_target "amdgcn-amd-amdhsa--gfx950"\n.text\n'
    a = Asm()
    a.lines.append(kernel_header(NAME).rstrip())
    k7.gen(a, opt)
    txt += a.text() + '.section .rodata,"a"\n' + kernel_desc(NAME, 256)
    open(out, "w").write(txt)
if __name__ == "__main__":
    build1({}, "v7.s")
    build1({"stamps": 1}, "v7s.s")
    build1({"stamps": 2}, "v7c.s")
    build1({"stamps": 1, "l8": 1}, "e2.s")
```
